```python
import torch

def _softmax(x, axis=-1):
    return torch.softmax(x, dim=axis)
def _gelu(x):
    return torch.nn.functional.gelu(x, approximate="tanh")
def _silu(x):
    return torch.nn.functional.silu(x)
def _sigmoid(x):
    return torch.sigmoid(x)
def _layernorm(x, axis=-1, eps=1e-5):
    m = x.mean(dim=axis, keepdim=True)
    v = x.var(dim=axis, keepdim=True, unbiased=False)
    return (x - m) / torch.sqrt(v + eps)
def _scatter_add(tgt, idx, src, axis=0):
    return tgt.clone().index_add_(axis, idx, src)
def _segment_sum(src, seg, n):
    out = torch.zeros((n,) + src.shape[1:], dtype=src.dtype)
    return out.index_add_(0, seg, src)
def _pad(x, pw):
    flat = tuple(v for pair in reversed(pw) for v in pair)
    return torch.nn.functional.pad(x, flat)

kernel_name = 'recurrent_scan__gqa_block_cached__mixer_token_mlp__decode'

def setup_inputs():

    _w = (lambda a: (lambda t: t.to(torch.bfloat16) if t.is_floating_point() else t)(torch.as_tensor(a)))
    def _A_setup():
        B, Sq, D = 1, 1, 512
        Hq, Hkv, Sk, Dh = 32, 8, 65536, 128
        assert Hq % Hkv == 0, (Hq, Hkv)
        return {
            "x": _w((lambda *s: torch.randn(*s, dtype=torch.bfloat16) * 0.4)(B, Sq, D)),
            "k_cache": _w((lambda *s: torch.randn(*s, dtype=torch.bfloat16) * 3.2)(B, Hkv, Sk, Dh)),
            "v_cache": _w((lambda *s: torch.randn(*s, dtype=torch.bfloat16) * 1.6)(B, Hkv, Sk, Dh)),
            "wq": _w((lambda *s: torch.randn(*s, dtype=torch.bfloat16) * 3.2)(D, Hq * Dh) * (D ** -0.5)),
            "wo": _w((lambda *s: torch.randn(*s, dtype=torch.bfloat16) * 1.6)(Hq * Dh, D) * ((Hq * Dh) ** -0.5)),
        }
    _A_in = _A_setup()

    def _B_setup():
        B, S, D, F = 1, 1, 512, 1792
        return {
            "x": _w((lambda *s: torch.randn(*s, dtype=torch.bfloat16) * 0.4)(B, S, D)),
            "w1": _w((lambda *s: torch.randn(*s, dtype=torch.bfloat16) * 1.6)(S, F) * (S ** -0.5)),
            "b1": _w((lambda *s: torch.randn(*s, dtype=torch.bfloat16) * 1.6)(F) * 0.02),
            "w2": _w((lambda *s: torch.randn(*s, dtype=torch.bfloat16) * 1.6)(F, S) * (F ** -0.5)),
            "b2": _w((lambda *s: torch.randn(*s, dtype=torch.bfloat16) * 1.6)(S) * 0.02),
        }
    _B_in = _B_setup()

    return {
        "A_x": _A_in["x"],
        "A_k_cache": _A_in["k_cache"],
        "A_v_cache": _A_in["v_cache"],
        "A_wq": _A_in["wq"],
        "A_wo": _A_in["wo"],
        "B_x": _B_in["x"],
        "B_w1": _B_in["w1"],
        "B_b1": _B_in["b1"],
        "B_w2": _B_in["w2"],
        "B_b2": _B_in["b2"],
    }

def reference(A_x, A_k_cache, A_v_cache, A_wq, A_wo, B_x, B_w1, B_b1, B_w2, B_b2):
    def _A_ref(x, k_cache, v_cache, wq, wo):
        B, Sq, D = x.shape
        Hq, Dh = 32, 128
        Hkv = k_cache.shape[1]
        rep = Hq // Hkv
        q = (lambda x, *d: x.permute(*d))((x @ wq).reshape(B, Sq, Hq, Dh), 0, 2, 1, 3)
        k = (lambda x, n, axis: torch.repeat_interleave(x, n, dim=axis))(k_cache, rep, axis=1)
        v = (lambda x, n, axis: torch.repeat_interleave(x, n, dim=axis))(v_cache, rep, axis=1)
        scores = torch.einsum("bhqd,bhkd->bhqk", q, k) * (Dh ** -0.5)
        p = _softmax(scores, axis=-1)
        o = torch.einsum("bhqk,bhkd->bhqd", p, v)
        return (lambda x, *d: x.permute(*d))(o, 0, 2, 1, 3).reshape(B, Sq, Hq * Dh) @ wo

    def _B_ref(x, w1, b1, w2, b2):
        B, S, D = x.shape
        h = _layernorm(x, axis=-1)
        u = torch.einsum("bsd,sf->bdf", h, w1) + b1
        u = _gelu(u)
        y = torch.einsum("bdf,fs->bds", u, w2) + b2
        return (lambda x, *d: x.permute(*d))(y, 0, 2, 1)

    x = A_x
    xn = _layernorm(x, axis=-1)
    s = _A_ref(xn, A_k_cache, A_v_cache, A_wq, A_wo)
    g = _silu(_B_ref(xn, B_w1, B_b1, B_w2, B_b2))
    return x + s * g
```

```python
import sys, struct, math

KN = "recurrent_scan__gqa_block_cached__mixer_token_mlp__decode_kernel"

def f2u(x):
    return struct.unpack("<I", struct.pack("<f", x))[0]

class Gen:
    def __init__(self, **kw):
        self.L = []
        self.vm = []
        self.__dict__.update(kw)
    def a(self, s): self.L.append("  " + s)
    def lab(self, s): self.L.append(s + ":")
    def c(self, s): self.L.append("  ; " + s)
    def vmem(self, s, tag=None):
        self.a(s); self.vm.append(tag)
    def wait_vm(self, tag):
        if tag not in self.vm: return
        idx = max(i for i, t in enumerate(self.vm) if t == tag)
        n = len(self.vm) - 1 - idx
        n = min(n, 63)
        self.a(f"s_waitcnt vmcnt({n})")
        self.vm = self.vm[len(self.vm)-n:] if n else []
    def nop(self, n):
        if n > 0: self.a(f"s_nop {n-1}")

WS_Q   = 0x0
WS_EP  = 0x8000
WS_CNT = 0x10000
CNT_STRIDE = 1280
WS_ML  = 0x40000
WS_P2  = 0x80000
WS_S2  = 0x100000
WS_TS  = 0x1000000
LDS_XN   = 0
LDS_Y    = 4096
LDS_Q    = 4352
LDS_ML   = 5376
LDS_O    = 5632
LDS_TOTAL = 5632 + 8192
LOG2E = 1.4426950408889634
SCALE = 128 ** -0.5
LCG_A, LCG_C = 1664525, 1013904223
REG = 0x200000

DEFAULTS = dict(A=2, AP=2, NS=14, T=20.0, dyn=True, stamps=False, sleep_poll=0, wq_nt=True, poll_max=200000,
                pace_at=(1, 3, 5, 7, 9))

def build(**kw):
    p = dict(DEFAULTS); p.update(kw)
    G = Gen(**p)
    a, lab, c, vmem, wait_vm, nop = G.a, G.lab, G.c, G.vmem, G.wait_vm, G.nop
    A, AP, NS = G.A, G.AP, G.NS
    PF = 8
    POLL_MAX = G.poll_max
    OPT = 9 if G.dyn else 8
    hdr = [f"; @launch grid=(256,1,1) block=(256,1,1) lds={LDS_TOTAL}",
           '.amdgcn_target "amdgcn-amd-amdhsa--gfx950"', ".text", f".globl {KN}", ".p2align 8",
           f".type {KN},@function", f"{KN}:"]
    sX, sK, sV, sWQ, sWO, sBX, sW1, sB1 = 16, 18, 20, 22, 24, 26, 28, 30
    sW2, sB2, sOUT, sDBG, sWS = 32, 34, 36, 38, 40
    sTAGL, sTAGH = 42, 43
    srdK, srdV, srdW1, srdB1, srdW2 = 44, 48, 52, 56, 60
    srdC = 52
    sOFF = 64
    sWV, sA, sB, sG, sI = 72, 73, 74, 75, 76
    sN, sSTAT, sEXH, sCNTOFF, sBH = 77, 78, 79, 80, 81
    sT0, sT1, sT2, sT3 = 82, 83, 84, 85
    sTHR, sFLOOR = 86, 87
    sXD, sB2V = 88, 89
    sC0 = 90
    sPC = 92
    sTS0 = 94
    sLOG2E, sSCALE = 98, 99
    def sp(r): return f"s[{r}:{r+1}]"
    def sq(r): return f"s[{r}:{r+3}]"
    vLANE = 1; vKOFF = 2; vVOFF = 3
    vQ = 4; vO = 20; vNM = 28; vL = 29; vSEL = 30; vS = 34; vX = 38
    vT = 46
    vWO = 80
    vPA = 96
    vAOFF = 99
    vMASK = 100
    vW = 104
    vTK = 176
    NV = 184
    def v(r): return f"v{r}"
    def vr(r, n): return f"v[{r}:{r+n-1}]"
    def ar(r, n): return f"a[{r}:{r+n-1}]"
    def stamp(k):
        if G.stamps: a(f"s_memrealtime s[{4+2*k}:{5+2*k}]")

    def allred16(op, r, steps=("quad_perm:[1,0,3,2]", "quad_perm:[2,3,0,1]", "row_half_mirror", "row_mirror")):
        for s in steps:
            nop(2)
            a(f"{op}_dpp {v(r)}, {v(r)}, {v(r)} {s} row_mask:0xf bank_mask:0xf")
    def allred_rows(op, r, t):
        a(f"v_mov_b32 {v(t)}, {v(r)}")
        nop(2)
        a(f"v_permlane16_swap_b32 {v(r)}, {v(t)}")
        nop(1)
        a(f"{op} {v(r)}, {v(r)}, {v(t)}")
        a(f"v_mov_b32 {v(t)}, {v(r)}")
        nop(2)
        a(f"v_permlane32_swap_b32 {v(r)}, {v(t)}")
        nop(1)
        a(f"{op} {v(r)}, {v(r)}, {v(t)}")
    def allred64(op, r, t):
        allred16(op, r); allred_rows(op, r, t)
    def rbf(r):
        a(f"v_cvt_pk_bf16_f32 {v(r)}, {v(r)}, {v(r)}")
        a(f"v_and_b32 {v(r)}, 0xffff0000, {v(r)}")
    def poll_tail(label):
        if G.sleep_poll: a(f"s_sleep {G.sleep_poll}")
        a(f"s_add_u32 s{sT3}, s{sT3}, 1")
        a(f"s_cmp_lt_u32 s{sT3}, {POLL_MAX}")
        a(f"s_cbranch_scc1 {label}")

    t0, t1, t2, t3 = vS, vS+1, vS+2, vS+3
    F = vX
    def unpack8(dst, src):
        for j in range(4):
            a(f"v_lshlrev_b32 {v(dst+2*j)}, 16, {v(src+j)}")
            a(f"v_and_b32 {v(dst+2*j+1)}, 0xffff0000, {v(src+j)}")
    def ln_stats(F):
        a(f"v_add_f32 {v(t0)}, {v(F)}, {v(F+1)}")
        a(f"v_add_f32 {v(t1)}, {v(F+2)}, {v(F+3)}")
        a(f"v_add_f32 {v(t2)}, {v(F+4)}, {v(F+5)}")
        a(f"v_add_f32 {v(t3)}, {v(F+6)}, {v(F+7)}")
        a(f"v_add_f32 {v(t0)}, {v(t0)}, {v(t1)}")
        a(f"v_add_f32 {v(t2)}, {v(t2)}, {v(t3)}")
        a(f"v_add_f32 {v(t0)}, {v(t0)}, {v(t2)}")
        allred64("v_add_f32", t0, t3)
        a(f"v_mul_f32 {v(t0)}, 0x3b000000, {v(t0)}")
        a(f"v_sub_f32 {v(t2)}, {v(F)}, {v(t0)}")
        a(f"v_mul_f32 {v(t1)}, {v(t2)}, {v(t2)}")
        for j in range(1, 8):
            a(f"v_sub_f32 {v(t2)}, {v(F+j)}, {v(t0)}")
            a(f"v_fmac_f32 {v(t1)}, {v(t2)}, {v(t2)}")
        allred64("v_add_f32", t1, t3)
        a(f"v_mul_f32 {v(t1)}, 0x3b000000, {v(t1)}")
        rbf(t0); rbf(t1)
        a(f"v_add_f32 {v(t1)}, 0x{f2u(1e-5):08x}, {v(t1)}")
        rbf(t1)
        a(f"v_sqrt_f32 {v(t2)}, {v(t1)}")
        nop(1)
        a(f"v_rcp_f32 {v(t3)}, {v(t2)}")
        a(f"v_fma_f32 {v(vT)}, -{v(t2)}, {v(t2)}, {v(t1)}")
        a(f"v_mul_f32 {v(t3)}, 0.5, {v(t3)}")
        a(f"v_fma_f32 {v(t1)}, {v(vT)}, {v(t3)}, {v(t2)}")
        rbf(t1)
        a(f"v_rcp_f32 {v(t2)}, {v(t1)}")
        nop(1)
        a(f"v_fma_f32 {v(t3)}, -{v(t1)}, {v(t2)}, 1.0")
        a(f"v_fma_f32 {v(t2)}, {v(t3)}, {v(t2)}, {v(t2)}")
    def ln_apply2(r0, r1, tmp):
        a(f"v_sub_f32 {v(r0)}, {v(r0)}, {v(t0)}")
        a(f"v_sub_f32 {v(r1)}, {v(r1)}, {v(t0)}")
        a(f"v_cvt_pk_bf16_f32 {v(r1)}, {v(r0)}, {v(r1)}")
        a(f"v_lshlrev_b32 {v(r0)}, 16, {v(r1)}")
        a(f"v_and_b32 {v(r1)}, 0xffff0000, {v(r1)}")
        for r in (r0, r1):
            a(f"v_mul_f32 {v(tmp)}, {v(r)}, {v(t2)}")
            a(f"v_fma_f32 {v(r)}, -{v(tmp)}, {v(t1)}, {v(r)}")
            a(f"v_fma_f32 {v(r)}, {v(r)}, {v(t2)}, {v(tmp)}")
    def ln1_to_lds():
        unpack8(F, vW)
        ln_stats(F)
        for j in range(4):
            ln_apply2(F+2*j, F+2*j+1, vT)
            a(f"v_cvt_pk_bf16_f32 {v(vW+j)}, {v(F+2*j)}, {v(F+2*j+1)}")
        a(f"s_lshl_b32 s{sT1}, s{sWV}, 10")
        a(f"v_add_u32 {v(vT)}, s{sT1}, {v(vVOFF)}")
        a(f"ds_write_b128 {v(vT)}, {vr(vW,4)} offset:{LDS_XN}")
    def koff():
        a(f"v_and_b32 {v(vT)}, 3, {v(vLANE)}")
        a(f"v_lshlrev_b32 {v(vT)}, 2, {v(vT)}")
        a(f"v_bfe_u32 {v(vT+1)}, {v(vLANE)}, 2, 2")
        a(f"v_add_u32 {v(vT)}, {v(vT)}, {v(vT+1)}")
        a(f"v_lshlrev_b32 {v(vT)}, 8, {v(vT)}")
        a(f"v_lshrrev_b32 {v(vT+1)}, 4, {v(vLANE)}")
        a(f"v_lshl_add_u32 {v(vKOFF)}, {v(vT+1)}, 4, {v(vT)}")
    def wo_addr():
        a(f"v_lshrrev_b32 {v(vT)}, 4, {v(vLANE)}")
        a(f"v_and_b32 {v(vT+1)}, 1, {v(vT)}")
        a(f"v_lshlrev_b32 {v(vT+1)}, 1, {v(vT+1)}")
        a(f"v_lshrrev_b32 {v(vT)}, 1, {v(vT)}")
        a(f"v_add_u32 {v(vT)}, {v(vT)}, {v(vT+1)}")
        a(f"v_lshlrev_b32 {v(vT)}, 10, {v(vT)}")
        a(f"v_and_b32 {v(vT+1)}, 15, {v(vLANE)}")
        a(f"v_lshl_add_u32 {v(vT)}, {v(vT+1)}, 4, {v(vT)}")
        a(f"s_lshl_b32 s{sT1}, s{sG}, 5")
        a(f"s_add_u32 s{sT1}, s{sT1}, s{sI}")
        a(f"s_lshl_b32 s{sT1}, s{sT1}, 14")
        a(f"s_lshl_b32 s{sT2}, s{sWV}, 8")
        a(f"s_add_u32 s{sT1}, s{sT1}, s{sT2}")
        a(f"v_add_u32 {v(vT+11)}, s{sT1}, {v(vT)}")
        a(f"v_add_u32 {v(vT+12)}, 0x1000, {v(vT+11)}")
        a(f"v_add_u32 {v(vT+13)}, 0x2000, {v(vT+11)}")
        a(f"v_add_u32 {v(vT+14)}, 0x3000, {v(vT+11)}")
    def issue_wo(track=True):
        for u, r in enumerate((vT+11, vT+12, vT+13, vT+14)):
            s = f"global_load_dwordx4 {vr(vWO+4*u,4)}, {v(r)}, {sp(sWO)} nt"
            vmem(s, "wo") if track else a(s)
    def issue_tile(slot, soff, tag=None, track=True):
        base = 32 * slot
        for t in range(4):
            s = f"buffer_load_dwordx4 {ar(base+4*t,4)}, {v(vKOFF)}, {sq(srdK)}, {soff} offen offset:{64*t} nt"
            vmem(s, ("K", tag)) if track else a(s)
        for u in range(4):
            s = f"buffer_load_dwordx4 {ar(base+16+4*u,4)}, {v(vVOFF)}, {sq(srdV)}, {soff} offen offset:{1024*u} nt"
            vmem(s, ("V", tag)) if track else a(s)
    def srd_setup():
        a(f"s_lshl_b32 s{sT1}, s{sG}, 24")
        a(f"s_lshl_b32 s{sT2}, s{sA}, 21")
        a(f"s_add_u32 s{sT1}, s{sT1}, s{sT2}")
        for srd, ptr in ((srdK, sK), (srdV, sV)):
            a(f"s_add_u32 s{srd}, s{ptr}, s{sT1}")
            a(f"s_addc_u32 s{srd+1}, s{ptr+1}, 0")
            a(f"s_and_b32 s{srd+1}, s{srd+1}, 0xffff")
            a(f"s_mov_b32 s{srd+2}, 0x{REG:x}")
            a(f"s_mov_b32 s{srd+3}, 0x20000")
    dyn0 = (96 + (NS - 8) * 16) * 4096
    uid = [0]
    def next_tile(ns, tag=None, track=False):
        if G.dyn:
            tk = vTK + (ns - A - 1) % 8
            a(f"v_readfirstlane_b32 s{sT1}, {v(tk)}")
            a(f"s_lshl_b32 s{sT1}, s{sT1}, 12")
            a(f"s_add_u32 s{sT1}, s{sT1}, {dyn0}")
            a(f"s_max_u32 s{sT1}, s{sT1}, s{sEXH}")
            a(f"s_cmp_lt_u32 s{sN}, {NS}")
            a(f"s_cselect_b32 s{sOFF+ns}, s{sSTAT}, s{sT1}")
            a(f"s_add_u32 s{sSTAT}, s{sSTAT}, {16*4096}")
            a(f"s_add_u32 s{sN}, s{sN}, 1")
            a(f"s_cmp_ge_u32 s{sOFF+ns}, 0x{REG:x}")
            a(f"s_cselect_b32 s{sEXH}, 0x{REG:x}, s{sEXH}")
            a(f"s_cmp_ge_u32 s{sN}, {NS - A}")
            a(f"s_cselect_b32 s{sT1}, s{sEXH}, 0x{REG:x}")
            a(f"v_mov_b32 {v(vTK+ns)}, 1")
        else:
            a(f"s_mov_b32 s{sOFF+ns}, s{sSTAT}")
            a(f"s_add_u32 s{sSTAT}, s{sSTAT}, {16*4096}")
        issue_tile(ns, f"s{sOFF+ns}", tag, track)
        if G.dyn:
            s = f"buffer_atomic_add {v(vTK+ns)}, {v(vAOFF)}, {sq(srdC)}, s{sT1} offen sc0 sc1"
            vmem(s, ("T", tag)) if track else a(s)

    a("s_cmp_ge_u32 s2, 256")
    a("s_cbranch_scc1 L_end")
    if G.stamps: a(f"s_memrealtime {sp(sTS0)}")
    a("s_load_dwordx16 s[16:31], s[0:1], 0")
    a("s_load_dwordx8 s[32:39], s[0:1], 64")
    a("s_load_dwordx2 s[40:41], s[0:1], 96")
    a(f"v_and_b32 {v(vLANE)}, 63, v0")
    a(f"v_lshrrev_b32 {v(vT)}, 6, v0")
    a(f"s_and_b32 s{sA}, s2, 7")
    a(f"v_readfirstlane_b32 s{sWV}, {v(vT)}")
    a(f"s_lshr_b32 s{sB}, s2, 3")
    a(f"v_lshlrev_b32 {v(vVOFF)}, 4, {v(vLANE)}")
    a(f"s_and_b32 s{sG}, s{sB}, 7")
    a(f"s_lshr_b32 s{sBH}, s{sB}, 3")
    a(f"s_lshl_b32 s{sT0}, s{sBH}, 3")
    a(f"s_add_u32 s{sI}, s{sT0}, s{sA}")
    a(f"s_lshl_b32 s{sC0}, s{sA}, 6")
    a(f"s_lshl_b32 s{sT0}, s{sB}, 1")
    a(f"s_add_u32 s{sC0}, s{sC0}, s{sT0}")
    a(f"s_cmp_lg_u32 s{sWV}, 0")
    a("s_cbranch_scc1 L_w123")

    a(f"v_lshrrev_b32 {v(vT)}, 1, {v(vLANE)}")
    a(f"v_lshlrev_b32 {v(vT)}, 15, {v(vT)}")
    a(f"v_and_b32 {v(vT+1)}, 1, {v(vLANE)}")
    a(f"v_lshl_add_u32 {v(vT)}, {v(vT+1)}, 4, {v(vT)}")
    a(f"s_lshl_b32 s{sT1}, s{sA}, 5")
    a(f"s_add_u32 s{sT0}, s{sT1}, s{sB}")
    a(f"s_lshl_b32 s{sT1}, s{sT0}, 5")
    a(f"v_add_u32 {v(vT+16)}, s{sT1}, {v(vT)}")
    for k in range(1, 4):
        a(f"v_add_u32 {v(vT+16+k)}, 0x{k*0x2000:x}, {v(vT+16)}")
    a(f"s_lshl_b32 s{sT1}, s{sT0}, 11")
    a(f"v_add_u32 {v(vT+2)}, s{sT1}, {v(vVOFF)}")
    a(f"v_add_u32 {v(vT+3)}, {WS_S2}, {v(vT+2)}")
    a(f"v_add_u32 {v(vT+2)}, {WS_P2}, {v(vT+2)}")
    for k in range(4): a(f"v_mov_b32 {v(vT+4+k)}, -1")
    a("s_waitcnt lgkmcnt(0)")
    a(f"s_load_dwordx2 {sp(sTAGL)}, {sp(sWS)}, {WS_EP}")
    vmem(f"global_load_dwordx4 {vr(vW,4)}, {v(vVOFF)}, {sp(sX)}", "x")
    wqf = " nt" if G.wq_nt else ""
    W0 = vW + 4
    for j in range(4):
        for k in range(4):
            vmem(f"global_load_dwordx4 {vr(W0+16*j+4*k,4)}, {v(vT+16+k)}, {sp(sWQ)}{wqf}", ("wq", j))
        if j < 3:
            for k in range(4):
                a(f"v_add_u32 {v(vT+16+k)}, 0x100000, {v(vT+16+k)}")
    vmem(f"global_store_dwordx4 {v(vT+2)}, {vr(vT+4,4)}, {sp(sWS)} sc1", "clr")
    vmem(f"global_store_dwordx4 {v(vT+2)}, {vr(vT+4,4)}, {sp(sWS)} offset:1024 sc1", "clr")
    vmem(f"global_store_dwordx4 {v(vT+3)}, {vr(vT+4,4)}, {sp(sWS)} sc1", "clr")
    vmem(f"global_store_dwordx4 {v(vT+3)}, {vr(vT+4,4)}, {sp(sWS)} offset:1024 sc1", "clr")
    a(f"s_lshl_b32 s{sT1}, s{sT0}, 5")
    a(f"s_add_u32 s{sT1}, s{sT1}, {WS_ML}")
    a(f"v_add_u32 {v(vT+8)}, s{sT1}, {v(vVOFF)}")
    a(f"s_lshl_b32 s{sT1}, s{sA}, 3")
    a(f"s_add_u32 s{sT1}, s{sT1}, s{sG}")
    a(f"s_mul_i32 s{sT1}, s{sT1}, {CNT_STRIDE}")
    a(f"s_add_u32 s{sT1}, s{sT1}, {WS_CNT}")
    a(f"v_mov_b32 {v(vT+9)}, s{sT1}")
    a(f"v_cmp_eq_u32 vcc, 2, {v(vLANE)}")
    nop(2)
    a(f"v_cndmask_b32 {v(vT+8)}, {v(vT+8)}, {v(vT+9)}, vcc")
    for k in range(4): a(f"v_cndmask_b32 {v(vT+24+k)}, -1, 0, vcc")
    a("s_mov_b64 exec, 7")
    vmem(f"global_store_dwordx4 {v(vT+8)}, {vr(vT+24,4)}, {sp(sWS)} sc1", "clr")
    a("s_mov_b64 exec, -1")
    a(f"v_lshrrev_b32 {v(vT+21)}, 4, {v(vLANE)}")
    a(f"v_lshlrev_b32 {v(vT+21)}, 4, {v(vT+21)}")
    a(f"v_and_b32 {v(vT+22)}, 1, {v(vLANE)}")
    a(f"v_lshl_add_u32 {v(vT+21)}, {v(vT+22)}, 6, {v(vT+21)}")
    a(f"s_lshl_b32 s{sT1}, s{sT0}, 7")
    a(f"v_add_u32 {v(vT+21)}, s{sT1}, {v(vT+21)}")
    a(f"s_lshl_b32 s{sT1}, s{sG}, 12")
    a(f"v_lshl_add_u32 {v(vT+22)}, {v(vLANE)}, 6, s{sT1}")
    srd_setup()
    koff()
    wo_addr()
    wait_vm("x")
    stamp(0)
    ln1_to_lds()
    a(f"v_lshrrev_b32 {v(vT+1)}, 1, {v(vLANE)}")
    a(f"v_lshlrev_b32 {v(vT+1)}, 3, {v(vT+1)}")
    XN = vX
    for j in range(4):
        a(f"ds_read_b64 {vr(XN+2*j,2)}, {v(vT+1)} offset:{LDS_XN + 256*j}")
    a(f"s_mov_b32 s{sT1}, 0x05040100")
    a(f"s_mov_b32 s{sT2}, 0x07060302")
    ACC = vQ; PT = vQ + 8
    first = True
    for j in range(4):
        wait_vm(("wq", j))
        if j == 0: stamp(1)
        for half in range(2):
            ra, rb = W0 + 16*j + 8*half, W0 + 16*j + 8*half + 4
            for d in range(4):
                a(f"v_perm_b32 {v(PT+2*d)}, {v(rb+d)}, {v(ra+d)}, s{sT1}")
                a(f"v_perm_b32 {v(PT+2*d+1)}, {v(rb+d)}, {v(ra+d)}, s{sT2}")
            if first:
                a("s_waitcnt lgkmcnt(0)")
                a(f"s_mul_i32 s{sTAGL}, s{sTAGL}, {LCG_A}")
                a(f"s_add_u32 s{sTAGL}, s{sTAGL}, {LCG_C}")
                a(f"s_mul_i32 s{sTAGH}, s{sTAGH}, {LCG_A}")
                a(f"s_add_u32 s{sTAGH}, s{sTAGH}, {LCG_C}")
            for cidx in range(8):
                cc = "0" if first else v(ACC+cidx)
                a(f"v_dot2_f32_bf16 {v(ACC+cidx)}, {v(PT+cidx)}, {v(XN+2*j+half)}, {cc}")
            first = False
    a(f"s_and_b32 s{sT0}, s{sTAGL}, 0xffff0000")
    nop(2)
    for cidx in range(4):
        a(f"v_permlane32_swap_b32 {v(ACC+cidx)}, {v(ACC+cidx+4)}")
    nop(1)
    for cidx in range(4):
        a(f"v_add_f32 {v(ACC+cidx)}, {v(ACC+cidx)}, {v(ACC+cidx+4)}")
    nop(1)
    for cidx in range(2):
        a(f"v_permlane16_swap_b32 {v(ACC+cidx)}, {v(ACC+cidx+2)}")
    nop(1)
    for cidx in range(2):
        a(f"v_add_f32 {v(ACC+cidx)}, {v(ACC+cidx)}, {v(ACC+cidx+2)}")
    for st in ("quad_perm:[2,3,0,1]", "row_ror:4", "row_ror:8"):
        nop(1)
        a(f"v_add_f32_dpp {v(ACC)}, {v(ACC)}, {v(ACC)} {st} row_mask:0xf bank_mask:0xf")
        a(f"v_add_f32_dpp {v(ACC+1)}, {v(ACC+1)}, {v(ACC+1)} {st} row_mask:0xf bank_mask:0xf")
    a(f"v_cvt_pk_bf16_f32 {v(ACC)}, {v(ACC)}, {v(ACC+1)}")
    a(f"v_mov_b32 {v(ACC+5)}, s{sTAGH}")
    a(f"v_mov_b32 {v(ACC+7)}, s{sTAGH}")
    a(f"v_lshrrev_b32 {v(ACC+6)}, 16, {v(ACC)}")
    a(f"v_and_b32 {v(ACC+4)}, 0xffff, {v(ACC)}")
    a(f"v_or_b32 {v(ACC+6)}, s{sT0}, {v(ACC+6)}")
    a(f"v_or_b32 {v(ACC+4)}, s{sT0}, {v(ACC+4)}")
    stamp(2)
    a("s_waitcnt vmcnt(0)")
    stamp(3)
    a("s_mov_b32 exec_lo, 0x00030003")
    a("s_mov_b32 exec_hi, 0x00030003")
    a(f"global_store_dwordx4 {v(vT+21)}, {vr(ACC+4,4)}, {sp(sWS)} offset:{WS_Q} sc1")
    a("s_mov_b64 exec, -1")
    a(f"s_mov_b32 s{sT3}, 0")
    QB = vW
    lab("L_pollQ")
    for k in range(4):
        a(f"global_load_dwordx4 {vr(QB+4*k,4)}, {v(vT+22)}, {sp(sWS)} offset:{WS_Q + 16*k} sc1")
    a("s_waitcnt vmcnt(0)")
    a(f"v_xor_b32 {v(vT)}, s{sT0}, {v(QB)}")
    a(f"v_xor_b32 {v(vT+1)}, s{sTAGH}, {v(QB+1)}")
    for k in range(1, 8):
        a(f"v_xor_b32 {v(vT+2)}, s{sT0}, {v(QB+2*k)}")
        a(f"v_xor_b32 {v(vT+3)}, s{sTAGH}, {v(QB+2*k+1)}")
        a(f"v_or_b32 {v(vT)}, {v(vT)}, {v(vT+2)}")
        a(f"v_or_b32 {v(vT+1)}, {v(vT+1)}, {v(vT+3)}")
    a(f"v_lshrrev_b32 {v(vT)}, 16, {v(vT)}")
    a(f"v_or_b32 {v(vT)}, {v(vT)}, {v(vT+1)}")
    a(f"v_cmp_ne_u32 vcc, 0, {v(vT)}")
    a("s_and_b64 exec, exec, vcc")
    a("s_cbranch_execz L_pollQ_done")
    poll_tail("L_pollQ")
    lab("L_pollQ_done")
    a("s_mov_b64 exec, -1")
    stamp(4)
    for k in range(4):
        a(f"v_perm_b32 {v(vQ+k)}, {v(QB+4*k+2)}, {v(QB+4*k)}, s{sT1}")
    a(f"ds_write_b128 {v(vVOFF)}, {vr(vQ,4)} offset:{LDS_Q}")
    a("s_waitcnt lgkmcnt(0)")
    a("s_barrier")
    stamp(5)
    G.vm = []
    a("s_branch L_setup")

    lab("L_w123")
    G.vm = []
    koff()
    a(f"s_mul_i32 s{sT3}, s{sBH}, 3")
    a(f"s_add_u32 s{sT3}, s{sT3}, s{sWV}")
    a(f"s_sub_u32 s{sT3}, s{sT3}, 1")
    a(f"s_lshl_b32 s{sT3}, s{sT3}, 12")
    a(f"v_subrev_u32 {v(vT+15)}, 64, v0")
    a(f"v_lshlrev_b32 {v(vT+16)}, 2, {v(vT+15)}")
    a(f"v_add_u32 {v(vT+16)}, 3072, {v(vT+16)}")
    a(f"v_lshlrev_b32 {v(vT+15)}, 4, {v(vT+15)}")
    wo_addr()
    a("s_waitcnt lgkmcnt(0)")
    srd_setup()
    vmem(f"global_load_dwordx4 {vr(vW,4)}, {v(vVOFF)}, {sp(sX)}", "x")
    a(f"s_mov_b32 s{sOFF}, s{sT3}")
    issue_tile(0, f"s{sOFF}", 0)
    for srd, ptr in ((srdW1, sW1), (srdB1, sB1), (srdW2, sW2)):
        a(f"s_mov_b32 s{srd}, s{ptr}")
        a(f"s_and_b32 s{srd+1}, s{ptr+1}, 0xffff")
        a(f"s_mov_b32 s{srd+2}, 3584")
        a(f"s_mov_b32 s{srd+3}, 0x20000")
    BW = vW + 4
    for k, srd in enumerate((srdW1, srdB1, srdW2)):
        vmem(f"buffer_load_dwordx4 {vr(BW+8*k,4)}, {v(vT+15)}, {sq(srd)}, 0 offen", "w1")
        vmem(f"buffer_load_dword {v(BW+8*k+4)}, {v(vT+16)}, {sq(srd)}, 0 offen", "w1")
    nxt = [1]
    def pace():
        n = nxt[0]
        if n >= PF: return
        if n >= AP: wait_vm(("V", n - AP))
        a(f"s_add_u32 s{sOFF+n}, s{sT3}, {n*12*4096}")
        issue_tile(n, f"s{sOFF+n}", n)
        nxt[0] += 1
    while nxt[0] < AP: pace()
    wait_vm("x")
    stamp(0)
    ln1_to_lds()
    a(f"s_lshl_b32 s{sT2}, s{sC0}, 1")
    a(f"s_add_u32 s{sT2}, s{sT2}, s{sT1}")
    a(f"v_mov_b32 {v(vT+1)}, s{sT2}")
    a(f"ds_read_b32 {v(vT+4)}, {v(vT+1)} offset:{LDS_XN}")
    unpack8(F, vW)
    pace()
    issue_wo()
    ln_stats(F)
    h0, h1 = vX, vX+1
    a("s_waitcnt lgkmcnt(0)")
    a(f"v_lshlrev_b32 {v(h0)}, 16, {v(vT+4)}")
    a(f"v_and_b32 {v(h1)}, 0xffff0000, {v(vT+4)}")
    ln_apply2(h0, h1, vT)
    rbf(h0); rbf(h1)
    stamp(1)
    wait_vm("w1")
    y0, y1 = vX+2, vX+3
    a(f"v_mov_b32 {v(y0)}, 0")
    a(f"v_mov_b32 {v(y1)}, 0")
    K1 = 2.0 * math.sqrt(2.0 / math.pi) * LOG2E
    a(f"s_mov_b32 s{sT1}, 0x{f2u(-K1*0.044715):08x}")
    a(f"v_mov_b32 {v(vT+5)}, 0x{f2u(-K1):08x}")
    wv1, bv1, wv2 = vX+4, vX+5, vX+6
    u0, u1, e0, e1 = vT, vT+1, vT+2, vT+3
    for j in range(10):
        d, hi = j // 2, j % 2
        for (dst, src) in ((wv1, BW+d), (bv1, BW+8+d), (wv2, BW+16+d)):
            if hi: a(f"v_and_b32 {v(dst)}, 0xffff0000, {v(src)}")
            else:  a(f"v_lshlrev_b32 {v(dst)}, 16, {v(src)}")
        a(f"v_mul_f32 {v(u0)}, {v(h0)}, {v(wv1)}")
        a(f"v_mul_f32 {v(u1)}, {v(h1)}, {v(wv1)}")
        a(f"v_cvt_pk_bf16_f32 {v(u1)}, {v(u0)}, {v(u1)}")
        a(f"v_lshlrev_b32 {v(u0)}, 16, {v(u1)}")
        a(f"v_and_b32 {v(u1)}, 0xffff0000, {v(u1)}")
        a(f"v_add_f32 {v(u0)}, {v(u0)}, {v(bv1)}")
        a(f"v_add_f32 {v(u1)}, {v(u1)}, {v(bv1)}")
        a(f"v_cvt_pk_bf16_f32 {v(u1)}, {v(u0)}, {v(u1)}")
        a(f"v_lshlrev_b32 {v(u0)}, 16, {v(u1)}")
        a(f"v_and_b32 {v(u1)}, 0xffff0000, {v(u1)}")
        a(f"v_mul_f32 {v(e0)}, {v(u0)}, {v(u0)}")
        a(f"v_mul_f32 {v(e1)}, {v(u1)}, {v(u1)}")
        a(f"v_fma_f32 {v(e0)}, {v(e0)}, s{sT1}, {v(vT+5)}")
        a(f"v_fma_f32 {v(e1)}, {v(e1)}, s{sT1}, {v(vT+5)}")
        a(f"v_mul_f32 {v(e0)}, {v(e0)}, {v(u0)}")
        a(f"v_mul_f32 {v(e1)}, {v(e1)}, {v(u1)}")
        a(f"v_exp_f32 {v(e0)}, {v(e0)}")
        a(f"v_exp_f32 {v(e1)}, {v(e1)}")
        nop(1)
        a(f"v_add_f32 {v(e0)}, 1.0, {v(e0)}")
        a(f"v_add_f32 {v(e1)}, 1.0, {v(e1)}")
        a(f"v_rcp_f32 {v(e0)}, {v(e0)}")
        a(f"v_rcp_f32 {v(e1)}, {v(e1)}")
        nop(1)
        a(f"v_mul_f32 {v(e0)}, {v(e0)}, {v(u0)}")
        a(f"v_mul_f32 {v(e1)}, {v(e1)}, {v(u1)}")
        a(f"v_cvt_pk_bf16_f32 {v(e1)}, {v(e0)}, {v(e1)}")
        a(f"v_lshlrev_b32 {v(e0)}, 16, {v(e1)}")
        a(f"v_and_b32 {v(e1)}, 0xffff0000, {v(e1)}")
        a(f"v_fmac_f32 {v(y0)}, {v(e0)}, {v(wv2)}")
        a(f"v_fmac_f32 {v(y1)}, {v(e1)}, {v(wv2)}")
        if j in G.pace_at: pace()
    allred64("v_add_f32", y0, vT)
    allred64("v_add_f32", y1, vT)
    a(f"s_lshl_b32 s{sT1}, s{sWV}, 3")
    a(f"v_mov_b32 {v(vT)}, s{sT1}")
    a(f"ds_write_b64 {v(vT)}, {vr(y0,2)} offset:{LDS_Y}")
    stamp(2)
    stamp(3)
    while nxt[0] < PF: pace()
    stamp(4)
    a("s_waitcnt lgkmcnt(0)")
    a("s_barrier")
    stamp(5)
    vm_w123 = list(G.vm)

    lab("L_setup")
    a(f"v_bfe_u32 {v(vT)}, {v(vLANE)}, 2, 2")
    a(f"v_lshlrev_b32 {v(vT)}, 8, {v(vT)}")
    a(f"v_lshrrev_b32 {v(vT+1)}, 4, {v(vLANE)}")
    a(f"v_lshl_add_u32 {v(vT)}, {v(vT+1)}, 4, {v(vT)}")
    for t in range(4):
        a(f"ds_read_b128 {vr(vQ+4*t,4)}, {v(vT)} offset:{LDS_Q + 64*t}")
    a(f"s_lshl_b32 s{sSTAT}, s{sBH}, 2")
    a(f"s_add_u32 s{sSTAT}, s{sSTAT}, s{sWV}")
    a(f"s_add_u32 s{sSTAT}, s{sSTAT}, 96")
    a(f"s_lshl_b32 s{sSTAT}, s{sSTAT}, 12")
    a(f"s_lshl_b32 s{sT2}, s{sG}, 3")
    a(f"s_add_u32 s{sT2}, s{sT2}, s{sA}")
    a(f"s_mul_i32 s{sT2}, s{sT2}, {CNT_STRIDE}")
    a(f"s_add_u32 s{sT2}, s{sT2}, {WS_CNT}")
    a(f"s_add_u32 s{srdC}, s{sWS}, s{sT2}")
    a(f"s_addc_u32 s{srdC+1}, s{sWS+1}, 0")
    a(f"s_and_b32 s{srdC+1}, s{srdC+1}, 0xffff")
    a(f"s_mov_b32 s{srdC+2}, 16")
    a(f"s_mov_b32 s{srdC+3}, 0x20000")
    a(f"v_lshlrev_b32 {v(vAOFF)}, 8, {v(vLANE)}")
    for k in range(8): a(f"v_mov_b32 {v(vTK+k)}, 0")
    a(f"s_mov_b32 s{sN}, 8")
    a(f"s_mov_b32 s{sEXH}, 0")
    a(f"s_mov_b32 s{sLOG2E}, 0x{f2u(LOG2E):08x}")
    a(f"s_mov_b32 s{sSCALE}, 0x{f2u(SCALE):08x}")
    a(f"s_cmp_lg_u32 s{sWV}, 0")
    a("s_cbranch_scc1 L_setup2")
    a(f"v_mov_b32 {v(vT+20)}, 0")
    issue_wo(track=False)
    a(f"global_load_ushort {v(vMASK)}, {v(vT+20)}, {sp(sB2)}")
    for n in range(A):
        next_tile(n)
    a(f"s_lshl_b32 s{sT1}, s{sC0}, 1")
    a(f"s_load_dword s{sXD}, {sp(sX)}, s{sT1}")
    lab("L_setup2")
    Z = 0x0c0c0c0c
    lo_to_lo, lo_to_hi = 0x0c0c0100, 0x01000c0c
    hi_to_lo, hi_to_hi = 0x0c0c0302, 0x03020c0c
    a(f"v_and_b32 {v(vT+1)}, 3, {v(vLANE)}")
    for k in range(4): a(f"v_mov_b32 {v(vSEL+k)}, 0x{Z:08x}")
    for jp, (sr, val_lo, val_hi) in enumerate(((0, lo_to_lo, hi_to_lo), (0, lo_to_hi, hi_to_hi), (1, lo_to_lo, hi_to_lo), (1, lo_to_hi, hi_to_hi))):
        a(f"v_cmp_eq_u32 vcc, {jp}, {v(vT+1)}")
        a(f"v_mov_b32 {v(vT+2)}, 0x{val_lo:08x}")
        a(f"v_mov_b32 {v(vT+3)}, 0x{val_hi:08x}")
        a(f"v_cndmask_b32 {v(vSEL+sr)}, {v(vSEL+sr)}, {v(vT+2)}, vcc")
        a(f"v_cndmask_b32 {v(vSEL+2+sr)}, {v(vSEL+2+sr)}, {v(vT+3)}, vcc")
    for k in range(8): a(f"v_mov_b32 {v(vO+k)}, 0")
    a(f"v_mov_b32 {v(vNM)}, 0")
    a(f"v_mov_b32 {v(vL)}, 0")
    a(f"s_mov_b32 s{sTHR}, 0xff800000")
    a(f"s_mov_b32 s{sFLOOR}, 0xff7fffff")
    a("s_waitcnt lgkmcnt(0)")
    if G.stamps:
        a(f"s_memrealtime {sp(sTS0+2)}")
        a("s_waitcnt lgkmcnt(0)")
    a(f"s_cmp_eq_u32 s{sWV}, 0")
    a("s_cbranch_scc1 L_loop")

    rare_id = [0]
    def compute_qk(slot):
        base = 32 * slot
        for t in range(4):
            cc = "0" if t == 0 else vr(vS, 4)
            a(f"v_mfma_f32_16x16x32_bf16 {vr(vS,4)}, {ar(base+4*t,4)}, {vr(vQ+4*t,4)}, {cc}")
    def softmax():
        rid = rare_id[0]; rare_id[0] += 1
        p01, p23 = vT, vT+1
        b = vT + 2
        a(f"v_cvt_pk_bf16_f32 {v(p01)}, {v(vS)}, {v(vS+1)}")
        a(f"v_cvt_pk_bf16_f32 {v(p23)}, {v(vS+2)}, {v(vS+3)}")
        a(f"v_lshlrev_b32 {v(b)}, 16, {v(p01)}")
        a(f"v_and_b32 {v(b+1)}, 0xffff0000, {v(p01)}")
        a(f"v_lshlrev_b32 {v(b+2)}, 16, {v(p23)}")
        a(f"v_and_b32 {v(b+3)}, 0xffff0000, {v(p23)}")
        for k in range(4): a(f"v_mul_f32 {v(b+k)}, s{sSCALE}, {v(b+k)}")
        a(f"v_cvt_pk_bf16_f32 {v(p01)}, {v(b)}, {v(b+1)}")
        a(f"v_cvt_pk_bf16_f32 {v(p23)}, {v(b+2)}, {v(b+3)}")
        a(f"v_lshlrev_b32 {v(b)}, 16, {v(p01)}")
        a(f"v_and_b32 {v(b+1)}, 0xffff0000, {v(p01)}")
        a(f"v_lshlrev_b32 {v(b+2)}, 16, {v(p23)}")
        a(f"v_and_b32 {v(b+3)}, 0xffff0000, {v(p23)}")
        for k in range(4): a(f"v_fma_f32 {v(b+k)}, {v(b+k)}, s{sLOG2E}, {v(vNM)}")
        mx = vT + 6
        a(f"v_max3_f32 {v(mx)}, {v(b)}, {v(b+1)}, {v(b+2)}")
        a(f"v_max_f32 {v(mx)}, {v(mx)}, {v(b+3)}")
        a(f"v_cmp_lt_f32 vcc, s{sTHR}, {v(mx)}")
        a(f"s_cbranch_vccz L_back{rid}")
        a(f"s_call_b64 {sp(sPC)}, L_rare")
        lab(f"L_back{rid}")
        for k in range(4): a(f"v_exp_f32 {v(b+k)}, {v(b+k)}")
        nop(1)
        a(f"v_cvt_pk_bf16_f32 {v(p01)}, {v(b)}, {v(b+1)}")
        a(f"v_cvt_pk_bf16_f32 {v(p23)}, {v(b+2)}, {v(b+3)}")
        a(f"v_add_f32 {v(b)}, {v(b)}, {v(b+1)}")
        a(f"v_add_f32 {v(b+2)}, {v(b+2)}, {v(b+3)}")
        for k in range(4): a(f"v_perm_b32 {v(vX+k)}, {v(p01)}, {v(p01)}, {v(vSEL+k)}")
        for k in range(4): a(f"v_perm_b32 {v(vX+4+k)}, {v(p23)}, {v(p23)}, {v(vSEL+k)}")
        a(f"v_add_f32 {v(b)}, {v(b)}, {v(b+2)}")
        a(f"v_add_f32 {v(vL)}, {v(vL)}, {v(b)}")
    def compute_pv(slot):
        base = 32 * slot + 16
        for u in range(4):
            a(f"v_mfma_f32_16x16x16_bf16 {vr(vO,4)}, {vr(vX+2*u,2)}, {ar(base+4*u,2)}, {vr(vO,4)}")
            a(f"v_mfma_f32_16x16x16_bf16 {vr(vO+4,4)}, {vr(vX+2*u,2)}, {ar(base+4*u+2,2)}, {vr(vO+4,4)}")

    G.vm = list(vm_w123)
    for n in range(8):
        c(f"catch-up step {n}")
        wait_vm(("K", n))
        compute_qk(n)
        nop(8)
        softmax()
        wait_vm(("V", n))
        compute_pv(n)
        if n < A:
            next_tile(n, 8 + n, track=True)
    lab("L_loop")
    for s in range(8):
        c(f"steady step slot {s}")
        ns = (s + A) % 8
        a(f"s_cmp_ge_u32 s{sOFF+s}, 0x{REG:x}")
        a("s_cbranch_scc1 L_done")
        a(f"s_waitcnt vmcnt({OPT*A-4})")
        compute_qk(s)
        next_tile(ns)
        softmax()
        a(f"s_waitcnt vmcnt({OPT*A + (OPT-8)})")
        compute_pv(s)
    a("s_branch L_loop")

    lab("L_rare")
    b = vT + 2; mx = vT + 6; t = vT + 7; f = vT + 8
    allred_rows("v_max_f32", mx, t)
    a(f"v_max_f32 {v(mx)}, s{sFLOOR}, {v(mx)}")
    for k in range(4): a(f"v_sub_f32 {v(b+k)}, {v(b+k)}, {v(mx)}")
    a(f"v_sub_f32 {v(vNM)}, {v(vNM)}, {v(mx)}")
    a(f"v_max_f32 {v(t)}, 0, {v(mx)}")
    a(f"v_exp_f32 {v(t)}, -{v(t)}")
    nop(1)
    a(f"v_mul_f32 {v(vL)}, {v(vL)}, {v(t)}")
    nop(1)
    for h in range(4):
        a(f"v_mov_b32_dpp {v(f)}, {v(t)} row_newbcast:{4*h} row_mask:0x{1<<h:x} bank_mask:0xf")
    for k in range(8): a(f"v_mul_f32 {v(vO+k)}, {v(vO+k)}, {v(f)}")
    a(f"s_mov_b32 s{sTHR}, 0x{f2u(G.T):08x}")
    a(f"s_mov_b32 s{sFLOOR}, 0")
    a(f"s_setpc_b64 {sp(sPC)}")

    lab("L_done")
    if G.stamps: a(f"s_memrealtime s[100:101]")
    PA = vW
    a(f"v_lshlrev_b32 {v(PA+8)}, 7, {v(vLANE)}")
    a(f"v_add_u32 {v(PA+9)}, 0x2000, {v(PA+8)}")
    a(f"v_add_u32 {v(PA+10)}, 0x4000, {v(PA+8)}")
    a(f"v_add_u32 {v(PA+11)}, 0x6000, {v(PA+8)}")
    a(f"s_cmp_lg_u32 s{sWV}, 0")
    a("s_cbranch_scc1 L_noPA")
    for k in range(4):
        a(f"global_load_dwordx2 {vr(PA+2*k,2)}, {v(PA+8+k)}, {sp(sWS)} offset:{WS_Q} sc1")
    lab("L_noPA")
    allred_rows("v_add_f32", vL, vT)
    nop(4)
    a(f"s_lshl_b32 s{sT1}, s{sWV}, 11")
    a(f"v_lshl_add_u32 {v(vT)}, {v(vLANE)}, 5, s{sT1}")
    a(f"ds_write_b128 {v(vT)}, {vr(vO,4)} offset:{LDS_O}")
    a(f"ds_write_b128 {v(vT)}, {vr(vO+4,4)} offset:{LDS_O+16}")
    a(f"v_bfe_u32 {v(vT+1)}, {v(vLANE)}, 2, 2")
    a(f"s_lshl_b32 s{sT1}, s{sWV}, 3")
    a(f"v_lshl_add_u32 {v(vT+1)}, {v(vT+1)}, 5, s{sT1}")
    a(f"ds_write_b64 {v(vT+1)}, {vr(vNM,2)} offset:{LDS_ML}")
    a(f"s_lshl_b32 s{sT0}, s{sG}, 2")
    a(f"s_add_u32 s{sT0}, s{sT0}, s{sWV}")
    a(f"s_lshl_b32 s{sT1}, s{sT0}, 14")
    a(f"s_lshl_b32 s{sT2}, s{sI}, 6")
    a(f"s_add_u32 s{sT1}, s{sT1}, s{sT2}")
    a(f"s_add_u32 s{sT1}, s{sT1}, {WS_P2}")
    a(f"v_bfe_u32 {v(vT)}, {v(vLANE)}, 2, 3")
    a(f"v_lshlrev_b32 {v(vT)}, 11, {v(vT)}")
    a(f"v_and_b32 {v(vT+1)}, 3, {v(vLANE)}")
    a(f"v_lshl_add_u32 {v(vT)}, {v(vT+1)}, 4, {v(vT)}")
    a(f"v_add_u32 {v(vPA)}, s{sT1}, {v(vT)}")
    a(f"s_lshl_b32 s{sT1}, s{sT0}, 5")
    a(f"s_add_u32 s{sT1}, s{sT1}, s{sI}")
    a(f"s_lshl_b32 s{sT1}, s{sT1}, 3")
    a(f"s_add_u32 s{sT1}, s{sT1}, {WS_ML}")
    a(f"v_mov_b32 {v(vPA+2)}, s{sT1}")
    a(f"s_lshl_b32 s{sT2}, s{sG}, 5")
    a(f"s_add_u32 s{sT2}, s{sT2}, s{sI}")
    a(f"s_lshl_b32 s{sT2}, s{sT2}, 11")
    a(f"s_lshl_b32 s{sT1}, s{sWV}, 9")
    a(f"s_add_u32 s{sT1}, s{sT1}, s{sT2}")
    a(f"s_add_u32 s{sT1}, s{sT1}, {WS_S2}")
    a(f"v_and_b32 {v(vT)}, 15, {v(vLANE)}")
    a(f"v_lshlrev_b32 {v(vT)}, 5, {v(vT)}")
    a(f"v_bfe_u32 {v(vT+1)}, {v(vLANE)}, 4, 1")
    a(f"v_lshl_add_u32 {v(vT)}, {v(vT+1)}, 4, {v(vT)}")
    a(f"v_add_u32 {v(vPA+1)}, s{sT1}, {v(vT)}")
    a(f"s_add_u32 s{sT2}, s{sT2}, {WS_P2}")
    a(f"v_add_u32 {v(vX+1)}, s{sT2}, {v(vVOFF)}")
    a(f"s_lshr_b32 s{sT1}, s{sI}, 3")
    a(f"s_lshl_b32 s{sT2}, s{sG}, 2")
    a(f"s_add_u32 s{sT1}, s{sT1}, s{sT2}")
    a(f"s_lshl_b32 s{sT2}, s{sT1}, 8")
    a(f"s_add_u32 s{sT2}, s{sT2}, {WS_ML}")
    a(f"v_lshrrev_b32 {v(vX)}, 2, {v(vLANE)}")
    a(f"v_lshl_add_u32 {v(vX)}, {v(vX)}, 3, s{sT2}")
    a(f"v_readfirstlane_b32 s{sB2V}, {v(vMASK)}")
    a(f"v_and_b32 {v(vT)}, 15, {v(vLANE)}")
    a(f"v_and_b32 {v(vT+1)}, 1, {v(vLANE)}")
    a(f"v_cmp_eq_u32 vcc, 1, {v(vT+1)}")
    a(f"v_mov_b32 {v(vT+2)}, 0xffff")
    a(f"v_mov_b32 {v(vT+3)}, 0xffff0000")
    a(f"v_cndmask_b32 {v(vT+2)}, {v(vT+2)}, {v(vT+3)}, vcc")
    a(f"v_lshrrev_b32 {v(vT)}, 1, {v(vT)}")
    for r in range(4):
        a(f"v_cmp_eq_u32 vcc, {r}, {v(vT)}")
        nop(2)
        a(f"v_cndmask_b32 {v(vMASK+r)}, 0, {v(vT+2)}, vcc")
    a(f"s_lshl_b32 s{sT1}, s{sWV}, 5")
    a(f"v_mov_b32 {v(vT)}, s{sT1}")
    a(f"v_and_b32 {v(vT+1)}, 31, {v(vLANE)}")
    a(f"s_lshl_b32 s{sT1}, s{sWV}, 9")
    a(f"v_lshl_add_u32 {v(vT+1)}, {v(vT+1)}, 4, s{sT1}")
    a("s_waitcnt lgkmcnt(0)")
    a("s_barrier")
    a(f"ds_read_b128 {vr(vQ,4)}, {v(vT)} offset:{LDS_ML}")
    a(f"ds_read_b128 {vr(vQ+4,4)}, {v(vT)} offset:{LDS_ML+16}")
    OO = vT + 4
    for w in range(4):
        a(f"ds_read_b128 {vr(OO+4*w,4)}, {v(vT+1)} offset:{LDS_O + 2048*w}")
    a("s_waitcnt lgkmcnt(4)")
    nmM = vQ + 8
    a(f"v_min_f32 {v(nmM)}, {v(vQ)}, {v(vQ+2)}")
    a(f"v_min3_f32 {v(nmM)}, {v(nmM)}, {v(vQ+4)}, {v(vQ+6)}")
    for k in range(4): a(f"v_sub_f32 {v(vQ+2*k)}, {v(nmM)}, {v(vQ+2*k)}")
    for k in range(4): a(f"v_exp_f32 {v(vQ+2*k)}, {v(vQ+2*k)}")
    nop(1)
    a(f"v_mul_f32 {v(nmM+1)}, {v(vQ)}, {v(vQ+1)}")
    for k in range(1, 4): a(f"v_fmac_f32 {v(nmM+1)}, {v(vQ+2*k)}, {v(vQ+2*k+1)}")
    a("s_waitcnt lgkmcnt(0)")
    RES = vQ + 12
    for e in range(4): a(f"v_mul_f32 {v(RES+e)}, {v(vQ)}, {v(OO+e)}")
    for k in range(1, 4):
        for e in range(4): a(f"v_fmac_f32 {v(RES+e)}, {v(vQ+2*k)}, {v(OO+4*k+e)}")
    for r in (RES, RES+1, RES+2, RES+3, nmM, nmM+1):
        a(f"v_min_u32 {v(r)}, -2, {v(r)}")
    a("s_mov_b64 exec, 0xffffffff")
    a(f"global_store_dwordx4 {v(vPA)}, {vr(RES,4)}, {sp(sWS)} sc1")
    a("s_mov_b64 exec, 1")
    a(f"global_store_dwordx2 {v(vPA+2)}, {vr(nmM,2)}, {sp(sWS)} sc1")
    a("s_mov_b64 exec, -1")
    PB = vT + 4
    a(f"s_mov_b32 s{sT3}, 0")
    lab("L_pollB")
    a(f"global_load_dwordx4 {vr(PB,4)}, {v(vX+1)}, {sp(sWS)} sc1")
    a(f"global_load_dwordx4 {vr(PB+4,4)}, {v(vX+1)}, {sp(sWS)} offset:1024 sc1")
    a(f"global_load_dwordx2 {vr(PB+8,2)}, {v(vX)}, {sp(sWS)} sc1")
    a(f"global_load_dwordx2 {vr(PB+10,2)}, {v(vX)}, {sp(sWS)} offset:128 sc1")
    a("s_waitcnt vmcnt(0)")
    a(f"v_max_u32 {v(vT)}, {v(PB)}, {v(PB+1)}")
    for k in range(2, 12, 2):
        a(f"v_max3_u32 {v(vT)}, {v(vT)}, {v(PB+k)}, {v(PB+k+1)}")
    a(f"v_cmp_eq_u32 vcc, -1, {v(vT)}")
    a("s_and_b64 exec, exec, vcc")
    a("s_cbranch_execz L_pollB_done")
    poll_tail("L_pollB")
    lab("L_pollB_done")
    a("s_mov_b64 exec, -1")
    nma, la, nmb, lb = PB+8, PB+9, PB+10, PB+11
    M = vT
    a(f"v_min_f32 {v(M)}, {v(nma)}, {v(nmb)}")
    allred16("v_min_f32", M, steps=("row_ror:4", "row_ror:8"))
    allred_rows("v_min_f32", M, vT+1)
    a(f"v_sub_f32 {v(nma)}, {v(M)}, {v(nma)}")
    a(f"v_sub_f32 {v(nmb)}, {v(M)}, {v(nmb)}")
    a(f"v_exp_f32 {v(nma)}, {v(nma)}")
    a(f"v_exp_f32 {v(nmb)}, {v(nmb)}")
    nop(1)
    a(f"v_mul_f32 {v(la)}, {v(la)}, {v(nma)}")
    a(f"v_fmac_f32 {v(la)}, {v(lb)}, {v(nmb)}")
    for e in range(4): a(f"v_mul_f32 {v(PB+e)}, {v(PB+e)}, {v(nma)}")
    for e in range(4): a(f"v_fmac_f32 {v(PB+e)}, {v(PB+4+e)}, {v(nmb)}")
    nop(1)
    a(f"v_permlane32_swap_b32 {v(PB)}, {v(PB+1)}")
    a(f"v_permlane32_swap_b32 {v(PB+2)}, {v(PB+3)}")
    nop(1)
    a(f"v_add_f32 {v(PB)}, {v(PB)}, {v(PB+1)}")
    a(f"v_add_f32 {v(PB+2)}, {v(PB+2)}, {v(PB+3)}")
    nop(2)
    a(f"v_permlane16_swap_b32 {v(PB)}, {v(PB+2)}")
    nop(1)
    a(f"v_add_f32 {v(PB)}, {v(PB)}, {v(PB+2)}")
    allred16("v_add_f32", PB, steps=("row_ror:4", "row_ror:8"))
    allred16("v_add_f32", la, steps=("row_ror:4", "row_ror:8"))
    allred_rows("v_add_f32", la, vT+1)
    a(f"v_rcp_f32 {v(vT)}, {v(la)}")
    nop(1)
    a(f"v_fma_f32 {v(vT+1)}, -{v(la)}, {v(vT)}, 1.0")
    a(f"v_fma_f32 {v(vT)}, {v(vT+1)}, {v(vT)}, {v(vT)}")
    a(f"v_mul_f32 {v(PB)}, {v(PB)}, {v(vT)}")
    a(f"v_cvt_pk_bf16_f32 {v(PB)}, {v(PB)}, {v(PB)}")
    nop(2)
    AO = vQ
    for u in range(4):
        for r in range(4):
            a(f"v_and_b32_dpp {v(AO+4*u+r)}, {v(PB)}, {v(vMASK+r)} row_newbcast:{u} row_mask:0xf bank_mask:0xf")
    nop(2)
    for u in range(4):
        cc = "0" if u == 0 else vr(vS, 4)
        a(f"v_mfma_f32_16x16x32_bf16 {vr(vS,4)}, {vr(AO+4*u,4)}, {vr(vWO+4*u,4)}, {cc}")
    nop(8)
    for r in range(4): a(f"v_min_u32 {v(vS+r)}, -2, {v(vS+r)}")
    a("s_mov_b64 exec, 0xffffffff")
    a(f"global_store_dwordx4 {v(vPA+1)}, {vr(vS,4)}, {sp(sWS)} sc1")
    a("s_mov_b64 exec, -1")
    a(f"s_cmp_lg_u32 s{sWV}, 0")
    a("s_cbranch_scc1 L_fin")
    a(f"s_and_b32 s{sT0}, s{sTAGL}, 0xffff0000")
    PC = vT + 4
    a(f"s_lshl_b32 s{sT1}, s{sC0}, 2")
    a(f"s_add_u32 s{sT1}, s{sT1}, {WS_S2}")
    a(f"v_lshl_add_u32 {v(vX)}, {v(vLANE)}, 11, s{sT1}")
    a(f"v_add_u32 {v(vX+1)}, 0x20000, {v(vX)}")
    a(f"v_add_u32 {v(vX+2)}, 0x40000, {v(vX)}")
    a(f"v_add_u32 {v(vX+3)}, 0x60000, {v(vX)}")
    a(f"s_mov_b32 s{sT3}, 0")
    lab("L_pollA")
    a(f"v_xor_b32 {v(vT)}, s{sT0}, {v(PA)}")
    a(f"v_xor_b32 {v(vT+1)}, s{sTAGH}, {v(PA+1)}")
    for k in range(1, 4):
        a(f"v_xor_b32 {v(vT+2)}, s{sT0}, {v(PA+2*k)}")
        a(f"v_xor_b32 {v(vT+3)}, s{sTAGH}, {v(PA+2*k+1)}")
        a(f"v_or_b32 {v(vT)}, {v(vT)}, {v(vT+2)}")
        a(f"v_or_b32 {v(vT+1)}, {v(vT+1)}, {v(vT+3)}")
    a(f"v_lshrrev_b32 {v(vT)}, 16, {v(vT)}")
    a(f"v_or_b32 {v(vT)}, {v(vT)}, {v(vT+1)}")
    a(f"v_cmp_ne_u32 vcc, 0, {v(vT)}")
    a("s_cbranch_vccz L_pollA_done")
    for k in range(4):
        a(f"global_load_dwordx2 {vr(PA+2*k,2)}, {v(PA+8+k)}, {sp(sWS)} offset:{WS_Q} sc1")
    a("s_waitcnt vmcnt(0)")
    poll_tail("L_pollA")
    lab("L_pollA_done")
    for k in range(4):
        a(f"global_load_dwordx2 {vr(PC+2*k,2)}, {v(vX+k)}, {sp(sWS)} sc1")
    a(f"v_mov_b32 {v(vT)}, 0")
    a(f"ds_read_b64 {vr(vQ,2)}, {v(vT)} offset:{LDS_Y+8}")
    a(f"ds_read_b128 {vr(vQ+4,4)}, {v(vT)} offset:{LDS_Y+16}")
    a(f"s_lshl_b32 s{sB2V}, s{sB2V}, 16")
    a("s_waitcnt lgkmcnt(0)")
    g0, g1 = vO, vO+1
    a(f"v_add_f32 {v(g0)}, {v(vQ)}, {v(vQ+4)}")
    a(f"v_add_f32 {v(g1)}, {v(vQ+1)}, {v(vQ+5)}")
    a(f"v_add_f32 {v(g0)}, {v(g0)}, {v(vQ+6)}")
    a(f"v_add_f32 {v(g1)}, {v(g1)}, {v(vQ+7)}")
    rbf(g0); rbf(g1)
    a(f"v_add_f32 {v(g0)}, s{sB2V}, {v(g0)}")
    a(f"v_add_f32 {v(g1)}, s{sB2V}, {v(g1)}")
    rbf(g0); rbf(g1)
    for g in (g0, g1):
        e, r = vO+2, vO+3
        a(f"v_mul_f32 {v(e)}, s{sLOG2E}, {v(g)}")
        a(f"v_exp_f32 {v(e)}, -{v(e)}")
        nop(1)
        a(f"v_add_f32 {v(e)}, 1.0, {v(e)}")
        a(f"v_rcp_f32 {v(r)}, {v(e)}")
        nop(1)
        a(f"v_mul_f32 {v(g)}, {v(g)}, {v(r)}")
        rbf(g)
    a(f"s_mov_b32 s{sT3}, 0")
    a("s_branch L_pollC_chk")
    lab("L_pollC")
    for k in range(4):
        a(f"global_load_dwordx2 {vr(PC+2*k,2)}, {v(vX+k)}, {sp(sWS)} sc1")
    lab("L_pollC_chk")
    a("s_waitcnt vmcnt(0)")
    a(f"v_max_u32 {v(vT)}, {v(PC)}, {v(PC+1)}")
    for k in range(2, 8, 2):
        a(f"v_max3_u32 {v(vT)}, {v(vT)}, {v(PC+k)}, {v(PC+k+1)}")
    a(f"v_cmp_eq_u32 vcc, -1, {v(vT)}")
    a("s_and_b64 exec, exec, vcc")
    a("s_cbranch_execz L_pollC_done")
    poll_tail("L_pollC")
    lab("L_pollC_done")
    a("s_mov_b64 exec, -1")
    a(f"v_add_f32 {v(PC)}, {v(PC)}, {v(PC+2)}")
    a(f"v_add_f32 {v(PC+1)}, {v(PC+1)}, {v(PC+3)}")
    a(f"v_add_f32 {v(PC+4)}, {v(PC+4)}, {v(PC+6)}")
    a(f"v_add_f32 {v(PC+5)}, {v(PC+5)}, {v(PC+7)}")
    a(f"v_add_f32 {v(PC)}, {v(PC)}, {v(PC+4)}")
    a(f"v_add_f32 {v(PC+1)}, {v(PC+1)}, {v(PC+5)}")
    nop(2)
    a(f"v_permlane32_swap_b32 {v(PC)}, {v(PC+1)}")
    nop(1)
    a(f"v_add_f32 {v(PC)}, {v(PC)}, {v(PC+1)}")
    allred16("v_add_f32", PC)
    a(f"v_mov_b32 {v(vT)}, {v(PC)}")
    nop(2)
    a(f"v_permlane16_swap_b32 {v(PC)}, {v(vT)}")
    nop(1)
    a(f"v_add_f32 {v(PC)}, {v(PC)}, {v(vT)}")
    a(f"v_mov_b32 {v(PC+1)}, {v(PC)}")
    nop(2)
    a(f"v_permlane32_swap_b32 {v(PC)}, {v(PC+1)}")
    nop(1)
    a(f"v_cvt_pk_bf16_f32 {v(PC+1)}, {v(PC)}, {v(PC+1)}")
    a(f"v_lshlrev_b32 {v(PC)}, 16, {v(PC+1)}")
    a(f"v_and_b32 {v(PC+1)}, 0xffff0000, {v(PC+1)}")
    a(f"v_mul_f32 {v(PC)}, {v(PC)}, {v(g0)}")
    a(f"v_mul_f32 {v(PC+1)}, {v(PC+1)}, {v(g1)}")
    a(f"v_cvt_pk_bf16_f32 {v(PC+1)}, {v(PC)}, {v(PC+1)}")
    a(f"v_lshlrev_b32 {v(PC)}, 16, {v(PC+1)}")
    a(f"v_and_b32 {v(PC+1)}, 0xffff0000, {v(PC+1)}")
    a(f"s_lshl_b32 s{sT1}, s{sXD}, 16")
    a(f"s_and_b32 s{sT2}, s{sXD}, 0xffff0000")
    a(f"v_add_f32 {v(PC)}, s{sT1}, {v(PC)}")
    a(f"v_add_f32 {v(PC+1)}, s{sT2}, {v(PC+1)}")
    a(f"v_cvt_pk_bf16_f32 {v(PC)}, {v(PC)}, {v(PC+1)}")
    a(f"s_lshl_b32 s{sT1}, s{sC0}, 1")
    a(f"v_mov_b32 {v(vT)}, s{sT1}")
    a("s_mov_b64 exec, 1")
    a(f"global_store_dword {v(vT)}, {v(PC)}, {sp(sOUT)}")
    a("s_cmp_lg_u32 s2, 0")
    a("s_cbranch_scc1 L_noep")
    a(f"v_mov_b32 {v(vT)}, {WS_EP}")
    a(f"v_mov_b32 {v(vT+2)}, s{sTAGL}")
    a(f"v_mov_b32 {v(vT+3)}, s{sTAGH}")
    a(f"global_store_dwordx2 {v(vT)}, {vr(vT+2,2)}, {sp(sWS)} sc1")
    lab("L_noep")
    a("s_mov_b64 exec, -1")
    lab("L_fin")
    if G.stamps:
        a(f"s_memrealtime s[82:83]")
        a("s_waitcnt lgkmcnt(0)")
        a(f"s_lshl_b32 s{sT2}, s2, 2")
        a(f"s_add_u32 s{sT2}, s{sT2}, s{sWV}")
        a(f"s_lshl_b32 s{sT2}, s{sT2}, 6")
        a(f"s_add_u32 s{sT2}, s{sT2}, {WS_TS}")
        a(f"v_mov_b32 v2, s{sT2}")
        a(f"v_mov_b32 v4, s{sTS0}")
        a(f"v_mov_b32 v5, s{sTS0+2}")
        a(f"v_mov_b32 v6, s100")
        a(f"v_mov_b32 v7, s82")
        a(f"v_mov_b32 v8, s{sN}")
        a(f"s_getreg_b32 s{sT2}, hwreg(HW_REG_XCC_ID)")
        a(f"v_mov_b32 v9, s{sT2}")
        a("s_mov_b64 exec, 1")
        a(f"global_store_dwordx4 v2, v[4:7], {sp(sWS)}")
        a(f"global_store_dwordx2 v2, v[8:9], {sp(sWS)} offset:16")
        for k in range(6): a(f"v_mov_b32 v{10+k}, s{4+2*k}")
        a(f"global_store_dwordx4 v2, v[10:13], {sp(sWS)} offset:32")
        a(f"global_store_dwordx2 v2, v[14:15], {sp(sWS)} offset:48")
    lab("L_end")
    a("s_endpgm")
    tail = ['.section .rodata,"a"', ".p2align 6", f".amdhsa_kernel {KN}",
            f"  .amdhsa_next_free_vgpr {NV+256}", "  .amdhsa_next_free_sgpr 102", f"  .amdhsa_accum_offset {NV}",
            "  .amdhsa_group_segment_fixed_size 0", "  .amdhsa_kernarg_size 104", "  .amdhsa_user_sgpr_count 2",
            "  .amdhsa_user_sgpr_kernarg_segment_ptr 1", "  .amdhsa_system_sgpr_workgroup_id_x 1",
            "  .amdhsa_float_denorm_mode_32 3",
            ".end_amdhsa_kernel"]
    return "\n".join(hdr + G.L + tail) + "\n"

if __name__ == "__main__":
    import argparse, json
    ap = argparse.ArgumentParser()
    ap.add_argument("-o", default="k.s")
    ap.add_argument("kv", nargs="*")
    args = ap.parse_args()
    kw = {}
    for x in args.kv:
        k, val = x.split("=")
        kw[k] = json.loads(val)
    open(args.o, "w").write(build(**kw))
```

```python
import sys, struct, math

KN = "recurrent_scan__gqa_block_cached__mixer_token_mlp__decode_kernel"

def f2u(x):
    return struct.unpack("<I", struct.pack("<f", x))[0]

class Gen:
    def __init__(self, **kw):
        self.L = []
        self.vm = []
        self.__dict__.update(kw)
    def a(self, s): self.L.append("  " + s)
    def lab(self, s): self.L.append(s + ":")
    def c(self, s): self.L.append("  ; " + s)
    def vmem(self, s, tag=None):
        self.a(s); self.vm.append(tag)
    def wait_vm(self, tag):
        if tag not in self.vm: return
        idx = max(i for i, t in enumerate(self.vm) if t == tag)
        n = len(self.vm) - 1 - idx
        n = min(n, 63)
        self.a(f"s_waitcnt vmcnt({n})")
        self.vm = self.vm[len(self.vm)-n:] if n else []
    def nop(self, n):
        if n > 0: self.a(f"s_nop {n-1}")

WS_Q   = 0x0
WS_EP  = 0x8000
WS_CNT = 0x10000
CNT_STRIDE = 1280
CNT_BIAS = 0x10000
WS_P2  = 0x100000
WS_S2  = 0x200000
WS_TS  = 0x1000000
LDS_XN   = 0
LDS_Q    = 1024
LDS_ML   = 2048
LDS_O    = 2304
LDS_QP   = 2304
LDS_TOTAL = 2304 + 8192
LOG2E = 1.4426950408889634
SCALE = 128 ** -0.5
LCG_A, LCG_C = 1664525, 1013904223
REG = 0x200000
LIM = 0x1000000

DEFAULTS = dict(A=2, R=12, NS=37, T=20.0, dyn=True, stamps=False, sleep_poll=0, poll_max=200000,
                cu_issue=(0, 1, 6, 10), first_sleep=0, fillk=True, head_bar=False, noclr=False, nopa=False, first_sleep2=0, sstamps=None, nocomp=0, tstamps=False, lightpoll=True, lp_sleep=12)

def build(**kw):
    p = dict(DEFAULTS); p.update(kw)
    G = Gen(**p)
    a, lab, c, vmem, wait_vm, nop = G.a, G.lab, G.c, G.vmem, G.wait_vm, G.nop
    A, R, NS = G.A, G.R, G.NS
    E = len(G.cu_issue)
    assert A <= E <= 4 and R <= 12
    POLL_MAX = G.poll_max
    hdr = [f"; @launch grid=(256,1,1) block=(256,1,1) lds={LDS_TOTAL}",
           '.amdgcn_target "amdgcn-amd-amdhsa--gfx950"', ".text", f".globl {KN}", ".p2align 8",
           f".type {KN},@function", f"{KN}:"]
    sX, sK, sV, sWQ, sWO, sBX, sW1, sB1 = 16, 18, 20, 22, 24, 26, 28, 30
    sW2, sB2, sOUT, sDBG, sWS = 32, 34, 36, 38, 40
    sTAGL, sTAGH = 42, 43
    srdK, srdV = 44, 48
    sOFF = 52
    sTK = 56
    sDYNB = 60
    sWV, sA, sB, sG, sI = 72, 73, 74, 75, 76
    sN, sSTAT, sEXH, sCNTOFF, sBH = 77, 78, 79, 80, 81
    sT0, sT1, sT2, sT3 = 82, 83, 84, 85
    sTHR, sFLOOR = 86, 87
    sXD, sB2V = 88, 89
    sC0 = 90
    sPC = 92
    sTS0 = 94
    sLOG2E, sSCALE = 98, 99
    def sp(r): return f"s[{r}:{r+1}]"
    def sq(r): return f"s[{r}:{r+3}]"
    vLANE = 1; vKOFF = 2; vVOFF = 3
    vQ = 4; vO = 20; vNM = 28; vL = 29; vSEL = 30; vS = 34; vX = 38
    vT = 46
    vA = 80
    vWO = 136
    vPA = 96
    vMASK = 100
    vW = 104
    vG = 232
    NV = 236
    def v(r): return f"v{r}"
    def vr(r, n): return f"v[{r}:{r+n-1}]"
    def slot_reg(slot, off, n):
        if slot < 8:
            r = 32*slot + off
            return f"a[{r}:{r+n-1}]"
        r = vW + 32*(slot-8) + off
        return f"v[{r}:{r+n-1}]"
    def stamp(k):
        if G.stamps and not G.tstamps: a(f"s_memrealtime s[{4+2*k}:{5+2*k}]")
    def tstamp(k):
        if G.tstamps: a(f"s_memrealtime s[{4+2*k}:{5+2*k}]")

    def allred16(op, r, steps=("quad_perm:[1,0,3,2]", "quad_perm:[2,3,0,1]", "row_half_mirror", "row_mirror")):
        for s in steps:
            nop(2)
            a(f"{op}_dpp {v(r)}, {v(r)}, {v(r)} {s} row_mask:0xf bank_mask:0xf")
    def allred_rows(op, r, t):
        a(f"v_mov_b32 {v(t)}, {v(r)}")
        nop(2)
        a(f"v_permlane16_swap_b32 {v(r)}, {v(t)}")
        nop(1)
        a(f"{op} {v(r)}, {v(r)}, {v(t)}")
        a(f"v_mov_b32 {v(t)}, {v(r)}")
        nop(2)
        a(f"v_permlane32_swap_b32 {v(r)}, {v(t)}")
        nop(1)
        a(f"{op} {v(r)}, {v(r)}, {v(t)}")
    def allred64(op, r, t):
        allred16(op, r); allred_rows(op, r, t)
    def rbf(r):
        a(f"v_cvt_pk_bf16_f32 {v(r)}, {v(r)}, {v(r)}")
        a(f"v_and_b32 {v(r)}, 0xffff0000, {v(r)}")
    def rbf2(r0, r1):
        a(f"v_cvt_pk_bf16_f32 {v(r1)}, {v(r0)}, {v(r1)}")
        a(f"v_lshlrev_b32 {v(r0)}, 16, {v(r1)}")
        a(f"v_and_b32 {v(r1)}, 0xffff0000, {v(r1)}")
    def poll_tail(label):
        if G.sleep_poll: a(f"s_sleep {G.sleep_poll}")
        a(f"s_add_u32 s{sT3}, s{sT3}, 1")
        a(f"s_cmp_lt_u32 s{sT3}, {POLL_MAX}")
        a(f"s_cbranch_scc1 {label}")

    t0, t1, t2, t3 = vS, vS+1, vS+2, vS+3
    F = vX
    def unpack8(dst, src):
        for j in range(4):
            a(f"v_lshlrev_b32 {v(dst+2*j)}, 16, {v(src+j)}")
            a(f"v_and_b32 {v(dst+2*j+1)}, 0xffff0000, {v(src+j)}")
    def ln_stats(F):
        a(f"v_add_f32 {v(t0)}, {v(F)}, {v(F+1)}")
        a(f"v_add_f32 {v(t1)}, {v(F+2)}, {v(F+3)}")
        a(f"v_add_f32 {v(t2)}, {v(F+4)}, {v(F+5)}")
        a(f"v_add_f32 {v(t3)}, {v(F+6)}, {v(F+7)}")
        a(f"v_add_f32 {v(t0)}, {v(t0)}, {v(t1)}")
        a(f"v_add_f32 {v(t2)}, {v(t2)}, {v(t3)}")
        a(f"v_add_f32 {v(t0)}, {v(t0)}, {v(t2)}")
        allred64("v_add_f32", t0, t3)
        a(f"v_mul_f32 {v(t0)}, 0x3b000000, {v(t0)}")
        a(f"v_sub_f32 {v(t2)}, {v(F)}, {v(t0)}")
        a(f"v_mul_f32 {v(t1)}, {v(t2)}, {v(t2)}")
        for j in range(1, 8):
            a(f"v_sub_f32 {v(t2)}, {v(F+j)}, {v(t0)}")
            a(f"v_fmac_f32 {v(t1)}, {v(t2)}, {v(t2)}")
        allred64("v_add_f32", t1, t3)
        a(f"v_mul_f32 {v(t1)}, 0x3b000000, {v(t1)}")
        rbf2(t0, t1)
        a(f"v_add_f32 {v(t1)}, 0x{f2u(1e-5):08x}, {v(t1)}")
        rbf(t1)
        a(f"v_sqrt_f32 {v(t2)}, {v(t1)}")
        nop(1)
        a(f"v_rcp_f32 {v(t3)}, {v(t2)}")
        a(f"v_fma_f32 {v(vT)}, -{v(t2)}, {v(t2)}, {v(t1)}")
        a(f"v_mul_f32 {v(t3)}, 0.5, {v(t3)}")
        a(f"v_fma_f32 {v(t1)}, {v(vT)}, {v(t3)}, {v(t2)}")
        rbf(t1)
        a(f"v_rcp_f32 {v(t2)}, {v(t1)}")
        nop(1)
        a(f"v_fma_f32 {v(t3)}, -{v(t1)}, {v(t2)}, 1.0")
        a(f"v_fma_f32 {v(t2)}, {v(t3)}, {v(t2)}, {v(t2)}")
    def ln_apply2(r0, r1, tmp):
        a(f"v_sub_f32 {v(r0)}, {v(r0)}, {v(t0)}")
        a(f"v_sub_f32 {v(r1)}, {v(r1)}, {v(t0)}")
        rbf2(r0, r1)
        for r in (r0, r1):
            a(f"v_mul_f32 {v(tmp)}, {v(r)}, {v(t2)}")
            a(f"v_fma_f32 {v(r)}, -{v(tmp)}, {v(t1)}, {v(r)}")
            a(f"v_fma_f32 {v(r)}, {v(r)}, {v(t2)}, {v(tmp)}")
    def wo_issue():
        a(f"v_lshrrev_b32 {v(vT)}, 4, {v(vLANE)}")
        a(f"v_and_b32 {v(vT+1)}, 1, {v(vT)}")
        a(f"v_lshlrev_b32 {v(vT+1)}, 1, {v(vT+1)}")
        a(f"v_lshrrev_b32 {v(vT)}, 1, {v(vT)}")
        a(f"v_add_u32 {v(vT)}, {v(vT)}, {v(vT+1)}")
        a(f"v_lshlrev_b32 {v(vT)}, 10, {v(vT)}")
        a(f"v_and_b32 {v(vT+1)}, 15, {v(vLANE)}")
        a(f"v_lshl_add_u32 {v(vT)}, {v(vT+1)}, 4, {v(vT)}")
        a(f"s_lshl_b32 s{sT1}, s{sG}, 5")
        a(f"s_add_u32 s{sT1}, s{sT1}, s{sI}")
        a(f"s_lshl_b32 s{sT1}, s{sT1}, 14")
        a(f"v_add_u32 {v(vT+11)}, s{sT1}, {v(vT)}")
        a(f"v_add_u32 {v(vT+12)}, 0x1000, {v(vT+11)}")
        a(f"v_add_u32 {v(vT+13)}, 0x2000, {v(vT+11)}")
        a(f"v_add_u32 {v(vT+14)}, 0x3000, {v(vT+11)}")
        for u, r in enumerate((vT+11, vT+12, vT+13, vT+14)):
            for cb in range(4):
                a(f"global_load_dwordx4 {vr(vWO+16*cb+4*u,4)}, {v(r)}, {sp(sWO)} offset:{256*cb} nt")
    def tail_addr():
        a(f"s_lshl_b32 s{sT0}, s{sG}, 2")
        a(f"s_add_u32 s{sT0}, s{sT0}, s{sWV}")
        a(f"s_lshl_b32 s{sT1}, s{sT0}, 15")
        a(f"s_lshl_b32 s{sT2}, s{sI}, 7")
        a(f"s_add_u32 s{sT1}, s{sT1}, s{sT2}")
        a(f"s_add_u32 s{sT1}, s{sT1}, {WS_P2}")
        a(f"v_bfe_u32 {v(vT)}, {v(vLANE)}, 2, 3")
        a(f"v_lshlrev_b32 {v(vT)}, 12, {v(vT)}")
        a(f"v_and_b32 {v(vT+1)}, 3, {v(vLANE)}")
        a(f"v_lshl_add_u32 {v(vT)}, {v(vT+1)}, 4, {v(vT)}")
        a(f"v_and_b32 {v(vT+1)}, 7, {v(vLANE)}")
        a(f"v_lshlrev_b32 {v(vT+1)}, 12, {v(vT+1)}")
        a(f"v_add_u32 {v(vT+1)}, 64, {v(vT+1)}")
        a(f"v_cmp_gt_u32 vcc, 32, {v(vLANE)}")
        nop(2)
        a(f"v_cndmask_b32 {v(vT)}, {v(vT+1)}, {v(vT)}, vcc")
        a(f"v_add_u32 {v(vA)}, s{sT1}, {v(vT)}")
        a(f"s_lshl_b32 s{sT1}, s{sWV}, 11")
        a(f"v_lshl_add_u32 {v(vA+1)}, {v(vLANE)}, 5, s{sT1}")
        a(f"v_bfe_u32 {v(vT+1)}, {v(vLANE)}, 2, 2")
        a(f"s_lshl_b32 s{sT1}, s{sWV}, 3")
        a(f"v_lshl_add_u32 {v(vA+2)}, {v(vT+1)}, 5, s{sT1}")
        a(f"s_lshl_b32 s{sT1}, s{sWV}, 5")
        a(f"v_mov_b32 {v(vA+3)}, s{sT1}")
        a(f"v_and_b32 {v(vT+1)}, 31, {v(vLANE)}")
        a(f"s_lshl_b32 s{sT1}, s{sWV}, 9")
        a(f"v_lshl_add_u32 {v(vA+4)}, {v(vT+1)}, 4, s{sT1}")
    def issue_tile(slot, soff, tag=None, track=True):
        for t in range(4):
            s = f"buffer_load_dwordx4 {slot_reg(slot,4*t,4)}, {v(vKOFF)}, {sq(srdK)}, {soff} offen offset:{64*t} nt"
            vmem(s, ("K", tag)) if track else a(s)
        for u in range(4):
            s = f"buffer_load_dwordx4 {slot_reg(slot,16+4*u,4)}, {v(vVOFF)}, {sq(srdV)}, {soff} offen offset:{1024*u} nt"
            vmem(s, ("V", tag)) if track else a(s)
    TSTR = 12 * 4096
    NDYN = 2 * (512 - NS * 12)
    uid = [0]
    def next_tile(ns, tag=None, track=False):
        u = uid[0]; uid[0] += 1
        if G.dyn:
            a(f"s_cmp_lt_u32 s{sN}, {NS}")
            a(f"s_cbranch_scc1 L_st{u}")
            a("s_waitcnt lgkmcnt(3)")
            a(f"s_cmp_lg_u32 s{sTK+ns}, 1")
            a(f"s_cbranch_scc1 L_tk{u}")
            a("s_waitcnt lgkmcnt(0)")
            lab(f"L_tk{u}")
            a(f"s_and_b32 s{sT1}, s{sTK+ns}, 1")
            a(f"s_lshl_b32 s{sT1}, s{sT1}, 21")
            a(f"s_and_b32 s{sSTAT}, s{sTK+ns}, 0xfffe")
            a(f"s_lshl_b32 s{sSTAT}, s{sSTAT}, 11")
            a(f"s_add_u32 s{sSTAT}, s{sSTAT}, s{sT1}")
            a(f"s_add_u32 s{sSTAT}, s{sSTAT}, s{sDYNB}")
            a(f"s_cmp_ge_u32 s{sTK+ns}, {CNT_BIAS + NDYN}")
            a(f"s_cselect_b32 s{sEXH}, 0x{LIM:x}, s{sEXH}")
            a(f"s_max_u32 s{sSTAT}, s{sSTAT}, s{sEXH}")
            lab(f"L_st{u}")
            a(f"s_mov_b32 s{sOFF+ns}, s{sSTAT}")
            a(f"s_add_u32 s{sSTAT}, s{sSTAT}, {TSTR}")
            a(f"s_add_u32 s{sN}, s{sN}, 1")
            a(f"s_cmp_lg_u32 s{sEXH}, 0")
            a(f"s_cbranch_scc1 L_nq{u}")
            a(f"s_cmp_lt_u32 s{sN}, {NS - 3}")
            a(f"s_cbranch_scc1 L_nq{u}")
            a(f"s_mov_b32 s{sTK+ns}, 1")
            a(f"s_atomic_add s{sTK+ns}, {sp(sWS)}, s{sCNTOFF} glc")
            lab(f"L_nq{u}")
        else:
            a(f"s_cmp_ge_u32 s{sSTAT}, s{sDYNB}")
            a(f"s_cselect_b32 s{sOFF+ns}, 0x{LIM:x}, s{sSTAT}")
            a(f"s_add_u32 s{sSTAT}, s{sSTAT}, {TSTR}")
        issue_tile(ns, f"s{sOFF+ns}", tag, track)
        if G.sstamps:
            if not G.dyn: a(f"s_add_u32 s{sN}, s{sN}, 1")
            for k, X in enumerate(G.sstamps):
                a(f"s_cmp_lg_u32 s{sN}, {X}")
                a(f"s_cbranch_scc1 L_ss{u}_{k}")
                a(f"s_memrealtime s[{4+2*k}:{5+2*k}]")
                lab(f"L_ss{u}_{k}")

    a("s_cmp_ge_u32 s2, 256")
    a("s_cbranch_scc1 L_end")
    if G.stamps: a(f"s_memrealtime {sp(sTS0)}")
    a("s_load_dwordx16 s[16:31], s[0:1], 0")
    a("s_load_dwordx8 s[32:39], s[0:1], 64")
    a("s_load_dwordx2 s[40:41], s[0:1], 96")
    a(f"v_and_b32 {v(vLANE)}, 63, v0")
    a(f"v_lshrrev_b32 {v(vT)}, 6, v0")
    a(f"s_and_b32 s{sA}, s2, 7")
    a(f"v_readfirstlane_b32 s{sWV}, {v(vT)}")
    a(f"s_lshr_b32 s{sB}, s2, 3")
    a(f"v_lshlrev_b32 {v(vVOFF)}, 4, {v(vLANE)}")
    a(f"s_and_b32 s{sG}, s{sB}, 7")
    a(f"s_lshr_b32 s{sBH}, s{sB}, 3")
    a(f"s_lshl_b32 s{sT0}, s{sBH}, 3")
    a(f"s_add_u32 s{sI}, s{sT0}, s{sA}")
    a(f"s_mov_b32 s{sLOG2E}, 0x{f2u(LOG2E):08x}")
    a(f"s_mov_b32 s{sN}, 0")
    a(f"s_lshl_b32 s{sC0}, s{sA}, 6")
    a(f"s_lshl_b32 s{sT1}, s{sB}, 1")
    a(f"s_add_u32 s{sC0}, s{sC0}, s{sT1}")
    a(f"s_cmp_eq_u32 s{sBH}, 0")
    a("s_cbranch_scc1 L_prod")
    a(f"s_cmp_lg_u32 s{sWV}, 0")
    a("s_cbranch_scc1 L_stream")
    a("s_waitcnt lgkmcnt(0)")
    a(f"s_load_dwordx2 {sp(sTAGL)}, {sp(sWS)}, {WS_EP}")
    a(f"global_load_dwordx4 {vr(vW,4)}, {v(vVOFF)}, {sp(sX)}")
    a("s_waitcnt vmcnt(0)")
    a("s_branch L_ln1")

    lab("L_prod")
    a(f"v_lshrrev_b32 {v(vT)}, 3, {v(vLANE)}")
    a(f"v_lshlrev_b32 {v(vT)}, 17, {v(vT)}")
    a(f"v_and_b32 {v(vT+1)}, 7, {v(vLANE)}")
    a(f"v_lshl_add_u32 {v(vT)}, {v(vT+1)}, 4, {v(vT)}")
    a(f"s_lshl_b32 s{sT1}, s{sA}, 3")
    a(f"s_add_u32 s{sT3}, s{sT1}, s{sG}")
    a(f"s_lshl_b32 s{sT1}, s{sT3}, 7")
    a(f"s_lshl_b32 s{sT2}, s{sWV}, 20")
    a(f"s_add_u32 s{sT1}, s{sT1}, s{sT2}")
    a(f"v_add_u32 {v(vT+16)}, s{sT1}, {v(vT)}")
    a(f"v_add_u32 {v(vT+17)}, 0x2000, {v(vT+16)}")
    a(f"s_lshl_b32 s{sT0}, s{sT3}, 2")
    a(f"s_add_u32 s{sT0}, s{sT0}, s{sWV}")
    a(f"s_lshl_b32 s{sT1}, s{sT0}, 11")
    a(f"s_add_u32 s{sT1}, s{sT1}, {WS_S2}")
    a(f"v_add_u32 {v(vT+3)}, s{sT1}, {v(vVOFF)}")
    a(f"s_lshl_b32 s{sT1}, s{sT0}, 12")
    a(f"s_add_u32 s{sT1}, s{sT1}, {WS_P2}")
    a(f"v_add_u32 {v(vT+2)}, s{sT1}, {v(vVOFF)}")
    for k in range(4): a(f"v_mov_b32 {v(vT+4+k)}, -1")
    a("s_waitcnt lgkmcnt(0)")
    a(f"s_load_dwordx2 {sp(sTAGL)}, {sp(sWS)}, {WS_EP}")
    vmem(f"global_load_dwordx4 {vr(vW,4)}, {v(vVOFF)}, {sp(sX)}", "x")
    W0 = vW + 4
    for j in range(8):
        vmem(f"global_load_dwordx4 {vr(W0+8*j,4)}, {v(vT+16)}, {sp(sWQ)} nt", ("wq", j))
        vmem(f"global_load_dwordx4 {vr(W0+8*j+4,4)}, {v(vT+17)}, {sp(sWQ)} nt", ("wq", j))
        if j < 7:
            a(f"v_add_u32 {v(vT+16)}, 0x4000, {v(vT+16)}")
            a(f"v_add_u32 {v(vT+17)}, 0x4000, {v(vT+17)}")
    for k in range(4):
        vmem(f"global_store_dwordx4 {v(vT+2)}, {vr(vT+4,4)}, {sp(sWS)} offset:{1024*k} sc1", "clr")
    for k in range(2):
        vmem(f"global_store_dwordx4 {v(vT+3)}, {vr(vT+4,4)}, {sp(sWS)} offset:{1024*k} sc1", "clr")
    a(f"s_lshl_b32 s{sT1}, s{sA}, 2")
    a(f"s_and_b32 s{sT2}, s{sG}, 3")
    a(f"s_add_u32 s{sT1}, s{sT1}, s{sT2}")
    a(f"s_mul_i32 s{sT1}, s{sT1}, {CNT_STRIDE}")
    a(f"s_add_u32 s{sT1}, s{sT1}, {WS_CNT}")
    a(f"v_mov_b32 {v(vT+9)}, s{sT1}")
    a(f"v_mov_b32 {v(vT+10)}, 0x{CNT_BIAS:x}")
    a("s_mov_b64 exec, 1")
    vmem(f"global_store_dword {v(vT+9)}, {v(vT+10)}, {sp(sWS)} sc1", "clr")
    a("s_mov_b64 exec, -1")
    wait_vm("x")
    lab("L_ln1")
    stamp(0)
    unpack8(F, vW)
    ln_stats(F)
    for j in range(4):
        ln_apply2(F+2*j, F+2*j+1, vT)
        a(f"v_cvt_pk_bf16_f32 {v(vW+j)}, {v(F+2*j)}, {v(F+2*j+1)}")
    a(f"ds_write_b128 {v(vVOFF)}, {vr(vW,4)} offset:{LDS_XN}")
    a(f"s_mov_b32 s{sT1}, 0x05040100")
    a(f"s_mov_b32 s{sT2}, 0x07060302")
    a("s_waitcnt lgkmcnt(0)")
    a(f"s_mul_i32 s{sTAGL}, s{sTAGL}, {LCG_A}")
    a(f"s_add_u32 s{sTAGL}, s{sTAGL}, {LCG_C}")
    a(f"s_mul_i32 s{sTAGH}, s{sTAGH}, {LCG_A}")
    a(f"s_add_u32 s{sTAGH}, s{sTAGH}, {LCG_C}")
    a(f"s_cmp_lg_u32 s{sBH}, 0")
    a("s_cbranch_scc1 L_svc")
    XN = vX
    a(f"v_lshrrev_b32 {v(vT+1)}, 3, {v(vLANE)}")
    a(f"s_lshl_b32 s{sT0}, s{sWV}, 8")
    a(f"v_lshl_add_u32 {v(vT+1)}, {v(vT+1)}, 5, s{sT0}")
    a(f"ds_read_b128 {vr(XN,4)}, {v(vT+1)} offset:{LDS_XN}")
    a(f"ds_read_b128 {vr(XN+4,4)}, {v(vT+1)} offset:{LDS_XN+16}")
    ACC = vQ; PT = vQ + 8
    for j in range(8):
        wait_vm(("wq", j))
        if j == 0: stamp(1)
        ra, rb = W0 + 8*j, W0 + 8*j + 4
        for d in range(4):
            a(f"v_perm_b32 {v(PT+2*d)}, {v(rb+d)}, {v(ra+d)}, s{sT1}")
            a(f"v_perm_b32 {v(PT+2*d+1)}, {v(rb+d)}, {v(ra+d)}, s{sT2}")
        if j == 0: a("s_waitcnt lgkmcnt(0)")
        for cidx in range(8):
            cc = "0" if j == 0 else v(ACC+cidx)
            a(f"v_dot2_f32_bf16 {v(ACC+cidx)}, {v(PT+cidx)}, {v(XN+j)}, {cc}")
    a(f"v_and_b32 {v(vT)}, 7, {v(vLANE)}")
    a(f"v_lshrrev_b32 {v(vT+1)}, 4, {v(vLANE)}")
    a(f"v_lshl_add_u32 {v(vT)}, {v(vT)}, 2, {v(vT+1)}")
    a(f"v_lshl_add_u32 {v(vT)}, {v(vT)}, 3, s{sT0}")
    for cidx in range(4):
        a(f"v_permlane32_swap_b32 {v(ACC+cidx)}, {v(ACC+cidx+4)}")
    nop(1)
    for cidx in range(4):
        a(f"v_add_f32 {v(ACC+cidx)}, {v(ACC+cidx)}, {v(ACC+cidx+4)}")
    nop(1)
    for cidx in range(2):
        a(f"v_permlane16_swap_b32 {v(ACC+cidx)}, {v(ACC+cidx+2)}")
    nop(1)
    for cidx in range(2):
        a(f"v_add_f32 {v(ACC+cidx)}, {v(ACC+cidx)}, {v(ACC+cidx+2)}")
    nop(1)
    a(f"v_add_f32_dpp {v(ACC)}, {v(ACC)}, {v(ACC)} row_ror:8 row_mask:0xf bank_mask:0xf")
    a(f"v_add_f32_dpp {v(ACC+1)}, {v(ACC+1)}, {v(ACC+1)} row_ror:8 row_mask:0xf bank_mask:0xf")
    a(f"ds_write_b64 {v(vT)}, {vr(ACC,2)} offset:{LDS_QP}")
    stamp(2)
    a("s_waitcnt vmcnt(0) lgkmcnt(0)")
    a("s_barrier")
    a(f"s_cmp_lg_u32 s{sWV}, 0")
    a("s_cbranch_scc1 L_stream")
    a(f"v_and_b32 {v(vT)}, 31, {v(vLANE)}")
    a(f"v_lshlrev_b32 {v(vT+1)}, 3, {v(vT)}")
    for w in range(4):
        a(f"ds_read_b64 {vr(ACC+2*w,2)}, {v(vT+1)} offset:{LDS_QP + 256*w}")
    a(f"s_lshl_b32 s{sT3}, s{sT3}, 9")
    a(f"v_lshl_add_u32 {v(vT+21)}, {v(vT)}, 4, s{sT3}")
    a(f"s_and_b32 s{sT0}, s{sTAGL}, 0xffff0000")
    a(f"v_mov_b32 {v(ACC+9)}, s{sTAGH}")
    a(f"v_mov_b32 {v(ACC+11)}, s{sTAGH}")
    a("s_waitcnt lgkmcnt(0)")
    a(f"v_add_f32 {v(ACC)}, {v(ACC)}, {v(ACC+2)}")
    a(f"v_add_f32 {v(ACC+1)}, {v(ACC+1)}, {v(ACC+3)}")
    a(f"v_add_f32 {v(ACC+4)}, {v(ACC+4)}, {v(ACC+6)}")
    a(f"v_add_f32 {v(ACC+5)}, {v(ACC+5)}, {v(ACC+7)}")
    a(f"v_add_f32 {v(ACC)}, {v(ACC)}, {v(ACC+4)}")
    a(f"v_add_f32 {v(ACC+1)}, {v(ACC+1)}, {v(ACC+5)}")
    a(f"v_cvt_pk_bf16_f32 {v(ACC)}, {v(ACC)}, {v(ACC+1)}")
    a(f"v_lshrrev_b32 {v(ACC+10)}, 16, {v(ACC)}")
    a(f"v_and_b32 {v(ACC+8)}, 0xffff, {v(ACC)}")
    a(f"v_or_b32 {v(ACC+10)}, s{sT0}, {v(ACC+10)}")
    a(f"v_or_b32 {v(ACC+8)}, s{sT0}, {v(ACC+8)}")
    a("s_mov_b64 exec, 0xffffffff")
    a(f"global_store_dwordx4 {v(vT+21)}, {vr(ACC+8,4)}, {sp(sWS)} offset:{WS_Q} sc1")
    a("s_mov_b64 exec, -1")
    lab("L_svc")
    stamp(3)
    a(f"s_and_b32 s{sT0}, s{sTAGL}, 0xffff0000")
    a(f"s_lshl_b32 s{sT2}, s{sG}, 12")
    a(f"v_lshl_add_u32 {v(vT+22)}, {v(vLANE)}, 6, s{sT2}")
    unpack8(F, vW)
    ln_stats(F)
    a(f"s_lshl_b32 s{sT2}, s{sC0}, 1")
    a(f"v_mov_b32 {v(vT+1)}, s{sT2}")
    a(f"ds_read_b32 {v(vT+4)}, {v(vT+1)} offset:{LDS_XN}")
    a(f"s_load_dword s{sXD}, {sp(sX)}, s{sT2}")
    h0, h1 = vG, vG+1
    a("s_waitcnt lgkmcnt(0)")
    a(f"v_lshlrev_b32 {v(h0)}, 16, {v(vT+4)}")
    a(f"v_and_b32 {v(h1)}, 0xffff0000, {v(vT+4)}")
    ln_apply2(h0, h1, vT)
    rbf2(h0, h1)
    a(f"s_mov_b32 s{sT3}, 0")
    QB = vW + 8
    if G.first_sleep: a(f"s_sleep {G.first_sleep}")
    if G.first_sleep2: a(f"s_sleep {G.first_sleep2}")
    if G.lightpoll:
        a(f"v_and_b32 {v(vT+23)}, 7, {v(vLANE)}")
        a(f"s_lshl_b32 s{sT2}, s{sG}, 12")
        a(f"v_lshl_add_u32 {v(vT+23)}, {v(vT+23)}, 9, s{sT2}")
        a("s_mov_b64 exec, 0xff")
        lab("L_pollL")
        a(f"global_load_dwordx2 {vr(QB,2)}, {v(vT+23)}, {sp(sWS)} offset:{WS_Q + 504} sc1")
        a("s_waitcnt vmcnt(0)")
        a(f"v_cmp_ne_u32 vcc, s{sTAGH}, {v(QB+1)}")
        a("s_cbranch_vccz L_pollL_done")
        a(f"s_sleep {G.lp_sleep}")
        a(f"s_add_u32 s{sT3}, s{sT3}, 1")
        a(f"s_cmp_lt_u32 s{sT3}, {POLL_MAX}")
        a("s_cbranch_scc1 L_pollL")
        lab("L_pollL_done")
        a("s_mov_b64 exec, -1")
        a(f"s_mov_b32 s{sT3}, 0")
    lab("L_pollQ")
    for k in range(4):
        a(f"global_load_dwordx4 {vr(QB+4*k,4)}, {v(vT+22)}, {sp(sWS)} offset:{WS_Q + 16*k} sc1")
    a("s_waitcnt vmcnt(0)")
    a(f"v_xor_b32 {v(vT)}, s{sT0}, {v(QB)}")
    a(f"v_xor_b32 {v(vT+1)}, s{sTAGH}, {v(QB+1)}")
    for k in range(1, 8):
        a(f"v_xor_b32 {v(vT+2)}, s{sT0}, {v(QB+2*k)}")
        a(f"v_xor_b32 {v(vT+3)}, s{sTAGH}, {v(QB+2*k+1)}")
        a(f"v_or_b32 {v(vT)}, {v(vT)}, {v(vT+2)}")
        a(f"v_or_b32 {v(vT+1)}, {v(vT+1)}, {v(vT+3)}")
    a(f"v_lshrrev_b32 {v(vT)}, 16, {v(vT)}")
    a(f"v_or_b32 {v(vT)}, {v(vT)}, {v(vT+1)}")
    a(f"v_cmp_ne_u32 vcc, 0, {v(vT)}")
    a("s_and_b64 exec, exec, vcc")
    a("s_cbranch_execz L_pollQ_done")
    poll_tail("L_pollQ")
    lab("L_pollQ_done")
    a("s_mov_b64 exec, -1")
    stamp(4)
    for k in range(4):
        a(f"v_perm_b32 {v(vQ+k)}, {v(QB+4*k+2)}, {v(QB+4*k)}, s{sT1}")
    a(f"ds_write_b128 {v(vVOFF)}, {vr(vQ,4)} offset:{LDS_Q}")
    a("s_waitcnt lgkmcnt(0)")
    a("s_barrier")
    stamp(5)
    if G.stamps: a(f"s_memrealtime {sp(sTS0+2)}")
    G.vm = []
    wo_issue()
    a(f"v_mov_b32 {v(vT+20)}, 0")
    a(f"global_load_ushort {v(vMASK)}, {v(vT+20)}, {sp(sB2)}")
    y0, y1 = vX+2, vX+3
    a(f"v_mov_b32 {v(y0)}, 0")
    a(f"v_mov_b32 {v(y1)}, 0")
    K1 = 2.0 * math.sqrt(2.0 / math.pi) * LOG2E
    a(f"s_mov_b32 s{sT1}, 0x{f2u(-K1*0.044715):08x}")
    a(f"v_mov_b32 {v(vT+5)}, 0x{f2u(-K1):08x}")
    a(f"v_lshlrev_b32 {v(vT+6)}, 3, {v(vLANE)}")
    a(f"s_mov_b32 s{sT2}, 0")
    BW = vW
    wv1, bv1, wv2 = vX+4, vX+5, vX+6
    u0, u1, e0, e1 = vT, vT+1, vT+2, vT+3
    lab("L_bloop")
    a(f"global_load_dwordx2 {vr(BW,2)}, {v(vT+6)}, {sp(sW1)}")
    a(f"global_load_dwordx2 {vr(BW+2,2)}, {v(vT+6)}, {sp(sB1)}")
    a(f"global_load_dwordx2 {vr(BW+4,2)}, {v(vT+6)}, {sp(sW2)}")
    a(f"v_add_u32 {v(vT+6)}, 512, {v(vT+6)}")
    a("s_waitcnt vmcnt(0)")
    for j in range(4):
        d, hi = j // 2, j % 2
        for (dst, src) in ((wv1, BW+d), (bv1, BW+2+d), (wv2, BW+4+d)):
            if hi: a(f"v_and_b32 {v(dst)}, 0xffff0000, {v(src)}")
            else:  a(f"v_lshlrev_b32 {v(dst)}, 16, {v(src)}")
        a(f"v_mul_f32 {v(u0)}, {v(h0)}, {v(wv1)}")
        a(f"v_mul_f32 {v(u1)}, {v(h1)}, {v(wv1)}")
        rbf2(u0, u1)
        a(f"v_add_f32 {v(u0)}, {v(u0)}, {v(bv1)}")
        a(f"v_add_f32 {v(u1)}, {v(u1)}, {v(bv1)}")
        rbf2(u0, u1)
        a(f"v_mul_f32 {v(e0)}, {v(u0)}, {v(u0)}")
        a(f"v_mul_f32 {v(e1)}, {v(u1)}, {v(u1)}")
        a(f"v_fma_f32 {v(e0)}, {v(e0)}, s{sT1}, {v(vT+5)}")
        a(f"v_fma_f32 {v(e1)}, {v(e1)}, s{sT1}, {v(vT+5)}")
        a(f"v_mul_f32 {v(e0)}, {v(e0)}, {v(u0)}")
        a(f"v_mul_f32 {v(e1)}, {v(e1)}, {v(u1)}")
        a(f"v_exp_f32 {v(e0)}, {v(e0)}")
        a(f"v_exp_f32 {v(e1)}, {v(e1)}")
        nop(1)
        a(f"v_add_f32 {v(e0)}, 1.0, {v(e0)}")
        a(f"v_add_f32 {v(e1)}, 1.0, {v(e1)}")
        a(f"v_rcp_f32 {v(e0)}, {v(e0)}")
        a(f"v_rcp_f32 {v(e1)}, {v(e1)}")
        nop(1)
        a(f"v_mul_f32 {v(e0)}, {v(e0)}, {v(u0)}")
        a(f"v_mul_f32 {v(e1)}, {v(e1)}, {v(u1)}")
        rbf2(e0, e1)
        a(f"v_fmac_f32 {v(y0)}, {v(e0)}, {v(wv2)}")
        a(f"v_fmac_f32 {v(y1)}, {v(e1)}, {v(wv2)}")
    a(f"s_add_u32 s{sT2}, s{sT2}, 1")
    a(f"s_cmp_lt_u32 s{sT2}, 7")
    a("s_cbranch_scc1 L_bloop")
    allred64("v_add_f32", y0, vT)
    allred64("v_add_f32", y1, vT)
    a(f"v_lshlrev_b32 {v(vT+2)}, 16, {v(vMASK)}")
    rbf2(y0, y1)
    a(f"v_add_f32 {v(y0)}, {v(y0)}, {v(vT+2)}")
    a(f"v_add_f32 {v(y1)}, {v(y1)}, {v(vT+2)}")
    rbf2(y0, y1)
    g0, g1 = vG, vG+1
    a(f"v_mul_f32 {v(e0)}, s{sLOG2E}, {v(y0)}")
    a(f"v_mul_f32 {v(e1)}, s{sLOG2E}, {v(y1)}")
    a(f"v_exp_f32 {v(e0)}, -{v(e0)}")
    a(f"v_exp_f32 {v(e1)}, -{v(e1)}")
    nop(1)
    a(f"v_add_f32 {v(e0)}, 1.0, {v(e0)}")
    a(f"v_add_f32 {v(e1)}, 1.0, {v(e1)}")
    a(f"v_rcp_f32 {v(e0)}, {v(e0)}")
    a(f"v_rcp_f32 {v(e1)}, {v(e1)}")
    nop(1)
    a(f"v_mul_f32 {v(g0)}, {v(y0)}, {v(e0)}")
    a(f"v_mul_f32 {v(g1)}, {v(y1)}, {v(e1)}")
    rbf2(g0, g1)
    PA = vW
    a(f"v_lshlrev_b32 {v(PA+8)}, 9, {v(vLANE)}")
    a(f"s_mov_b32 s{sT3}, 0")
    lab("L_pollA")
    a(f"global_load_dwordx2 {vr(PA,2)}, {v(PA+8)}, {sp(sWS)} offset:{WS_Q} sc1")
    a("s_waitcnt vmcnt(0)")
    a(f"v_xor_b32 {v(vT)}, s{sT0}, {v(PA)}")
    a(f"v_xor_b32 {v(vT+1)}, s{sTAGH}, {v(PA+1)}")
    a(f"v_lshrrev_b32 {v(vT)}, 16, {v(vT)}")
    a(f"v_or_b32 {v(vT)}, {v(vT)}, {v(vT+1)}")
    a(f"v_cmp_ne_u32 vcc, 0, {v(vT)}")
    a("s_cbranch_vccz L_pollA_done")
    poll_tail("L_pollA")
    lab("L_pollA_done")
    tail_addr()
    a(f"s_lshl_b32 s{sT2}, s{sG}, 5")
    a(f"s_add_u32 s{sT2}, s{sT2}, s{sI}")
    a(f"s_lshl_b32 s{sT1}, s{sT2}, 12")
    a(f"s_add_u32 s{sT1}, s{sT1}, {WS_P2}")
    a(f"v_lshrrev_b32 {v(vT)}, 2, {v(vLANE)}")
    a(f"v_lshl_add_u32 {v(vA+5)}, {v(vT)}, 7, s{sT1}")
    a(f"v_and_b32 {v(vT)}, 3, {v(vLANE)}")
    a(f"v_lshl_add_u32 {v(vA+6)}, {v(vT)}, 4, {v(vA+5)}")
    a(f"s_lshl_b32 s{sT1}, s{sT2}, 11")
    a(f"s_add_u32 s{sT1}, s{sT1}, {WS_S2}")
    a(f"v_and_b32 {v(vT)}, 15, {v(vLANE)}")
    a(f"v_lshlrev_b32 {v(vT)}, 5, {v(vT)}")
    a(f"v_bfe_u32 {v(vT+1)}, {v(vLANE)}, 4, 1")
    a(f"v_lshl_add_u32 {v(vT)}, {v(vT+1)}, 4, {v(vT)}")
    a(f"v_add_u32 {v(vA+7)}, s{sT1}, {v(vT)}")
    a(f"s_lshl_b32 s{sT1}, s{sC0}, 2")
    a(f"s_add_u32 s{sT1}, s{sT1}, {WS_S2}")
    a(f"v_lshl_add_u32 {v(vPA)}, {v(vLANE)}, 11, s{sT1}")
    a(f"v_add_u32 {v(vPA+1)}, 0x20000, {v(vPA)}")
    a(f"v_add_u32 {v(vPA+2)}, 0x40000, {v(vPA)}")
    a(f"v_add_u32 {v(vPA+3)}, 0x60000, {v(vPA)}")
    a(f"v_and_b32 {v(vT)}, 15, {v(vLANE)}")
    a(f"v_and_b32 {v(vT+1)}, 1, {v(vLANE)}")
    a(f"v_cmp_eq_u32 vcc, 1, {v(vT+1)}")
    a(f"v_mov_b32 {v(vT+2)}, 0xffff")
    a(f"v_mov_b32 {v(vT+3)}, 0xffff0000")
    a(f"v_cndmask_b32 {v(vT+2)}, {v(vT+2)}, {v(vT+3)}, vcc")
    a(f"v_lshrrev_b32 {v(vT)}, 1, {v(vT)}")
    for r in range(4):
        a(f"v_cmp_eq_u32 vcc, {r}, {v(vT)}")
        nop(2)
        a(f"v_cndmask_b32 {v(vMASK+r)}, 0, {v(vT+2)}, vcc")
    if G.stamps: a(f"s_memrealtime s[100:101]")
    a("s_branch L_tail")

    lab("L_stream")
    G.vm = []
    a(f"v_and_b32 {v(vT)}, 3, {v(vLANE)}")
    a(f"v_lshlrev_b32 {v(vT)}, 2, {v(vT)}")
    a(f"v_bfe_u32 {v(vT+1)}, {v(vLANE)}, 2, 2")
    a(f"v_add_u32 {v(vT)}, {v(vT)}, {v(vT+1)}")
    a(f"v_lshlrev_b32 {v(vT)}, 8, {v(vT)}")
    a(f"v_lshrrev_b32 {v(vT+1)}, 4, {v(vLANE)}")
    a(f"v_lshl_add_u32 {v(vKOFF)}, {v(vT+1)}, 4, {v(vT)}")
    a(f"s_mul_i32 s{sSTAT}, s{sBH}, 3")
    a(f"s_add_u32 s{sSTAT}, s{sSTAT}, s{sWV}")
    a(f"s_sub_u32 s{sSTAT}, s{sSTAT}, 1")
    a(f"s_lshl_b32 s{sSTAT}, s{sSTAT}, 12")
    a(f"s_lshl_b32 s{sT1}, s{sG}, 24")
    a(f"s_lshl_b32 s{sT2}, s{sA}, 21")
    a(f"s_add_u32 s{sSTAT}, s{sSTAT}, s{sT2}")
    a("s_waitcnt lgkmcnt(0)")
    for srd, ptr in ((srdK, sK), (srdV, sV)):
        a(f"s_add_u32 s{srd}, s{ptr}, s{sT1}")
        a(f"s_addc_u32 s{srd+1}, s{ptr+1}, 0")
        a(f"s_and_b32 s{srd+1}, s{srd+1}, 0xffff")
        a(f"s_mov_b32 s{srd+2}, 0x{LIM:x}")
        a(f"s_mov_b32 s{srd+3}, 0x20000")
    def setup_consts():
        Z = 0x0c0c0c0c
        lo_to_lo, lo_to_hi = 0x0c0c0100, 0x01000c0c
        hi_to_lo, hi_to_hi = 0x0c0c0302, 0x03020c0c
        a(f"v_and_b32 {v(vT+1)}, 3, {v(vLANE)}")
        for k in range(4): a(f"v_mov_b32 {v(vSEL+k)}, 0x{Z:08x}")
        for jp, (sr, val_lo, val_hi) in enumerate(((0, lo_to_lo, hi_to_lo), (0, lo_to_hi, hi_to_hi), (1, lo_to_lo, hi_to_lo), (1, lo_to_hi, hi_to_hi))):
            a(f"v_cmp_eq_u32 vcc, {jp}, {v(vT+1)}")
            a(f"v_mov_b32 {v(vT+2)}, 0x{val_lo:08x}")
            a(f"v_mov_b32 {v(vT+3)}, 0x{val_hi:08x}")
            a(f"v_cndmask_b32 {v(vSEL+sr)}, {v(vSEL+sr)}, {v(vT+2)}, vcc")
            a(f"v_cndmask_b32 {v(vSEL+2+sr)}, {v(vSEL+2+sr)}, {v(vT+3)}, vcc")
        for k in range(8): a(f"v_mov_b32 {v(vO+k)}, 0")
        a(f"v_mov_b32 {v(vNM)}, 0")
        a(f"v_mov_b32 {v(vL)}, 0")
        a(f"s_mov_b32 s{sTHR}, 0xff800000")
        a(f"s_mov_b32 s{sFLOOR}, 0xff7fffff")
        a(f"s_mov_b32 s{sSCALE}, 0x{f2u(SCALE):08x}")
        a(f"s_mov_b32 s{sEXH}, 0")
        a(f"s_mov_b32 s{sN}, {R}")
        a(f"s_add_u32 s{sT1}, s{sBH}, s{sA}")
        a(f"s_and_b32 s{sT1}, s{sT1}, 3")
        if G.dyn:
            a(f"s_lshl_b32 s{sDYNB}, s{sT1}, 22")
            a(f"s_add_u32 s{sDYNB}, s{sDYNB}, {NS*TSTR}")
        else:
            a(f"s_add_u32 s{sDYNB}, s{sA}, 1")
            a(f"s_lshl_b32 s{sDYNB}, s{sDYNB}, 21")
        a(f"s_lshl_b32 s{sT2}, s{sG}, 2")
        a(f"s_add_u32 s{sT2}, s{sT2}, s{sT1}")
        a(f"s_mul_i32 s{sCNTOFF}, s{sT2}, {CNT_STRIDE}")
        a(f"s_add_u32 s{sCNTOFF}, s{sCNTOFF}, {WS_CNT}")
        for k in range(4): a(f"s_mov_b32 s{sTK+k}, 0")
        a(f"v_bfe_u32 {v(vT+8)}, {v(vLANE)}, 2, 2")
        a(f"v_lshlrev_b32 {v(vT+8)}, 8, {v(vT+8)}")
        a(f"v_lshrrev_b32 {v(vT+1)}, 4, {v(vLANE)}")
        a(f"v_lshl_add_u32 {v(vT+8)}, {v(vT+1)}, 4, {v(vT+8)}")
    for n in range(R):
        if n >= A:
            wait_vm(("K" if G.fillk else "V", n - A))
        issue_tile(n, f"s{sSTAT}", n)
        a(f"s_add_u32 s{sSTAT}, s{sSTAT}, {TSTR}")
        if n == A - 1:
            setup_consts()
        if n == 3:
            tail_addr()
        if G.stamps and not G.sstamps and not G.tstamps and n in (1, 3, 5, 7, 9, 11): a(f"s_memrealtime s[{4+2*(n//2)}:{5+2*(n//2)}]")
    a("s_barrier")
    for t in range(4):
        a(f"ds_read_b128 {vr(vQ+4*t,4)}, {v(vT+8)} offset:{LDS_Q + 64*t}")
    if G.stamps: a(f"s_memrealtime {sp(sTS0+2)}")
    a("s_waitcnt lgkmcnt(0)")

    rare_id = [0]
    def compute_qk(slot):
        for t in range(4):
            cc = "0" if t == 0 else vr(vS, 4)
            a(f"v_mfma_f32_16x16x32_bf16 {vr(vS,4)}, {slot_reg(slot,4*t,4)}, {vr(vQ+4*t,4)}, {cc}")
    def softmax():
        rid = rare_id[0]; rare_id[0] += 1
        p01, p23 = vT, vT+1
        b = vT + 2
        a(f"v_cvt_pk_bf16_f32 {v(p01)}, {v(vS)}, {v(vS+1)}")
        a(f"v_cvt_pk_bf16_f32 {v(p23)}, {v(vS+2)}, {v(vS+3)}")
        a(f"v_lshlrev_b32 {v(b)}, 16, {v(p01)}")
        a(f"v_and_b32 {v(b+1)}, 0xffff0000, {v(p01)}")
        a(f"v_lshlrev_b32 {v(b+2)}, 16, {v(p23)}")
        a(f"v_and_b32 {v(b+3)}, 0xffff0000, {v(p23)}")
        for k in range(4): a(f"v_mul_f32 {v(b+k)}, s{sSCALE}, {v(b+k)}")
        a(f"v_cvt_pk_bf16_f32 {v(p01)}, {v(b)}, {v(b+1)}")
        a(f"v_cvt_pk_bf16_f32 {v(p23)}, {v(b+2)}, {v(b+3)}")
        a(f"v_lshlrev_b32 {v(b)}, 16, {v(p01)}")
        a(f"v_and_b32 {v(b+1)}, 0xffff0000, {v(p01)}")
        a(f"v_lshlrev_b32 {v(b+2)}, 16, {v(p23)}")
        a(f"v_and_b32 {v(b+3)}, 0xffff0000, {v(p23)}")
        for k in range(4): a(f"v_fma_f32 {v(b+k)}, {v(b+k)}, s{sLOG2E}, {v(vNM)}")
        mx = vT + 6
        a(f"v_max3_f32 {v(mx)}, {v(b)}, {v(b+1)}, {v(b+2)}")
        a(f"v_max_f32 {v(mx)}, {v(mx)}, {v(b+3)}")
        a(f"v_cmp_lt_f32 vcc, s{sTHR}, {v(mx)}")
        a(f"s_cbranch_vccz L_back{rid}")
        a(f"s_call_b64 {sp(sPC)}, L_rare")
        lab(f"L_back{rid}")
        for k in range(4): a(f"v_exp_f32 {v(b+k)}, {v(b+k)}")
        nop(1)
        a(f"v_cvt_pk_bf16_f32 {v(p01)}, {v(b)}, {v(b+1)}")
        a(f"v_cvt_pk_bf16_f32 {v(p23)}, {v(b+2)}, {v(b+3)}")
        a(f"v_add_f32 {v(b)}, {v(b)}, {v(b+1)}")
        a(f"v_add_f32 {v(b+2)}, {v(b+2)}, {v(b+3)}")
        for k in range(4): a(f"v_perm_b32 {v(vX+k)}, {v(p01)}, {v(p01)}, {v(vSEL+k)}")
        for k in range(4): a(f"v_perm_b32 {v(vX+4+k)}, {v(p23)}, {v(p23)}, {v(vSEL+k)}")
        a(f"v_add_f32 {v(b)}, {v(b)}, {v(b+2)}")
        a(f"v_add_f32 {v(vL)}, {v(vL)}, {v(b)}")
    def compute_pv(slot):
        for u in range(4):
            a(f"v_mfma_f32_16x16x16_bf16 {vr(vO,4)}, {vr(vX+2*u,2)}, {slot_reg(slot,16+4*u,2)}, {vr(vO,4)}")
            a(f"v_mfma_f32_16x16x16_bf16 {vr(vO+4,4)}, {vr(vX+2*u,2)}, {slot_reg(slot,16+4*u+2,2)}, {vr(vO+4,4)}")

    k_iss = 0
    for n in range(R + E - A):
        slot = n if n < R else n - R
        c(f"catch-up step {n}")
        wait_vm(("K", n))
        compute_qk(slot)
        nop(8)
        softmax()
        wait_vm(("V", n))
        compute_pv(slot)
        if n in G.cu_issue:
            assert k_iss <= n
            next_tile(k_iss, R + k_iss, track=True)
            k_iss += 1
    assert k_iss == E
    lab("L_loop")
    for k in range(4):
        s = (E - A + k) % 4
        c(f"steady step slot {s}")
        ns = (s + A) % 4
        a(f"s_cmp_ge_u32 s{sOFF+s}, 0x{LIM:x}")
        a("s_cbranch_scc1 L_done")
        a(f"s_waitcnt vmcnt({8*A-4})")
        if G.nocomp < 2: compute_qk(s)
        next_tile(ns)
        if G.nocomp < 2: softmax()
        a(f"s_waitcnt vmcnt({8*A})")
        if G.nocomp < 1: compute_pv(s)
    a("s_branch L_loop")

    lab("L_rare")
    b = vT + 2; mx = vT + 6; t = vT + 7; f = vT + 8
    allred_rows("v_max_f32", mx, t)
    a(f"v_max_f32 {v(mx)}, s{sFLOOR}, {v(mx)}")
    for k in range(4): a(f"v_sub_f32 {v(b+k)}, {v(b+k)}, {v(mx)}")
    a(f"v_sub_f32 {v(vNM)}, {v(vNM)}, {v(mx)}")
    a(f"v_max_f32 {v(t)}, 0, {v(mx)}")
    a(f"v_exp_f32 {v(t)}, -{v(t)}")
    nop(1)
    a(f"v_mul_f32 {v(vL)}, {v(vL)}, {v(t)}")
    nop(1)
    for h in range(4):
        a(f"v_mov_b32_dpp {v(f)}, {v(t)} row_newbcast:{4*h} row_mask:0x{1<<h:x} bank_mask:0xf")
    for k in range(8): a(f"v_mul_f32 {v(vO+k)}, {v(vO+k)}, {v(f)}")
    a(f"s_mov_b32 s{sTHR}, 0x{f2u(G.T):08x}")
    a(f"s_mov_b32 s{sFLOOR}, 0")
    a(f"s_setpc_b64 {sp(sPC)}")

    def stageA():
        a(f"v_cmp_gt_u32 vcc, 32, {v(vLANE)}")
        a("s_waitcnt lgkmcnt(0)")
        tstamp(0)
        a("s_barrier")
        if G.tstamps:
            tstamp(1); a("s_waitcnt lgkmcnt(0)")
        a(f"ds_read_b64 {vr(vQ+2,2)}, {v(vA+3)} offset:{LDS_ML+8}")
        a(f"ds_read_b128 {vr(vQ+4,4)}, {v(vA+3)} offset:{LDS_ML+16}")
        OO = vT + 4
        for w in range(1, 4):
            a(f"ds_read_b128 {vr(OO+4*w,4)}, {v(vA+4)} offset:{LDS_O + 2048*w}")
        a("s_waitcnt lgkmcnt(3)")
        nmM = vQ + 8
        a(f"v_min3_f32 {v(nmM)}, {v(vQ+2)}, {v(vQ+4)}, {v(vQ+6)}")
        for k in range(1, 4): a(f"v_sub_f32 {v(vQ+2*k)}, {v(nmM)}, {v(vQ+2*k)}")
        for k in range(1, 4): a(f"v_exp_f32 {v(vQ+2*k)}, {v(vQ+2*k)}")
        nop(1)
        a(f"v_mul_f32 {v(nmM+1)}, {v(vQ+2)}, {v(vQ+3)}")
        for k in range(2, 4): a(f"v_fmac_f32 {v(nmM+1)}, {v(vQ+2*k)}, {v(vQ+2*k+1)}")
        a("s_waitcnt lgkmcnt(0)")
        RES = vQ + 12
        for e in range(4): a(f"v_mul_f32 {v(RES+e)}, {v(vQ+2)}, {v(OO+4+e)}")
        for k in range(2, 4):
            for e in range(4): a(f"v_fmac_f32 {v(RES+e)}, {v(vQ+2*k)}, {v(OO+4*k+e)}")
        a(f"v_cndmask_b32 {v(RES)}, {v(nmM)}, {v(RES)}, vcc")
        a(f"v_cndmask_b32 {v(RES+1)}, {v(nmM+1)}, {v(RES+1)}, vcc")
        for r in range(4):
            a(f"v_min_u32 {v(RES+r)}, -2, {v(RES+r)}")
        a("s_mov_b32 exec_hi, 0xff")
        a(f"global_store_dwordx4 {v(vA)}, {vr(RES,4)}, {sp(sWS)} sc1")
        a("s_mov_b64 exec, -1")
        tstamp(2)
    lab("L_done")
    if G.stamps: a(f"s_memrealtime s[100:101]")
    allred_rows("v_add_f32", vL, vT)
    a(f"ds_write_b128 {v(vA+1)}, {vr(vO,4)} offset:{LDS_O}")
    a(f"ds_write_b128 {v(vA+1)}, {vr(vO+4,4)} offset:{LDS_O+16}")
    a(f"ds_write_b64 {v(vA+2)}, {vr(vNM,2)} offset:{LDS_ML}")
    stageA()
    a("s_branch L_fin")
    lab("L_tail")
    stageA()
    PB = vT + 4
    a(f"s_mov_b32 s{sT3}, 0")
    lab("L_pollB")
    a(f"global_load_dwordx4 {vr(PB,4)}, {v(vA+6)}, {sp(sWS)} sc1")
    a(f"global_load_dwordx4 {vr(PB+4,4)}, {v(vA+6)}, {sp(sWS)} offset:2048 sc1")
    a(f"global_load_dwordx2 {vr(PB+8,2)}, {v(vA+5)}, {sp(sWS)} offset:64 sc1")
    a(f"global_load_dwordx2 {vr(PB+10,2)}, {v(vA+5)}, {sp(sWS)} offset:2112 sc1")
    a("s_waitcnt vmcnt(0)")
    a(f"v_max_u32 {v(vT)}, {v(PB)}, {v(PB+1)}")
    for k in range(2, 12, 2):
        a(f"v_max3_u32 {v(vT)}, {v(vT)}, {v(PB+k)}, {v(PB+k+1)}")
    a(f"v_cmp_eq_u32 vcc, -1, {v(vT)}")
    a("s_and_b64 exec, exec, vcc")
    a("s_cbranch_execz L_pollB_done")
    poll_tail("L_pollB")
    lab("L_pollB_done")
    tstamp(3)
    a("s_mov_b64 exec, -1")
    nma, la, nmb, lb = PB+8, PB+9, PB+10, PB+11
    M = vT
    a(f"v_min_f32 {v(M)}, {v(nma)}, {v(nmb)}")
    allred16("v_min_f32", M, steps=("row_ror:4", "row_ror:8"))
    allred_rows("v_min_f32", M, vT+1)
    a(f"v_sub_f32 {v(nma)}, {v(M)}, {v(nma)}")
    a(f"v_sub_f32 {v(nmb)}, {v(M)}, {v(nmb)}")
    a(f"v_exp_f32 {v(nma)}, {v(nma)}")
    a(f"v_exp_f32 {v(nmb)}, {v(nmb)}")
    nop(1)
    a(f"v_mul_f32 {v(la)}, {v(la)}, {v(nma)}")
    for e in range(4): a(f"v_mul_f32 {v(PB+e)}, {v(PB+e)}, {v(nma)}")
    a(f"v_fmac_f32 {v(la)}, {v(lb)}, {v(nmb)}")
    for e in range(4): a(f"v_fmac_f32 {v(PB+e)}, {v(PB+4+e)}, {v(nmb)}")
    a(f"v_mov_b32 {v(lb)}, {v(la)}")
    a(f"v_permlane32_swap_b32 {v(PB)}, {v(PB+1)}")
    a(f"v_permlane32_swap_b32 {v(PB+2)}, {v(PB+3)}")
    a(f"v_permlane32_swap_b32 {v(la)}, {v(lb)}")
    a(f"v_add_f32 {v(PB)}, {v(PB)}, {v(PB+1)}")
    a(f"v_add_f32 {v(PB+2)}, {v(PB+2)}, {v(PB+3)}")
    a(f"v_add_f32 {v(la)}, {v(la)}, {v(lb)}")
    a(f"v_mov_b32 {v(lb)}, {v(la)}")
    a(f"v_permlane16_swap_b32 {v(PB)}, {v(PB+2)}")
    nop(1)
    a(f"v_permlane16_swap_b32 {v(la)}, {v(lb)}")
    a(f"v_add_f32 {v(PB)}, {v(PB)}, {v(PB+2)}")
    a(f"v_add_f32 {v(la)}, {v(la)}, {v(lb)}")
    for st in ("row_ror:4", "row_ror:8"):
        nop(1)
        a(f"v_add_f32_dpp {v(PB)}, {v(PB)}, {v(PB)} {st} row_mask:0xf bank_mask:0xf")
        a(f"v_add_f32_dpp {v(la)}, {v(la)}, {v(la)} {st} row_mask:0xf bank_mask:0xf")
    a(f"v_rcp_f32 {v(vT)}, {v(la)}")
    nop(1)
    a(f"v_fma_f32 {v(vT+1)}, -{v(la)}, {v(vT)}, 1.0")
    a(f"v_fma_f32 {v(vT)}, {v(vT+1)}, {v(vT)}, {v(vT)}")
    a(f"v_mul_f32 {v(PB)}, {v(PB)}, {v(vT)}")
    a(f"v_cvt_pk_bf16_f32 {v(PB)}, {v(PB)}, {v(PB)}")
    nop(2)
    AO = vQ
    DD = vW
    for u in range(4):
        for r in range(4):
            a(f"v_and_b32_dpp {v(AO+4*u+r)}, {v(PB)}, {v(vMASK+r)} row_newbcast:{u} row_mask:0xf bank_mask:0xf")
    nop(1)
    for cb in range(4):
        for u in range(4):
            cc = "0" if u == 0 else vr(DD+4*cb, 4)
            a(f"v_mfma_f32_16x16x32_bf16 {vr(DD+4*cb,4)}, {vr(AO+4*u,4)}, {vr(vWO+16*cb+4*u,4)}, {cc}")
    a("s_mov_b64 exec, 0xffffffff")
    for cb in range(4):
        if cb == 3: nop(4)
        for r in range(4): a(f"v_min_u32 {v(DD+4*cb+r)}, -2, {v(DD+4*cb+r)}")
        a(f"global_store_dwordx4 {v(vA+7)}, {vr(DD+4*cb,4)}, {sp(sWS)} offset:{512*cb} sc1")
    a("s_mov_b64 exec, -1")
    tstamp(4)
    PC = vT + 4
    a(f"s_mov_b32 s{sT3}, 0")
    lab("L_pollC")
    for k in range(4):
        a(f"global_load_dwordx2 {vr(PC+2*k,2)}, {v(vPA+k)}, {sp(sWS)} sc1")
    a("s_waitcnt vmcnt(0)")
    a(f"v_max_u32 {v(vT)}, {v(PC)}, {v(PC+1)}")
    for k in range(2, 8, 2):
        a(f"v_max3_u32 {v(vT)}, {v(vT)}, {v(PC+k)}, {v(PC+k+1)}")
    a(f"v_cmp_eq_u32 vcc, -1, {v(vT)}")
    a("s_and_b64 exec, exec, vcc")
    a("s_cbranch_execz L_pollC_done")
    poll_tail("L_pollC")
    lab("L_pollC_done")
    tstamp(5)
    a("s_mov_b64 exec, -1")
    a(f"v_add_f32 {v(PC)}, {v(PC)}, {v(PC+2)}")
    a(f"v_add_f32 {v(PC+1)}, {v(PC+1)}, {v(PC+3)}")
    a(f"v_add_f32 {v(PC+4)}, {v(PC+4)}, {v(PC+6)}")
    a(f"v_add_f32 {v(PC+5)}, {v(PC+5)}, {v(PC+7)}")
    a(f"v_add_f32 {v(PC)}, {v(PC)}, {v(PC+4)}")
    a(f"v_add_f32 {v(PC+1)}, {v(PC+1)}, {v(PC+5)}")
    nop(2)
    a(f"v_permlane32_swap_b32 {v(PC)}, {v(PC+1)}")
    nop(1)
    a(f"v_add_f32 {v(PC)}, {v(PC)}, {v(PC+1)}")
    allred16("v_add_f32", PC)
    a(f"v_mov_b32 {v(vT)}, {v(PC)}")
    nop(2)
    a(f"v_permlane16_swap_b32 {v(PC)}, {v(vT)}")
    nop(1)
    a(f"v_add_f32 {v(PC)}, {v(PC)}, {v(vT)}")
    a(f"v_mov_b32 {v(PC+1)}, {v(PC)}")
    nop(2)
    a(f"v_permlane32_swap_b32 {v(PC)}, {v(PC+1)}")
    nop(1)
    rbf2(PC, PC+1)
    a(f"v_mul_f32 {v(PC)}, {v(PC)}, {v(g0)}")
    a(f"v_mul_f32 {v(PC+1)}, {v(PC+1)}, {v(g1)}")
    rbf2(PC, PC+1)
    a(f"s_lshl_b32 s{sT1}, s{sXD}, 16")
    a(f"s_and_b32 s{sT2}, s{sXD}, 0xffff0000")
    a(f"v_add_f32 {v(PC)}, s{sT1}, {v(PC)}")
    a(f"v_add_f32 {v(PC+1)}, s{sT2}, {v(PC+1)}")
    a(f"v_cvt_pk_bf16_f32 {v(PC)}, {v(PC)}, {v(PC+1)}")
    a(f"s_lshl_b32 s{sT1}, s{sC0}, 1")
    a(f"v_mov_b32 {v(vT)}, s{sT1}")
    a("s_mov_b64 exec, 1")
    a(f"global_store_dword {v(vT)}, {v(PC)}, {sp(sOUT)}")
    a("s_cmp_lg_u32 s2, 0")
    a("s_cbranch_scc1 L_noep")
    a(f"v_mov_b32 {v(vT)}, {WS_EP}")
    a(f"v_mov_b32 {v(vT+2)}, s{sTAGL}")
    a(f"v_mov_b32 {v(vT+3)}, s{sTAGH}")
    a(f"global_store_dwordx2 {v(vT)}, {vr(vT+2,2)}, {sp(sWS)} sc1")
    lab("L_noep")
    a("s_mov_b64 exec, -1")
    lab("L_fin")
    if G.stamps:
        a(f"s_memrealtime s[82:83]")
        a("s_waitcnt lgkmcnt(0)")
        a(f"s_lshl_b32 s{sT2}, s2, 2")
        a(f"s_add_u32 s{sT2}, s{sT2}, s{sWV}")
        a(f"s_lshl_b32 s{sT2}, s{sT2}, 6")
        a(f"s_add_u32 s{sT2}, s{sT2}, {WS_TS}")
        a(f"v_mov_b32 v2, s{sT2}")
        a(f"v_mov_b32 v4, s{sTS0}")
        a(f"v_mov_b32 v5, s{sTS0+2}")
        a(f"v_mov_b32 v6, s100")
        a(f"v_mov_b32 v7, s82")
        a(f"v_mov_b32 v8, s{sN}")
        a(f"s_getreg_b32 s{sT2}, hwreg(HW_REG_XCC_ID)")
        a(f"v_mov_b32 v9, s{sT2}")
        a("s_mov_b64 exec, 1")
        a(f"global_store_dwordx4 v2, v[4:7], {sp(sWS)}")
        a(f"global_store_dwordx2 v2, v[8:9], {sp(sWS)} offset:16")
        for k in range(6): a(f"v_mov_b32 v{10+k}, s{4+2*k}")
        a(f"global_store_dwordx4 v2, v[10:13], {sp(sWS)} offset:32")
        a(f"global_store_dwordx2 v2, v[14:15], {sp(sWS)} offset:48")
    lab("L_end")
    a("s_endpgm")
    tail = ['.section .rodata,"a"', ".p2align 6", f".amdhsa_kernel {KN}",
            f"  .amdhsa_next_free_vgpr {NV+256}", "  .amdhsa_next_free_sgpr 102", f"  .amdhsa_accum_offset {NV}",
            "  .amdhsa_group_segment_fixed_size 0", "  .amdhsa_kernarg_size 104", "  .amdhsa_user_sgpr_count 2",
            "  .amdhsa_user_sgpr_kernarg_segment_ptr 1", "  .amdhsa_system_sgpr_workgroup_id_x 1",
            "  .amdhsa_float_denorm_mode_32 3",
            ".end_amdhsa_kernel"]
    return "\n".join(hdr + G.L + tail) + "\n"

if __name__ == "__main__":
    import argparse, json
    ap = argparse.ArgumentParser()
    ap.add_argument("-o", default="k.s")
    ap.add_argument("kv", nargs="*")
    args = ap.parse_args()
    kw = {}
    for x in args.kv:
        k, val = x.split("=")
        kw[k] = json.loads(val)
    open(args.o, "w").write(build(**kw))
```

```python
import sys, struct, math

KN = "recurrent_scan__gqa_block_cached__mixer_token_mlp__decode_kernel"

def f2u(x):
    return struct.unpack("<I", struct.pack("<f", x))[0]

class Gen:
    def __init__(self, **kw):
        self.L = []
        self.vm = []
        self.__dict__.update(kw)
    def a(self, s): self.L.append("  " + s)
    def lab(self, s): self.L.append(s + ":")
    def c(self, s): self.L.append("  ; " + s)
    def vmem(self, s, tag=None):
        self.a(s); self.vm.append(tag)
    def wait_vm(self, tag):
        if tag not in self.vm: return
        idx = max(i for i, t in enumerate(self.vm) if t == tag)
        n = len(self.vm) - 1 - idx
        n = min(n, 63)
        self.a(f"s_waitcnt vmcnt({n})")
        self.vm = self.vm[len(self.vm)-n:] if n else []
    def nop(self, n):
        if n > 0: self.a(f"s_nop {n-1}")

WS_Q   = 0x0
WS_EP  = 0x8000
WS_CNT = 0x10000
CNT_STRIDE = 1280
CNT_BIAS = 0x10000
WS_P2  = 0x100000
WS_S2  = 0x200000
WS_TS  = 0x1000000
LDS_XN   = 0
LDS_Q    = 1024
LDS_ML   = 2048
LDS_O    = 2304
LDS_QP   = 2304
LDS_TOTAL = 2304 + 8192
LOG2E = 1.4426950408889634
SCALE = 128 ** -0.5
LCG_A, LCG_C = 1664525, 1013904223
REG = 0x200000
LIM = 0x1000000

DEFAULTS = dict(A=2, R=12, NS=37, T=20.0, dyn=True, stamps=False, sleep_poll=0, poll_max=200000,
                cu_issue=(0, 1, 6, 10), first_sleep=0, fillk=True, head_bar=False, noclr=False, nopa=False, first_sleep2=0, sstamps=None, nocomp=0, tstamps=False, lightpoll=True, lp_sleep=12, early=False, tlbwarm=False, DP=0, P=3, abl=(), clrf='sc1', pairpool=False)

def build(**kw):
    p = dict(DEFAULTS); p.update(kw)
    G = Gen(**p)
    a, lab, c, vmem, wait_vm, nop = G.a, G.lab, G.c, G.vmem, G.wait_vm, G.nop
    A, R, NS = G.A, G.R, G.NS
    E = len(G.cu_issue)
    assert A <= E <= 4 and R <= 12
    POLL_MAX = G.poll_max
    hdr = [f"; @launch grid=(256,1,1) block=(256,1,1) lds={LDS_TOTAL}",
           '.amdgcn_target "amdgcn-amd-amdhsa--gfx950"', ".text", f".globl {KN}", ".p2align 8",
           f".type {KN},@function", f"{KN}:"]
    sX, sK, sV, sWQ, sWO, sBX, sW1, sB1 = 16, 18, 20, 22, 24, 26, 28, 30
    sW2, sB2, sOUT, sDBG, sWS = 32, 34, 36, 38, 40
    sTAGL, sTAGH = 42, 43
    srdK, srdV = 44, 48
    sOFF = 52
    sTK = 56
    sDYNB = 60
    sWV, sA, sB, sG, sI = 72, 73, 74, 75, 76
    sN, sSTAT, sEXH, sCNTOFF, sBH = 77, 78, 79, 80, 81
    sT0, sT1, sT2, sT3 = 82, 83, 84, 85
    sTHR, sFLOOR = 86, 87
    sXD, sB2V = 88, 89
    sC0 = 90
    sPC = 92
    sTS0 = 94
    sLOG2E, sSCALE = 98, 99
    def sp(r): return f"s[{r}:{r+1}]"
    def sq(r): return f"s[{r}:{r+3}]"
    vLANE = 1; vKOFF = 2; vVOFF = 3
    vQ = 4; vO = 20; vNM = 28; vL = 29; vSEL = 30; vS = 34; vX = 38
    vT = 46
    vA = 80
    vWO = 136
    vPA = 96
    vMASK = 100
    vW = 104
    vG = 232
    NV = 236
    def v(r): return f"v{r}"
    def vr(r, n): return f"v[{r}:{r+n-1}]"
    def slot_reg(slot, off, n):
        if slot < 8:
            r = 32*slot + off
            return f"a[{r}:{r+n-1}]"
        r = vW + 32*(slot-8) + off
        return f"v[{r}:{r+n-1}]"
    def stamp(k):
        if G.stamps and not G.tstamps: a(f"s_memrealtime s[{4+2*k}:{5+2*k}]")
    def tstamp(k):
        if G.tstamps: a(f"s_memrealtime s[{4+2*k}:{5+2*k}]")

    def allred16(op, r, steps=("quad_perm:[1,0,3,2]", "quad_perm:[2,3,0,1]", "row_half_mirror", "row_mirror")):
        for s in steps:
            nop(2)
            a(f"{op}_dpp {v(r)}, {v(r)}, {v(r)} {s} row_mask:0xf bank_mask:0xf")
    def allred_rows(op, r, t):
        a(f"v_mov_b32 {v(t)}, {v(r)}")
        nop(2)
        a(f"v_permlane16_swap_b32 {v(r)}, {v(t)}")
        nop(1)
        a(f"{op} {v(r)}, {v(r)}, {v(t)}")
        a(f"v_mov_b32 {v(t)}, {v(r)}")
        nop(2)
        a(f"v_permlane32_swap_b32 {v(r)}, {v(t)}")
        nop(1)
        a(f"{op} {v(r)}, {v(r)}, {v(t)}")
    def allred64(op, r, t):
        allred16(op, r); allred_rows(op, r, t)
    def rbf(r):
        a(f"v_cvt_pk_bf16_f32 {v(r)}, {v(r)}, {v(r)}")
        a(f"v_and_b32 {v(r)}, 0xffff0000, {v(r)}")
    def rbf2(r0, r1):
        a(f"v_cvt_pk_bf16_f32 {v(r1)}, {v(r0)}, {v(r1)}")
        a(f"v_lshlrev_b32 {v(r0)}, 16, {v(r1)}")
        a(f"v_and_b32 {v(r1)}, 0xffff0000, {v(r1)}")
    def poll_tail(label):
        if G.sleep_poll: a(f"s_sleep {G.sleep_poll}")
        a(f"s_add_u32 s{sT3}, s{sT3}, 1")
        a(f"s_cmp_lt_u32 s{sT3}, {POLL_MAX}")
        a(f"s_cbranch_scc1 {label}")

    t0, t1, t2, t3 = vS, vS+1, vS+2, vS+3
    F = vX
    def unpack8(dst, src):
        for j in range(4):
            a(f"v_lshlrev_b32 {v(dst+2*j)}, 16, {v(src+j)}")
            a(f"v_and_b32 {v(dst+2*j+1)}, 0xffff0000, {v(src+j)}")
    def ln_stats(F):
        a(f"v_add_f32 {v(t0)}, {v(F)}, {v(F+1)}")
        a(f"v_add_f32 {v(t1)}, {v(F+2)}, {v(F+3)}")
        a(f"v_add_f32 {v(t2)}, {v(F+4)}, {v(F+5)}")
        a(f"v_add_f32 {v(t3)}, {v(F+6)}, {v(F+7)}")
        a(f"v_add_f32 {v(t0)}, {v(t0)}, {v(t1)}")
        a(f"v_add_f32 {v(t2)}, {v(t2)}, {v(t3)}")
        a(f"v_add_f32 {v(t0)}, {v(t0)}, {v(t2)}")
        allred64("v_add_f32", t0, t3)
        a(f"v_mul_f32 {v(t0)}, 0x3b000000, {v(t0)}")
        a(f"v_sub_f32 {v(t2)}, {v(F)}, {v(t0)}")
        a(f"v_mul_f32 {v(t1)}, {v(t2)}, {v(t2)}")
        for j in range(1, 8):
            a(f"v_sub_f32 {v(t2)}, {v(F+j)}, {v(t0)}")
            a(f"v_fmac_f32 {v(t1)}, {v(t2)}, {v(t2)}")
        allred64("v_add_f32", t1, t3)
        a(f"v_mul_f32 {v(t1)}, 0x3b000000, {v(t1)}")
        rbf2(t0, t1)
        a(f"v_add_f32 {v(t1)}, 0x{f2u(1e-5):08x}, {v(t1)}")
        rbf(t1)
        a(f"v_sqrt_f32 {v(t2)}, {v(t1)}")
        nop(1)
        a(f"v_rcp_f32 {v(t3)}, {v(t2)}")
        a(f"v_fma_f32 {v(vT)}, -{v(t2)}, {v(t2)}, {v(t1)}")
        a(f"v_mul_f32 {v(t3)}, 0.5, {v(t3)}")
        a(f"v_fma_f32 {v(t1)}, {v(vT)}, {v(t3)}, {v(t2)}")
        rbf(t1)
        a(f"v_rcp_f32 {v(t2)}, {v(t1)}")
        nop(1)
        a(f"v_fma_f32 {v(t3)}, -{v(t1)}, {v(t2)}, 1.0")
        a(f"v_fma_f32 {v(t2)}, {v(t3)}, {v(t2)}, {v(t2)}")
    def ln_apply2(r0, r1, tmp):
        a(f"v_sub_f32 {v(r0)}, {v(r0)}, {v(t0)}")
        a(f"v_sub_f32 {v(r1)}, {v(r1)}, {v(t0)}")
        rbf2(r0, r1)
        for r in (r0, r1):
            a(f"v_mul_f32 {v(tmp)}, {v(r)}, {v(t2)}")
            a(f"v_fma_f32 {v(r)}, -{v(tmp)}, {v(t1)}, {v(r)}")
            a(f"v_fma_f32 {v(r)}, {v(r)}, {v(t2)}, {v(tmp)}")
    def wo_issue():
        a(f"v_lshrrev_b32 {v(vT)}, 4, {v(vLANE)}")
        a(f"v_and_b32 {v(vT+1)}, 1, {v(vT)}")
        a(f"v_lshlrev_b32 {v(vT+1)}, 1, {v(vT+1)}")
        a(f"v_lshrrev_b32 {v(vT)}, 1, {v(vT)}")
        a(f"v_add_u32 {v(vT)}, {v(vT)}, {v(vT+1)}")
        a(f"v_lshlrev_b32 {v(vT)}, 10, {v(vT)}")
        a(f"v_and_b32 {v(vT+1)}, 15, {v(vLANE)}")
        a(f"v_lshl_add_u32 {v(vT)}, {v(vT+1)}, 4, {v(vT)}")
        a(f"s_lshl_b32 s{sT1}, s{sG}, 5")
        a(f"s_add_u32 s{sT1}, s{sT1}, s{sI}")
        a(f"s_lshl_b32 s{sT1}, s{sT1}, 14")
        a(f"v_add_u32 {v(vT+11)}, s{sT1}, {v(vT)}")
        a(f"v_add_u32 {v(vT+12)}, 0x1000, {v(vT+11)}")
        a(f"v_add_u32 {v(vT+13)}, 0x2000, {v(vT+11)}")
        a(f"v_add_u32 {v(vT+14)}, 0x3000, {v(vT+11)}")
        for u, r in enumerate((vT+11, vT+12, vT+13, vT+14)):
            for cb in range(0 if "nowo" in G.abl else 4):
                a(f"global_load_dwordx4 {vr(vWO+16*cb+4*u,4)}, {v(r)}, {sp(sWO)} offset:{256*cb} nt")
    def tail_addr():
        a(f"s_lshl_b32 s{sT0}, s{sG}, 2")
        a(f"s_add_u32 s{sT0}, s{sT0}, s{sWV}")
        a(f"s_lshl_b32 s{sT1}, s{sT0}, 15")
        a(f"s_lshl_b32 s{sT2}, s{sI}, 7")
        a(f"s_add_u32 s{sT1}, s{sT1}, s{sT2}")
        a(f"s_add_u32 s{sT1}, s{sT1}, {WS_P2}")
        a(f"v_bfe_u32 {v(vT)}, {v(vLANE)}, 2, 3")
        a(f"v_lshlrev_b32 {v(vT)}, 12, {v(vT)}")
        a(f"v_and_b32 {v(vT+1)}, 3, {v(vLANE)}")
        a(f"v_lshl_add_u32 {v(vT)}, {v(vT+1)}, 4, {v(vT)}")
        a(f"v_and_b32 {v(vT+1)}, 7, {v(vLANE)}")
        a(f"v_lshlrev_b32 {v(vT+1)}, 12, {v(vT+1)}")
        a(f"v_add_u32 {v(vT+1)}, 64, {v(vT+1)}")
        a(f"v_cmp_gt_u32 vcc, 32, {v(vLANE)}")
        nop(2)
        a(f"v_cndmask_b32 {v(vT)}, {v(vT+1)}, {v(vT)}, vcc")
        a(f"v_add_u32 {v(vA)}, s{sT1}, {v(vT)}")
        a(f"s_lshl_b32 s{sT1}, s{sWV}, 11")
        a(f"v_lshl_add_u32 {v(vA+1)}, {v(vLANE)}, 5, s{sT1}")
        a(f"v_bfe_u32 {v(vT+1)}, {v(vLANE)}, 2, 2")
        a(f"s_lshl_b32 s{sT1}, s{sWV}, 3")
        a(f"v_lshl_add_u32 {v(vA+2)}, {v(vT+1)}, 5, s{sT1}")
        a(f"s_lshl_b32 s{sT1}, s{sWV}, 5")
        a(f"v_mov_b32 {v(vA+3)}, s{sT1}")
        a(f"v_and_b32 {v(vT+1)}, 31, {v(vLANE)}")
        a(f"s_lshl_b32 s{sT1}, s{sWV}, 9")
        a(f"v_lshl_add_u32 {v(vA+4)}, {v(vT+1)}, 4, s{sT1}")
    def issue_tile(slot, soff, tag=None, track=True):
        for t in range(4):
            s = f"buffer_load_dwordx4 {slot_reg(slot,4*t,4)}, {v(vKOFF)}, {sq(srdK)}, {soff} offen offset:{64*t} nt"
            vmem(s, ("K", tag)) if track else a(s)
        for u in range(4):
            s = f"buffer_load_dwordx4 {slot_reg(slot,16+4*u,4)}, {v(vVOFF)}, {sq(srdV)}, {soff} offen offset:{1024*u} nt"
            vmem(s, ("V", tag)) if track else a(s)
    TSTR = 12 * 4096
    NDYN = 2 * (512 - NS * 12)
    uid = [0]
    def next_tile(ns, tag=None, track=False):
        u = uid[0]; uid[0] += 1
        if G.dyn:
            a(f"s_cmp_lt_u32 s{sN}, {NS}")
            a(f"s_cbranch_scc1 L_st{u}")
            a(f"s_waitcnt lgkmcnt({G.P-1})")
            a(f"s_cmp_lg_u32 s{sTK+ns}, 1")
            a(f"s_cbranch_scc1 L_tk{u}")
            a("s_waitcnt lgkmcnt(0)")
            lab(f"L_tk{u}")
            a(f"s_and_b32 s{sT1}, s{sTK+ns}, 1")
            a(f"s_lshl_b32 s{sT1}, s{sT1}, 21")
            a(f"s_and_b32 s{sSTAT}, s{sTK+ns}, 0xfffe")
            a(f"s_lshl_b32 s{sSTAT}, s{sSTAT}, 11")
            a(f"s_add_u32 s{sSTAT}, s{sSTAT}, s{sT1}")
            a(f"s_add_u32 s{sSTAT}, s{sSTAT}, s{sDYNB}")
            a(f"s_cmp_ge_u32 s{sTK+ns}, {CNT_BIAS + NDYN}")
            a(f"s_cselect_b32 s{sEXH}, 0x{LIM:x}, s{sEXH}")
            a(f"s_max_u32 s{sSTAT}, s{sSTAT}, s{sEXH}")
            lab(f"L_st{u}")
            a(f"s_mov_b32 s{sOFF+ns}, s{sSTAT}")
            a(f"s_add_u32 s{sSTAT}, s{sSTAT}, {TSTR}")
            a(f"s_add_u32 s{sN}, s{sN}, 1")
            a(f"s_cmp_lg_u32 s{sEXH}, 0")
            a(f"s_cbranch_scc1 L_nq{u}")
            a(f"s_cmp_lt_u32 s{sN}, {NS - G.P + 1}")
            a(f"s_cbranch_scc1 L_nq{u}")
            a(f"s_mov_b32 s{sTK+(ns+G.P)%4}, 1")
            a(f"s_atomic_add s{sTK+(ns+G.P)%4}, {sp(sWS)}, s{sCNTOFF} glc")
            lab(f"L_nq{u}")
        else:
            a(f"s_cmp_ge_u32 s{sSTAT}, s{sDYNB}")
            a(f"s_cselect_b32 s{sOFF+ns}, 0x{LIM:x}, s{sSTAT}")
            a(f"s_add_u32 s{sSTAT}, s{sSTAT}, {TSTR}")
        issue_tile(ns, f"s{sOFF+ns}", tag, track)
        if G.sstamps:
            if not G.dyn: a(f"s_add_u32 s{sN}, s{sN}, 1")
            for k, X in enumerate(G.sstamps):
                a(f"s_cmp_lg_u32 s{sN}, {X}")
                a(f"s_cbranch_scc1 L_ss{u}_{k}")
                a(f"s_memrealtime s[{4+2*k}:{5+2*k}]")
                lab(f"L_ss{u}_{k}")

    def stream_setup(wait):
        a(f"v_and_b32 {v(vT)}, 3, {v(vLANE)}")
        a(f"v_lshlrev_b32 {v(vT)}, 2, {v(vT)}")
        a(f"v_bfe_u32 {v(vT+1)}, {v(vLANE)}, 2, 2")
        a(f"v_add_u32 {v(vT)}, {v(vT)}, {v(vT+1)}")
        a(f"v_lshlrev_b32 {v(vT)}, 8, {v(vT)}")
        a(f"v_lshrrev_b32 {v(vT+1)}, 4, {v(vLANE)}")
        a(f"v_lshl_add_u32 {v(vKOFF)}, {v(vT+1)}, 4, {v(vT)}")
        a(f"s_mul_i32 s{sSTAT}, s{sBH}, 3")
        a(f"s_add_u32 s{sSTAT}, s{sSTAT}, s{sWV}")
        a(f"s_sub_u32 s{sSTAT}, s{sSTAT}, 1")
        a(f"s_lshl_b32 s{sSTAT}, s{sSTAT}, 12")
        a(f"s_lshl_b32 s{sT1}, s{sG}, 24")
        a(f"s_lshl_b32 s{sT2}, s{sA}, 21")
        a(f"s_add_u32 s{sSTAT}, s{sSTAT}, s{sT2}")
        if wait: a("s_waitcnt lgkmcnt(0)")
        for srd, ptr in ((srdK, sK), (srdV, sV)):
            a(f"s_add_u32 s{srd}, s{ptr}, s{sT1}")
            a(f"s_addc_u32 s{srd+1}, s{ptr+1}, 0")
            a(f"s_and_b32 s{srd+1}, s{srd+1}, 0xffff")
            a(f"s_mov_b32 s{srd+2}, 0x{LIM:x}")
            a(f"s_mov_b32 s{srd+3}, 0x20000")
    a("s_cmp_ge_u32 s2, 256")
    a("s_cbranch_scc1 L_end")
    if G.stamps: a(f"s_memrealtime {sp(sTS0)}")
    a("s_load_dwordx16 s[16:31], s[0:1], 0")
    a("s_load_dwordx8 s[32:39], s[0:1], 64")
    a("s_load_dwordx2 s[40:41], s[0:1], 96")
    a(f"v_and_b32 {v(vLANE)}, 63, v0")
    a(f"v_lshrrev_b32 {v(vT)}, 6, v0")
    a(f"s_and_b32 s{sA}, s2, 7")
    a(f"v_readfirstlane_b32 s{sWV}, {v(vT)}")
    a(f"s_lshr_b32 s{sB}, s2, 3")
    a(f"v_lshlrev_b32 {v(vVOFF)}, 4, {v(vLANE)}")
    a(f"s_and_b32 s{sG}, s{sB}, 7")
    a(f"s_lshr_b32 s{sBH}, s{sB}, 3")
    a(f"s_lshl_b32 s{sT0}, s{sBH}, 3")
    a(f"s_add_u32 s{sI}, s{sT0}, s{sA}")
    a(f"s_mov_b32 s{sLOG2E}, 0x{f2u(LOG2E):08x}")
    a(f"s_mov_b32 s{sN}, 0")
    a(f"s_lshl_b32 s{sC0}, s{sA}, 6")
    a(f"s_lshl_b32 s{sT1}, s{sB}, 1")
    a(f"s_add_u32 s{sC0}, s{sC0}, s{sT1}")
    a(f"s_cmp_eq_u32 s{sBH}, 0")
    a("s_cbranch_scc1 L_prod")
    a(f"s_cmp_lg_u32 s{sWV}, 0")
    a("s_cbranch_scc1 L_stream")
    a("s_waitcnt lgkmcnt(0)")
    a(f"s_load_dwordx2 {sp(sTAGL)}, {sp(sWS)}, {WS_EP}")
    a(f"global_load_dwordx4 {vr(vW,4)}, {v(vVOFF)}, {sp(sX)}")
    a("s_waitcnt vmcnt(0)")
    a("s_branch L_ln1")

    lab("L_prod")
    a(f"v_lshrrev_b32 {v(vT)}, 3, {v(vLANE)}")
    a(f"v_lshlrev_b32 {v(vT)}, 17, {v(vT)}")
    a(f"v_and_b32 {v(vT+1)}, 7, {v(vLANE)}")
    a(f"v_lshl_add_u32 {v(vT)}, {v(vT+1)}, 4, {v(vT)}")
    a(f"s_lshl_b32 s{sT1}, s{sA}, 3")
    a(f"s_add_u32 s{sT3}, s{sT1}, s{sG}")
    a(f"s_lshl_b32 s{sT1}, s{sT3}, 7")
    a(f"s_lshl_b32 s{sT2}, s{sWV}, 20")
    a(f"s_add_u32 s{sT1}, s{sT1}, s{sT2}")
    a(f"v_add_u32 {v(vT+16)}, s{sT1}, {v(vT)}")
    a(f"v_add_u32 {v(vT+17)}, 0x2000, {v(vT+16)}")
    a(f"s_lshl_b32 s{sT0}, s{sT3}, 2")
    a(f"s_add_u32 s{sT0}, s{sT0}, s{sWV}")
    a(f"s_lshl_b32 s{sT1}, s{sT0}, 11")
    a(f"s_add_u32 s{sT1}, s{sT1}, {WS_S2}")
    a(f"v_add_u32 {v(vT+3)}, s{sT1}, {v(vVOFF)}")
    a(f"s_lshl_b32 s{sT1}, s{sT0}, 12")
    a(f"s_add_u32 s{sT1}, s{sT1}, {WS_P2}")
    a(f"v_add_u32 {v(vT+2)}, s{sT1}, {v(vVOFF)}")
    for k in range(4): a(f"v_mov_b32 {v(vT+4+k)}, -1")
    a("s_waitcnt lgkmcnt(0)")
    a(f"s_load_dwordx2 {sp(sTAGL)}, {sp(sWS)}, {WS_EP}")
    vmem(f"global_load_dwordx4 {vr(vW,4)}, {v(vVOFF)}, {sp(sX)}", "x")
    W0 = vW + 4
    for j in range(8):
        if "nowq" in G.abl:
            for r in range(8): a(f"v_mov_b32 {v(W0+8*j+r)}, 0")
        else:
            vmem(f"global_load_dwordx4 {vr(W0+8*j,4)}, {v(vT+16)}, {sp(sWQ)} nt", ("wq", j))
            vmem(f"global_load_dwordx4 {vr(W0+8*j+4,4)}, {v(vT+17)}, {sp(sWQ)} nt", ("wq", j))
        if j < 7:
            a(f"v_add_u32 {v(vT+16)}, 0x4000, {v(vT+16)}")
            a(f"v_add_u32 {v(vT+17)}, 0x4000, {v(vT+17)}")
    for k in range(0 if "noclrP" in G.abl else 4):
        vmem(f"global_store_dwordx4 {v(vT+2)}, {vr(vT+4,4)}, {sp(sWS)} offset:{1024*k} {G.clrf}", "clr")
    for k in range(0 if "noclrS" in G.abl else 2):
        vmem(f"global_store_dwordx4 {v(vT+3)}, {vr(vT+4,4)}, {sp(sWS)} offset:{1024*k} {G.clrf}", "clr")
    a(f"s_lshl_b32 s{sT1}, s{sA}, 2")
    a(f"s_and_b32 s{sT2}, s{sG}, 3")
    a(f"s_add_u32 s{sT1}, s{sT1}, s{sT2}")
    a(f"s_mul_i32 s{sT1}, s{sT1}, {CNT_STRIDE}")
    a(f"s_add_u32 s{sT1}, s{sT1}, {WS_CNT}")
    a(f"v_mov_b32 {v(vT+9)}, s{sT1}")
    a(f"v_mov_b32 {v(vT+10)}, 0x{CNT_BIAS:x}")
    a("s_mov_b64 exec, 1")
    vmem(f"global_store_dword {v(vT+9)}, {v(vT+10)}, {sp(sWS)} sc1", "clr")
    a("s_mov_b64 exec, -1")
    if G.early:
        stream_setup(False)
        a(f"s_cmp_eq_u32 s{sWV}, 0")
        a(f"s_cselect_b32 s{sSTAT}, 0x{LIM:x}, s{sSTAT}")
        for n in range(A):
            issue_tile(n, f"s{sSTAT}", ("e", n))
            a(f"s_add_u32 s{sSTAT}, s{sSTAT}, {TSTR}")
    wait_vm("x")
    lab("L_ln1")
    stamp(0)
    unpack8(F, vW)
    ln_stats(F)
    for j in range(4):
        ln_apply2(F+2*j, F+2*j+1, vT)
        a(f"v_cvt_pk_bf16_f32 {v(vW+j)}, {v(F+2*j)}, {v(F+2*j+1)}")
    a(f"ds_write_b128 {v(vVOFF)}, {vr(vW,4)} offset:{LDS_XN}")
    a(f"s_mov_b32 s{sT1}, 0x05040100")
    a(f"s_mov_b32 s{sT2}, 0x07060302")
    a("s_waitcnt lgkmcnt(0)")
    a(f"s_mul_i32 s{sTAGL}, s{sTAGL}, {LCG_A}")
    a(f"s_add_u32 s{sTAGL}, s{sTAGL}, {LCG_C}")
    a(f"s_mul_i32 s{sTAGH}, s{sTAGH}, {LCG_A}")
    a(f"s_add_u32 s{sTAGH}, s{sTAGH}, {LCG_C}")
    a(f"s_cmp_lg_u32 s{sBH}, 0")
    a("s_cbranch_scc1 L_svc")
    XN = vX
    a(f"v_lshrrev_b32 {v(vT+1)}, 3, {v(vLANE)}")
    a(f"s_lshl_b32 s{sT0}, s{sWV}, 8")
    a(f"v_lshl_add_u32 {v(vT+1)}, {v(vT+1)}, 5, s{sT0}")
    a(f"ds_read_b128 {vr(XN,4)}, {v(vT+1)} offset:{LDS_XN}")
    a(f"ds_read_b128 {vr(XN+4,4)}, {v(vT+1)} offset:{LDS_XN+16}")
    ACC = vQ; PT = vQ + 8
    for j in range(8):
        wait_vm(("wq", j))
        if j == 0: stamp(1)
        ra, rb = W0 + 8*j, W0 + 8*j + 4
        for d in range(4):
            a(f"v_perm_b32 {v(PT+2*d)}, {v(rb+d)}, {v(ra+d)}, s{sT1}")
            a(f"v_perm_b32 {v(PT+2*d+1)}, {v(rb+d)}, {v(ra+d)}, s{sT2}")
        if j == 0: a("s_waitcnt lgkmcnt(0)")
        for cidx in range(8):
            cc = "0" if j == 0 else v(ACC+cidx)
            a(f"v_dot2_f32_bf16 {v(ACC+cidx)}, {v(PT+cidx)}, {v(XN+j)}, {cc}")
    a(f"v_and_b32 {v(vT)}, 7, {v(vLANE)}")
    a(f"v_lshrrev_b32 {v(vT+1)}, 4, {v(vLANE)}")
    a(f"v_lshl_add_u32 {v(vT)}, {v(vT)}, 2, {v(vT+1)}")
    a(f"v_lshl_add_u32 {v(vT)}, {v(vT)}, 3, s{sT0}")
    for cidx in range(4):
        a(f"v_permlane32_swap_b32 {v(ACC+cidx)}, {v(ACC+cidx+4)}")
    nop(1)
    for cidx in range(4):
        a(f"v_add_f32 {v(ACC+cidx)}, {v(ACC+cidx)}, {v(ACC+cidx+4)}")
    nop(1)
    for cidx in range(2):
        a(f"v_permlane16_swap_b32 {v(ACC+cidx)}, {v(ACC+cidx+2)}")
    nop(1)
    for cidx in range(2):
        a(f"v_add_f32 {v(ACC+cidx)}, {v(ACC+cidx)}, {v(ACC+cidx+2)}")
    nop(1)
    a(f"v_add_f32_dpp {v(ACC)}, {v(ACC)}, {v(ACC)} row_ror:8 row_mask:0xf bank_mask:0xf")
    a(f"v_add_f32_dpp {v(ACC+1)}, {v(ACC+1)}, {v(ACC+1)} row_ror:8 row_mask:0xf bank_mask:0xf")
    a(f"ds_write_b64 {v(vT)}, {vr(ACC,2)} offset:{LDS_QP}")
    stamp(2)
    wait_vm("clr")
    a("s_waitcnt lgkmcnt(0)")
    a("s_barrier")
    a(f"s_cmp_lg_u32 s{sWV}, 0")
    a("s_cbranch_scc1 " + ("L_fill2" if G.early else "L_stream"))
    a(f"v_and_b32 {v(vT)}, 31, {v(vLANE)}")
    a(f"v_lshlrev_b32 {v(vT+1)}, 3, {v(vT)}")
    for w in range(4):
        a(f"ds_read_b64 {vr(ACC+2*w,2)}, {v(vT+1)} offset:{LDS_QP + 256*w}")
    a(f"s_lshl_b32 s{sT3}, s{sT3}, 9")
    a(f"v_lshl_add_u32 {v(vT+21)}, {v(vT)}, 4, s{sT3}")
    a(f"s_and_b32 s{sT0}, s{sTAGL}, 0xffff0000")
    a(f"v_mov_b32 {v(ACC+9)}, s{sTAGH}")
    a(f"v_mov_b32 {v(ACC+11)}, s{sTAGH}")
    a("s_waitcnt lgkmcnt(0)")
    a(f"v_add_f32 {v(ACC)}, {v(ACC)}, {v(ACC+2)}")
    a(f"v_add_f32 {v(ACC+1)}, {v(ACC+1)}, {v(ACC+3)}")
    a(f"v_add_f32 {v(ACC+4)}, {v(ACC+4)}, {v(ACC+6)}")
    a(f"v_add_f32 {v(ACC+5)}, {v(ACC+5)}, {v(ACC+7)}")
    a(f"v_add_f32 {v(ACC)}, {v(ACC)}, {v(ACC+4)}")
    a(f"v_add_f32 {v(ACC+1)}, {v(ACC+1)}, {v(ACC+5)}")
    a(f"v_cvt_pk_bf16_f32 {v(ACC)}, {v(ACC)}, {v(ACC+1)}")
    a(f"v_lshrrev_b32 {v(ACC+10)}, 16, {v(ACC)}")
    a(f"v_and_b32 {v(ACC+8)}, 0xffff, {v(ACC)}")
    a(f"v_or_b32 {v(ACC+10)}, s{sT0}, {v(ACC+10)}")
    a(f"v_or_b32 {v(ACC+8)}, s{sT0}, {v(ACC+8)}")
    a("s_mov_b64 exec, 0xffffffff")
    a(f"global_store_dwordx4 {v(vT+21)}, {vr(ACC+8,4)}, {sp(sWS)} offset:{WS_Q} sc1")
    a("s_mov_b64 exec, -1")
    lab("L_svc")
    stamp(3)
    a(f"s_and_b32 s{sT0}, s{sTAGL}, 0xffff0000")
    a(f"s_lshl_b32 s{sT2}, s{sG}, 12")
    a(f"v_lshl_add_u32 {v(vT+22)}, {v(vLANE)}, 6, s{sT2}")
    unpack8(F, vW)
    ln_stats(F)
    a(f"s_lshl_b32 s{sT2}, s{sC0}, 1")
    a(f"v_mov_b32 {v(vT+1)}, s{sT2}")
    a(f"ds_read_b32 {v(vT+4)}, {v(vT+1)} offset:{LDS_XN}")
    a(f"s_load_dword s{sXD}, {sp(sX)}, s{sT2}")
    h0, h1 = vG, vG+1
    a("s_waitcnt lgkmcnt(0)")
    a(f"v_lshlrev_b32 {v(h0)}, 16, {v(vT+4)}")
    a(f"v_and_b32 {v(h1)}, 0xffff0000, {v(vT+4)}")
    ln_apply2(h0, h1, vT)
    rbf2(h0, h1)
    a(f"s_mov_b32 s{sT3}, 0")
    QB = vW + 8
    if G.first_sleep: a(f"s_sleep {G.first_sleep}")
    if G.first_sleep2: a(f"s_sleep {G.first_sleep2}")
    if G.lightpoll:
        a(f"v_and_b32 {v(vT+23)}, 7, {v(vLANE)}")
        a(f"s_lshl_b32 s{sT2}, s{sG}, 12")
        a(f"v_lshl_add_u32 {v(vT+23)}, {v(vT+23)}, 9, s{sT2}")
        a("s_mov_b64 exec, 0xff")
        lab("L_pollL")
        a(f"global_load_dwordx2 {vr(QB,2)}, {v(vT+23)}, {sp(sWS)} offset:{WS_Q + 504} sc1")
        a("s_waitcnt vmcnt(0)")
        a(f"v_cmp_ne_u32 vcc, s{sTAGH}, {v(QB+1)}")
        a("s_cbranch_vccz L_pollL_done")
        a(f"s_sleep {G.lp_sleep}")
        a(f"s_add_u32 s{sT3}, s{sT3}, 1")
        a(f"s_cmp_lt_u32 s{sT3}, {POLL_MAX}")
        a("s_cbranch_scc1 L_pollL")
        lab("L_pollL_done")
        a("s_mov_b64 exec, -1")
        a(f"s_mov_b32 s{sT3}, 0")
    lab("L_pollQ")
    for k in range(4):
        a(f"global_load_dwordx4 {vr(QB+4*k,4)}, {v(vT+22)}, {sp(sWS)} offset:{WS_Q + 16*k} sc1")
    a("s_waitcnt vmcnt(0)")
    a(f"v_xor_b32 {v(vT)}, s{sT0}, {v(QB)}")
    a(f"v_xor_b32 {v(vT+1)}, s{sTAGH}, {v(QB+1)}")
    for k in range(1, 8):
        a(f"v_xor_b32 {v(vT+2)}, s{sT0}, {v(QB+2*k)}")
        a(f"v_xor_b32 {v(vT+3)}, s{sTAGH}, {v(QB+2*k+1)}")
        a(f"v_or_b32 {v(vT)}, {v(vT)}, {v(vT+2)}")
        a(f"v_or_b32 {v(vT+1)}, {v(vT+1)}, {v(vT+3)}")
    a(f"v_lshrrev_b32 {v(vT)}, 16, {v(vT)}")
    a(f"v_or_b32 {v(vT)}, {v(vT)}, {v(vT+1)}")
    a(f"v_cmp_ne_u32 vcc, 0, {v(vT)}")
    a("s_and_b64 exec, exec, vcc")
    a("s_cbranch_execz L_pollQ_done")
    poll_tail("L_pollQ")
    lab("L_pollQ_done")
    a("s_mov_b64 exec, -1")
    stamp(4)
    for k in range(4):
        a(f"v_perm_b32 {v(vQ+k)}, {v(QB+4*k+2)}, {v(QB+4*k)}, s{sT1}")
    a(f"ds_write_b128 {v(vVOFF)}, {vr(vQ,4)} offset:{LDS_Q}")
    a("s_waitcnt lgkmcnt(0)")
    a("s_barrier")
    stamp(5)
    if G.stamps: a(f"s_memrealtime {sp(sTS0+2)}")
    G.vm = []
    wo_issue()
    a(f"v_mov_b32 {v(vT+20)}, 0")
    a(f"global_load_ushort {v(vMASK)}, {v(vT+20)}, {sp(sB2)}")
    y0, y1 = vX+2, vX+3
    a(f"v_mov_b32 {v(y0)}, 0")
    a(f"v_mov_b32 {v(y1)}, 0")
    K1 = 2.0 * math.sqrt(2.0 / math.pi) * LOG2E
    a(f"s_mov_b32 s{sT1}, 0x{f2u(-K1*0.044715):08x}")
    a(f"v_mov_b32 {v(vT+5)}, 0x{f2u(-K1):08x}")
    a(f"v_lshlrev_b32 {v(vT+6)}, 3, {v(vLANE)}")
    a(f"s_mov_b32 s{sT2}, 0")
    BW = vW
    wv1, bv1, wv2 = vX+4, vX+5, vX+6
    u0, u1, e0, e1 = vT, vT+1, vT+2, vT+3
    lab("L_bloop")
    a(f"global_load_dwordx2 {vr(BW,2)}, {v(vT+6)}, {sp(sW1)}")
    a(f"global_load_dwordx2 {vr(BW+2,2)}, {v(vT+6)}, {sp(sB1)}")
    a(f"global_load_dwordx2 {vr(BW+4,2)}, {v(vT+6)}, {sp(sW2)}")
    a(f"v_add_u32 {v(vT+6)}, 512, {v(vT+6)}")
    a("s_waitcnt vmcnt(0)")
    for j in range(4):
        d, hi = j // 2, j % 2
        for (dst, src) in ((wv1, BW+d), (bv1, BW+2+d), (wv2, BW+4+d)):
            if hi: a(f"v_and_b32 {v(dst)}, 0xffff0000, {v(src)}")
            else:  a(f"v_lshlrev_b32 {v(dst)}, 16, {v(src)}")
        a(f"v_mul_f32 {v(u0)}, {v(h0)}, {v(wv1)}")
        a(f"v_mul_f32 {v(u1)}, {v(h1)}, {v(wv1)}")
        rbf2(u0, u1)
        a(f"v_add_f32 {v(u0)}, {v(u0)}, {v(bv1)}")
        a(f"v_add_f32 {v(u1)}, {v(u1)}, {v(bv1)}")
        rbf2(u0, u1)
        a(f"v_mul_f32 {v(e0)}, {v(u0)}, {v(u0)}")
        a(f"v_mul_f32 {v(e1)}, {v(u1)}, {v(u1)}")
        a(f"v_fma_f32 {v(e0)}, {v(e0)}, s{sT1}, {v(vT+5)}")
        a(f"v_fma_f32 {v(e1)}, {v(e1)}, s{sT1}, {v(vT+5)}")
        a(f"v_mul_f32 {v(e0)}, {v(e0)}, {v(u0)}")
        a(f"v_mul_f32 {v(e1)}, {v(e1)}, {v(u1)}")
        a(f"v_exp_f32 {v(e0)}, {v(e0)}")
        a(f"v_exp_f32 {v(e1)}, {v(e1)}")
        nop(1)
        a(f"v_add_f32 {v(e0)}, 1.0, {v(e0)}")
        a(f"v_add_f32 {v(e1)}, 1.0, {v(e1)}")
        a(f"v_rcp_f32 {v(e0)}, {v(e0)}")
        a(f"v_rcp_f32 {v(e1)}, {v(e1)}")
        nop(1)
        a(f"v_mul_f32 {v(e0)}, {v(e0)}, {v(u0)}")
        a(f"v_mul_f32 {v(e1)}, {v(e1)}, {v(u1)}")
        rbf2(e0, e1)
        a(f"v_fmac_f32 {v(y0)}, {v(e0)}, {v(wv2)}")
        a(f"v_fmac_f32 {v(y1)}, {v(e1)}, {v(wv2)}")
    a(f"s_add_u32 s{sT2}, s{sT2}, 1")
    a(f"s_cmp_lt_u32 s{sT2}, {1 if 'nob' in G.abl else 7}")
    a("s_cbranch_scc1 L_bloop")
    allred64("v_add_f32", y0, vT)
    allred64("v_add_f32", y1, vT)
    a(f"v_lshlrev_b32 {v(vT+2)}, 16, {v(vMASK)}")
    rbf2(y0, y1)
    a(f"v_add_f32 {v(y0)}, {v(y0)}, {v(vT+2)}")
    a(f"v_add_f32 {v(y1)}, {v(y1)}, {v(vT+2)}")
    rbf2(y0, y1)
    g0, g1 = vG, vG+1
    a(f"v_mul_f32 {v(e0)}, s{sLOG2E}, {v(y0)}")
    a(f"v_mul_f32 {v(e1)}, s{sLOG2E}, {v(y1)}")
    a(f"v_exp_f32 {v(e0)}, -{v(e0)}")
    a(f"v_exp_f32 {v(e1)}, -{v(e1)}")
    nop(1)
    a(f"v_add_f32 {v(e0)}, 1.0, {v(e0)}")
    a(f"v_add_f32 {v(e1)}, 1.0, {v(e1)}")
    a(f"v_rcp_f32 {v(e0)}, {v(e0)}")
    a(f"v_rcp_f32 {v(e1)}, {v(e1)}")
    nop(1)
    a(f"v_mul_f32 {v(g0)}, {v(y0)}, {v(e0)}")
    a(f"v_mul_f32 {v(g1)}, {v(y1)}, {v(e1)}")
    rbf2(g0, g1)
    PA = vW
    a(f"v_lshlrev_b32 {v(PA+8)}, 9, {v(vLANE)}")
    a(f"s_mov_b32 s{sT3}, 0")
    lab("L_pollA")
    a(f"global_load_dwordx2 {vr(PA,2)}, {v(PA+8)}, {sp(sWS)} offset:{WS_Q} sc1")
    a("s_waitcnt vmcnt(0)")
    a(f"v_xor_b32 {v(vT)}, s{sT0}, {v(PA)}")
    a(f"v_xor_b32 {v(vT+1)}, s{sTAGH}, {v(PA+1)}")
    a(f"v_lshrrev_b32 {v(vT)}, 16, {v(vT)}")
    a(f"v_or_b32 {v(vT)}, {v(vT)}, {v(vT+1)}")
    a(f"v_cmp_ne_u32 vcc, 0, {v(vT)}")
    a("s_cbranch_vccz L_pollA_done")
    poll_tail("L_pollA")
    lab("L_pollA_done")
    if G.tlbwarm and G.dyn:
        a(f"s_add_u32 s{sT1}, s{sBH}, s{sA}")
        a(f"s_and_b32 s{sT1}, s{sT1}, 3")
        a(f"s_lshl_b32 s{sT1}, s{sT1}, 22")
        a(f"s_lshl_b32 s{sT2}, s{sG}, 24")
        a(f"s_add_u32 s{sT1}, s{sT1}, s{sT2}")
        a(f"s_add_u32 s{sT1}, s{sT1}, {REG - 64}")
        a(f"v_and_b32 {v(vT)}, 7, {v(vLANE)}")
        a(f"v_lshlrev_b32 {v(vT)}, 16, {v(vT)}")
        a(f"v_sub_u32 {v(vT)}, s{sT1}, {v(vT)}")
        a(f"v_bfe_u32 {v(vT+1)}, {v(vLANE)}, 3, 1")
        a(f"v_lshl_add_u32 {v(vT)}, {v(vT+1)}, 21, {v(vT)}")
        a("s_mov_b64 exec, 0xffff")
        a(f"global_load_dword {v(vT+2)}, {v(vT)}, {sp(sK)} nt")
        a(f"global_load_dword {v(vT+3)}, {v(vT)}, {sp(sV)} nt")
        a("s_mov_b64 exec, -1")
        a("s_waitcnt vmcnt(0)")
    tail_addr()
    a(f"s_lshl_b32 s{sT2}, s{sG}, 5")
    a(f"s_add_u32 s{sT2}, s{sT2}, s{sI}")
    a(f"s_lshl_b32 s{sT1}, s{sT2}, 12")
    a(f"s_add_u32 s{sT1}, s{sT1}, {WS_P2}")
    a(f"v_lshrrev_b32 {v(vT)}, 2, {v(vLANE)}")
    a(f"v_lshl_add_u32 {v(vA+5)}, {v(vT)}, 7, s{sT1}")
    a(f"v_and_b32 {v(vT)}, 3, {v(vLANE)}")
    a(f"v_lshl_add_u32 {v(vA+6)}, {v(vT)}, 4, {v(vA+5)}")
    a(f"s_lshl_b32 s{sT1}, s{sT2}, 11")
    a(f"s_add_u32 s{sT1}, s{sT1}, {WS_S2}")
    a(f"v_and_b32 {v(vT)}, 15, {v(vLANE)}")
    a(f"v_lshlrev_b32 {v(vT)}, 5, {v(vT)}")
    a(f"v_bfe_u32 {v(vT+1)}, {v(vLANE)}, 4, 1")
    a(f"v_lshl_add_u32 {v(vT)}, {v(vT+1)}, 4, {v(vT)}")
    a(f"v_add_u32 {v(vA+7)}, s{sT1}, {v(vT)}")
    a(f"s_lshl_b32 s{sT1}, s{sC0}, 2")
    a(f"s_add_u32 s{sT1}, s{sT1}, {WS_S2}")
    a(f"v_lshl_add_u32 {v(vPA)}, {v(vLANE)}, 11, s{sT1}")
    a(f"v_add_u32 {v(vPA+1)}, 0x20000, {v(vPA)}")
    a(f"v_add_u32 {v(vPA+2)}, 0x40000, {v(vPA)}")
    a(f"v_add_u32 {v(vPA+3)}, 0x60000, {v(vPA)}")
    a(f"v_and_b32 {v(vT)}, 15, {v(vLANE)}")
    a(f"v_and_b32 {v(vT+1)}, 1, {v(vLANE)}")
    a(f"v_cmp_eq_u32 vcc, 1, {v(vT+1)}")
    a(f"v_mov_b32 {v(vT+2)}, 0xffff")
    a(f"v_mov_b32 {v(vT+3)}, 0xffff0000")
    a(f"v_cndmask_b32 {v(vT+2)}, {v(vT+2)}, {v(vT+3)}, vcc")
    a(f"v_lshrrev_b32 {v(vT)}, 1, {v(vT)}")
    for r in range(4):
        a(f"v_cmp_eq_u32 vcc, {r}, {v(vT)}")
        nop(2)
        a(f"v_cndmask_b32 {v(vMASK+r)}, 0, {v(vT+2)}, vcc")
    if G.stamps: a(f"s_memrealtime s[100:101]")
    a("s_branch L_tail")

    lab("L_stream")
    G.vm = []
    stream_setup(True)
    def setup_consts():
        Z = 0x0c0c0c0c
        lo_to_lo, lo_to_hi = 0x0c0c0100, 0x01000c0c
        hi_to_lo, hi_to_hi = 0x0c0c0302, 0x03020c0c
        a(f"v_and_b32 {v(vT+1)}, 3, {v(vLANE)}")
        for k in range(4): a(f"v_mov_b32 {v(vSEL+k)}, 0x{Z:08x}")
        for jp, (sr, val_lo, val_hi) in enumerate(((0, lo_to_lo, hi_to_lo), (0, lo_to_hi, hi_to_hi), (1, lo_to_lo, hi_to_lo), (1, lo_to_hi, hi_to_hi))):
            a(f"v_cmp_eq_u32 vcc, {jp}, {v(vT+1)}")
            a(f"v_mov_b32 {v(vT+2)}, 0x{val_lo:08x}")
            a(f"v_mov_b32 {v(vT+3)}, 0x{val_hi:08x}")
            a(f"v_cndmask_b32 {v(vSEL+sr)}, {v(vSEL+sr)}, {v(vT+2)}, vcc")
            a(f"v_cndmask_b32 {v(vSEL+2+sr)}, {v(vSEL+2+sr)}, {v(vT+3)}, vcc")
        for k in range(8): a(f"v_mov_b32 {v(vO+k)}, 0")
        a(f"v_mov_b32 {v(vNM)}, 0")
        a(f"v_mov_b32 {v(vL)}, 0")
        a(f"s_mov_b32 s{sTHR}, 0xff800000")
        a(f"s_mov_b32 s{sFLOOR}, 0xff7fffff")
        a(f"s_mov_b32 s{sSCALE}, 0x{f2u(SCALE):08x}")
        a(f"s_mov_b32 s{sEXH}, 0")
        a(f"s_mov_b32 s{sN}, {R}")
        if G.pairpool:
            a(f"s_lshr_b32 s{sT1}, s{sA}, 1")
        else:
            a(f"s_add_u32 s{sT1}, s{sBH}, s{sA}")
            a(f"s_and_b32 s{sT1}, s{sT1}, 3")
        if G.dyn:
            a(f"s_lshl_b32 s{sDYNB}, s{sT1}, 22")
            a(f"s_add_u32 s{sDYNB}, s{sDYNB}, {NS*TSTR}")
        else:
            a(f"s_add_u32 s{sDYNB}, s{sA}, 1")
            a(f"s_lshl_b32 s{sDYNB}, s{sDYNB}, 21")
        a(f"s_lshl_b32 s{sT2}, s{sG}, 2")
        a(f"s_add_u32 s{sT2}, s{sT2}, s{sT1}")
        a(f"s_mul_i32 s{sCNTOFF}, s{sT2}, {CNT_STRIDE}")
        a(f"s_add_u32 s{sCNTOFF}, s{sCNTOFF}, {WS_CNT}")
        for k in range(4): a(f"s_mov_b32 s{sTK+k}, 0")
        a(f"v_bfe_u32 {v(vT+8)}, {v(vLANE)}, 2, 2")
        a(f"v_lshlrev_b32 {v(vT+8)}, 8, {v(vT+8)}")
        a(f"v_lshrrev_b32 {v(vT+1)}, 4, {v(vLANE)}")
        a(f"v_lshl_add_u32 {v(vT+8)}, {v(vT+1)}, 4, {v(vT+8)}")
    for n in range(R):
        if n >= A:
            wait_vm(("K" if G.fillk else "V", n - A))
        issue_tile(n, f"s{sSTAT}", n)
        a(f"s_add_u32 s{sSTAT}, s{sSTAT}, {TSTR}")
        if n == A - 1:
            lab("L_fill2")
            setup_consts()
        if n == 3:
            tail_addr()
        if G.stamps and not G.sstamps and not G.tstamps and n in (1, 3, 5, 7, 9, 11): a(f"s_memrealtime s[{4+2*(n//2)}:{5+2*(n//2)}]")
    a("s_barrier")
    for t in range(4):
        a(f"ds_read_b128 {vr(vQ+4*t,4)}, {v(vT+8)} offset:{LDS_Q + 64*t}")
    if G.stamps: a(f"s_memrealtime {sp(sTS0+2)}")
    a("s_waitcnt lgkmcnt(0)")

    rare_id = [0]
    def compute_qk(slot):
        for t in range(4):
            cc = "0" if t == 0 else vr(vS, 4)
            a(f"v_mfma_f32_16x16x32_bf16 {vr(vS,4)}, {slot_reg(slot,4*t,4)}, {vr(vQ+4*t,4)}, {cc}")
    def softmax():
        rid = rare_id[0]; rare_id[0] += 1
        p01, p23 = vT, vT+1
        b = vT + 2
        a(f"v_cvt_pk_bf16_f32 {v(p01)}, {v(vS)}, {v(vS+1)}")
        a(f"v_cvt_pk_bf16_f32 {v(p23)}, {v(vS+2)}, {v(vS+3)}")
        a(f"v_lshlrev_b32 {v(b)}, 16, {v(p01)}")
        a(f"v_and_b32 {v(b+1)}, 0xffff0000, {v(p01)}")
        a(f"v_lshlrev_b32 {v(b+2)}, 16, {v(p23)}")
        a(f"v_and_b32 {v(b+3)}, 0xffff0000, {v(p23)}")
        for k in range(4): a(f"v_mul_f32 {v(b+k)}, s{sSCALE}, {v(b+k)}")
        a(f"v_cvt_pk_bf16_f32 {v(p01)}, {v(b)}, {v(b+1)}")
        a(f"v_cvt_pk_bf16_f32 {v(p23)}, {v(b+2)}, {v(b+3)}")
        a(f"v_lshlrev_b32 {v(b)}, 16, {v(p01)}")
        a(f"v_and_b32 {v(b+1)}, 0xffff0000, {v(p01)}")
        a(f"v_lshlrev_b32 {v(b+2)}, 16, {v(p23)}")
        a(f"v_and_b32 {v(b+3)}, 0xffff0000, {v(p23)}")
        for k in range(4): a(f"v_fma_f32 {v(b+k)}, {v(b+k)}, s{sLOG2E}, {v(vNM)}")
        mx = vT + 6
        a(f"v_max3_f32 {v(mx)}, {v(b)}, {v(b+1)}, {v(b+2)}")
        a(f"v_max_f32 {v(mx)}, {v(mx)}, {v(b+3)}")
        a(f"v_cmp_lt_f32 vcc, s{sTHR}, {v(mx)}")
        a(f"s_cbranch_vccz L_back{rid}")
        a(f"s_call_b64 {sp(sPC)}, L_rare")
        lab(f"L_back{rid}")
        for k in range(4): a(f"v_exp_f32 {v(b+k)}, {v(b+k)}")
        nop(1)
        a(f"v_cvt_pk_bf16_f32 {v(p01)}, {v(b)}, {v(b+1)}")
        a(f"v_cvt_pk_bf16_f32 {v(p23)}, {v(b+2)}, {v(b+3)}")
        a(f"v_add_f32 {v(b)}, {v(b)}, {v(b+1)}")
        a(f"v_add_f32 {v(b+2)}, {v(b+2)}, {v(b+3)}")
        for k in range(4): a(f"v_perm_b32 {v(vX+k)}, {v(p01)}, {v(p01)}, {v(vSEL+k)}")
        for k in range(4): a(f"v_perm_b32 {v(vX+4+k)}, {v(p23)}, {v(p23)}, {v(vSEL+k)}")
        a(f"v_add_f32 {v(b)}, {v(b)}, {v(b+2)}")
        a(f"v_add_f32 {v(vL)}, {v(vL)}, {v(b)}")
    def compute_pv(slot):
        for u in range(4):
            a(f"v_mfma_f32_16x16x16_bf16 {vr(vO,4)}, {vr(vX+2*u,2)}, {slot_reg(slot,16+4*u,2)}, {vr(vO,4)}")
            a(f"v_mfma_f32_16x16x16_bf16 {vr(vO+4,4)}, {vr(vX+2*u,2)}, {slot_reg(slot,16+4*u+2,2)}, {vr(vO+4,4)}")

    k_iss = 0
    for n in range(R + E - A):
        slot = n if n < R else n - R
        c(f"catch-up step {n}")
        wait_vm(("K", n))
        compute_qk(slot)
        nop(8)
        softmax()
        wait_vm(("V", n))
        compute_pv(slot)
        if n in G.cu_issue:
            assert k_iss <= n
            next_tile(k_iss, R + k_iss, track=True)
            k_iss += 1
    assert k_iss == E
    lab("L_loop")
    for k in range(4):
        s = (E - A + k) % 4
        c(f"steady step slot {s}")
        ns = (s + A) % 4
        a(f"s_cmp_ge_u32 s{sOFF+s}, 0x{LIM:x}")
        a("s_cbranch_scc1 L_done")
        a(f"s_waitcnt vmcnt({8*A-4})")
        if G.nocomp < 2: compute_qk(s)
        next_tile(ns)
        if G.nocomp < 2: softmax()
        a(f"s_waitcnt vmcnt({8*A})")
        if G.nocomp < 1: compute_pv(s)
    a("s_branch L_loop")

    lab("L_rare")
    b = vT + 2; mx = vT + 6; t = vT + 7; f = vT + 8
    allred_rows("v_max_f32", mx, t)
    a(f"v_max_f32 {v(mx)}, s{sFLOOR}, {v(mx)}")
    for k in range(4): a(f"v_sub_f32 {v(b+k)}, {v(b+k)}, {v(mx)}")
    a(f"v_sub_f32 {v(vNM)}, {v(vNM)}, {v(mx)}")
    a(f"v_max_f32 {v(t)}, 0, {v(mx)}")
    a(f"v_exp_f32 {v(t)}, -{v(t)}")
    nop(1)
    a(f"v_mul_f32 {v(vL)}, {v(vL)}, {v(t)}")
    nop(1)
    for h in range(4):
        a(f"v_mov_b32_dpp {v(f)}, {v(t)} row_newbcast:{4*h} row_mask:0x{1<<h:x} bank_mask:0xf")
    for k in range(8): a(f"v_mul_f32 {v(vO+k)}, {v(vO+k)}, {v(f)}")
    a(f"s_mov_b32 s{sTHR}, 0x{f2u(G.T):08x}")
    a(f"s_mov_b32 s{sFLOOR}, 0")
    a(f"s_setpc_b64 {sp(sPC)}")

    def stageA():
        a(f"v_cmp_gt_u32 vcc, 32, {v(vLANE)}")
        a("s_waitcnt lgkmcnt(0)")
        tstamp(0)
        a("s_barrier")
        if G.tstamps:
            tstamp(1); a("s_waitcnt lgkmcnt(0)")
        a(f"ds_read_b64 {vr(vQ+2,2)}, {v(vA+3)} offset:{LDS_ML+8}")
        a(f"ds_read_b128 {vr(vQ+4,4)}, {v(vA+3)} offset:{LDS_ML+16}")
        OO = vT + 4
        for w in range(1, 4):
            a(f"ds_read_b128 {vr(OO+4*w,4)}, {v(vA+4)} offset:{LDS_O + 2048*w}")
        a("s_waitcnt lgkmcnt(3)")
        nmM = vQ + 8
        a(f"v_min3_f32 {v(nmM)}, {v(vQ+2)}, {v(vQ+4)}, {v(vQ+6)}")
        for k in range(1, 4): a(f"v_sub_f32 {v(vQ+2*k)}, {v(nmM)}, {v(vQ+2*k)}")
        for k in range(1, 4): a(f"v_exp_f32 {v(vQ+2*k)}, {v(vQ+2*k)}")
        nop(1)
        a(f"v_mul_f32 {v(nmM+1)}, {v(vQ+2)}, {v(vQ+3)}")
        for k in range(2, 4): a(f"v_fmac_f32 {v(nmM+1)}, {v(vQ+2*k)}, {v(vQ+2*k+1)}")
        a("s_waitcnt lgkmcnt(0)")
        RES = vQ + 12
        for e in range(4): a(f"v_mul_f32 {v(RES+e)}, {v(vQ+2)}, {v(OO+4+e)}")
        for k in range(2, 4):
            for e in range(4): a(f"v_fmac_f32 {v(RES+e)}, {v(vQ+2*k)}, {v(OO+4*k+e)}")
        a(f"v_cndmask_b32 {v(RES)}, {v(nmM)}, {v(RES)}, vcc")
        a(f"v_cndmask_b32 {v(RES+1)}, {v(nmM+1)}, {v(RES+1)}, vcc")
        for r in range(4):
            a(f"v_min_u32 {v(RES+r)}, -2, {v(RES+r)}")
        a("s_mov_b32 exec_hi, 0xff")
        a(f"global_store_dwordx4 {v(vA)}, {vr(RES,4)}, {sp(sWS)} sc1")
        a("s_mov_b64 exec, -1")
        tstamp(2)
    lab("L_done")
    if G.stamps: a(f"s_memrealtime s[100:101]")
    allred_rows("v_add_f32", vL, vT)
    a(f"ds_write_b128 {v(vA+1)}, {vr(vO,4)} offset:{LDS_O}")
    a(f"ds_write_b128 {v(vA+1)}, {vr(vO+4,4)} offset:{LDS_O+16}")
    a(f"ds_write_b64 {v(vA+2)}, {vr(vNM,2)} offset:{LDS_ML}")
    stageA()
    a("s_branch L_fin")
    lab("L_tail")
    stageA()
    PB = vT + 4
    a(f"s_mov_b32 s{sT3}, 0")
    lab("L_pollB")
    a(f"global_load_dwordx4 {vr(PB,4)}, {v(vA+6)}, {sp(sWS)} sc1")
    a(f"global_load_dwordx4 {vr(PB+4,4)}, {v(vA+6)}, {sp(sWS)} offset:2048 sc1")
    a(f"global_load_dwordx2 {vr(PB+8,2)}, {v(vA+5)}, {sp(sWS)} offset:64 sc1")
    a(f"global_load_dwordx2 {vr(PB+10,2)}, {v(vA+5)}, {sp(sWS)} offset:2112 sc1")
    a("s_waitcnt vmcnt(0)")
    a(f"v_max_u32 {v(vT)}, {v(PB)}, {v(PB+1)}")
    for k in range(2, 12, 2):
        a(f"v_max3_u32 {v(vT)}, {v(vT)}, {v(PB+k)}, {v(PB+k+1)}")
    a(f"v_cmp_eq_u32 vcc, -1, {v(vT)}")
    a("s_and_b64 exec, exec, vcc")
    a("s_cbranch_execz L_pollB_done")
    poll_tail("L_pollB")
    lab("L_pollB_done")
    tstamp(3)
    a("s_mov_b64 exec, -1")
    nma, la, nmb, lb = PB+8, PB+9, PB+10, PB+11
    M = vT
    a(f"v_min_f32 {v(M)}, {v(nma)}, {v(nmb)}")
    allred16("v_min_f32", M, steps=("row_ror:4", "row_ror:8"))
    allred_rows("v_min_f32", M, vT+1)
    a(f"v_sub_f32 {v(nma)}, {v(M)}, {v(nma)}")
    a(f"v_sub_f32 {v(nmb)}, {v(M)}, {v(nmb)}")
    a(f"v_exp_f32 {v(nma)}, {v(nma)}")
    a(f"v_exp_f32 {v(nmb)}, {v(nmb)}")
    nop(1)
    a(f"v_mul_f32 {v(la)}, {v(la)}, {v(nma)}")
    for e in range(4): a(f"v_mul_f32 {v(PB+e)}, {v(PB+e)}, {v(nma)}")
    a(f"v_fmac_f32 {v(la)}, {v(lb)}, {v(nmb)}")
    for e in range(4): a(f"v_fmac_f32 {v(PB+e)}, {v(PB+4+e)}, {v(nmb)}")
    a(f"v_mov_b32 {v(lb)}, {v(la)}")
    a(f"v_permlane32_swap_b32 {v(PB)}, {v(PB+1)}")
    a(f"v_permlane32_swap_b32 {v(PB+2)}, {v(PB+3)}")
    a(f"v_permlane32_swap_b32 {v(la)}, {v(lb)}")
    a(f"v_add_f32 {v(PB)}, {v(PB)}, {v(PB+1)}")
    a(f"v_add_f32 {v(PB+2)}, {v(PB+2)}, {v(PB+3)}")
    a(f"v_add_f32 {v(la)}, {v(la)}, {v(lb)}")
    a(f"v_mov_b32 {v(lb)}, {v(la)}")
    a(f"v_permlane16_swap_b32 {v(PB)}, {v(PB+2)}")
    nop(1)
    a(f"v_permlane16_swap_b32 {v(la)}, {v(lb)}")
    a(f"v_add_f32 {v(PB)}, {v(PB)}, {v(PB+2)}")
    a(f"v_add_f32 {v(la)}, {v(la)}, {v(lb)}")
    for st in ("row_ror:4", "row_ror:8"):
        nop(1)
        a(f"v_add_f32_dpp {v(PB)}, {v(PB)}, {v(PB)} {st} row_mask:0xf bank_mask:0xf")
        a(f"v_add_f32_dpp {v(la)}, {v(la)}, {v(la)} {st} row_mask:0xf bank_mask:0xf")
    a(f"v_rcp_f32 {v(vT)}, {v(la)}")
    nop(1)
    a(f"v_fma_f32 {v(vT+1)}, -{v(la)}, {v(vT)}, 1.0")
    a(f"v_fma_f32 {v(vT)}, {v(vT+1)}, {v(vT)}, {v(vT)}")
    a(f"v_mul_f32 {v(PB)}, {v(PB)}, {v(vT)}")
    a(f"v_cvt_pk_bf16_f32 {v(PB)}, {v(PB)}, {v(PB)}")
    nop(2)
    AO = vQ
    DD = vW
    for u in range(4):
        for r in range(4):
            a(f"v_and_b32_dpp {v(AO+4*u+r)}, {v(PB)}, {v(vMASK+r)} row_newbcast:{u} row_mask:0xf bank_mask:0xf")
    nop(1)
    for cb in range(4):
        for u in range(4):
            cc = "0" if u == 0 else vr(DD+4*cb, 4)
            a(f"v_mfma_f32_16x16x32_bf16 {vr(DD+4*cb,4)}, {vr(AO+4*u,4)}, {vr(vWO+16*cb+4*u,4)}, {cc}")
    a("s_mov_b64 exec, 0xffffffff")
    for cb in range(4):
        if cb == 3: nop(4)
        for r in range(4): a(f"v_min_u32 {v(DD+4*cb+r)}, -2, {v(DD+4*cb+r)}")
        a(f"global_store_dwordx4 {v(vA+7)}, {vr(DD+4*cb,4)}, {sp(sWS)} offset:{512*cb} sc1")
    a("s_mov_b64 exec, -1")
    tstamp(4)
    PC = vT + 4
    a(f"s_mov_b32 s{sT3}, 0")
    lab("L_pollC")
    for k in range(4):
        a(f"global_load_dwordx2 {vr(PC+2*k,2)}, {v(vPA+k)}, {sp(sWS)} sc1")
    a("s_waitcnt vmcnt(0)")
    a(f"v_max_u32 {v(vT)}, {v(PC)}, {v(PC+1)}")
    for k in range(2, 8, 2):
        a(f"v_max3_u32 {v(vT)}, {v(vT)}, {v(PC+k)}, {v(PC+k+1)}")
    a(f"v_cmp_eq_u32 vcc, -1, {v(vT)}")
    a("s_and_b64 exec, exec, vcc")
    a("s_cbranch_execz L_pollC_done")
    poll_tail("L_pollC")
    lab("L_pollC_done")
    tstamp(5)
    a("s_mov_b64 exec, -1")
    a(f"v_add_f32 {v(PC)}, {v(PC)}, {v(PC+2)}")
    a(f"v_add_f32 {v(PC+1)}, {v(PC+1)}, {v(PC+3)}")
    a(f"v_add_f32 {v(PC+4)}, {v(PC+4)}, {v(PC+6)}")
    a(f"v_add_f32 {v(PC+5)}, {v(PC+5)}, {v(PC+7)}")
    a(f"v_add_f32 {v(PC)}, {v(PC)}, {v(PC+4)}")
    a(f"v_add_f32 {v(PC+1)}, {v(PC+1)}, {v(PC+5)}")
    nop(2)
    a(f"v_permlane32_swap_b32 {v(PC)}, {v(PC+1)}")
    nop(1)
    a(f"v_add_f32 {v(PC)}, {v(PC)}, {v(PC+1)}")
    allred16("v_add_f32", PC)
    a(f"v_mov_b32 {v(vT)}, {v(PC)}")
    nop(2)
    a(f"v_permlane16_swap_b32 {v(PC)}, {v(vT)}")
    nop(1)
    a(f"v_add_f32 {v(PC)}, {v(PC)}, {v(vT)}")
    a(f"v_mov_b32 {v(PC+1)}, {v(PC)}")
    nop(2)
    a(f"v_permlane32_swap_b32 {v(PC)}, {v(PC+1)}")
    nop(1)
    rbf2(PC, PC+1)
    a(f"v_mul_f32 {v(PC)}, {v(PC)}, {v(g0)}")
    a(f"v_mul_f32 {v(PC+1)}, {v(PC+1)}, {v(g1)}")
    rbf2(PC, PC+1)
    a(f"s_lshl_b32 s{sT1}, s{sXD}, 16")
    a(f"s_and_b32 s{sT2}, s{sXD}, 0xffff0000")
    a(f"v_add_f32 {v(PC)}, s{sT1}, {v(PC)}")
    a(f"v_add_f32 {v(PC+1)}, s{sT2}, {v(PC+1)}")
    a(f"v_cvt_pk_bf16_f32 {v(PC)}, {v(PC)}, {v(PC+1)}")
    a(f"s_lshl_b32 s{sT1}, s{sC0}, 1")
    a(f"v_mov_b32 {v(vT)}, s{sT1}")
    a("s_mov_b64 exec, 1")
    a(f"global_store_dword {v(vT)}, {v(PC)}, {sp(sOUT)}")
    a("s_cmp_lg_u32 s2, 0")
    a("s_cbranch_scc1 L_noep")
    a(f"v_mov_b32 {v(vT)}, {WS_EP}")
    a(f"v_mov_b32 {v(vT+2)}, s{sTAGL}")
    a(f"v_mov_b32 {v(vT+3)}, s{sTAGH}")
    a(f"global_store_dwordx2 {v(vT)}, {vr(vT+2,2)}, {sp(sWS)} sc1")
    lab("L_noep")
    a("s_mov_b64 exec, -1")
    lab("L_fin")
    if G.stamps:
        a(f"s_memrealtime s[82:83]")
        a("s_waitcnt lgkmcnt(0)")
        a(f"s_lshl_b32 s{sT2}, s2, 2")
        a(f"s_add_u32 s{sT2}, s{sT2}, s{sWV}")
        a(f"s_lshl_b32 s{sT2}, s{sT2}, 6")
        a(f"s_add_u32 s{sT2}, s{sT2}, {WS_TS}")
        a(f"v_mov_b32 v2, s{sT2}")
        a(f"v_mov_b32 v4, s{sTS0}")
        a(f"v_mov_b32 v5, s{sTS0+2}")
        a(f"v_mov_b32 v6, s100")
        a(f"v_mov_b32 v7, s82")
        a(f"v_mov_b32 v8, s{sN}")
        a(f"s_getreg_b32 s{sT2}, hwreg(HW_REG_XCC_ID)")
        a(f"v_mov_b32 v9, s{sT2}")
        a("s_mov_b64 exec, 1")
        a(f"global_store_dwordx4 v2, v[4:7], {sp(sWS)}")
        a(f"global_store_dwordx2 v2, v[8:9], {sp(sWS)} offset:16")
        for k in range(6): a(f"v_mov_b32 v{10+k}, s{4+2*k}")
        a(f"global_store_dwordx4 v2, v[10:13], {sp(sWS)} offset:32")
        a(f"global_store_dwordx2 v2, v[14:15], {sp(sWS)} offset:48")
    lab("L_end")
    a("s_endpgm")
    tail = ['.section .rodata,"a"', ".p2align 6", f".amdhsa_kernel {KN}",
            f"  .amdhsa_next_free_vgpr {NV+256}", "  .amdhsa_next_free_sgpr 102", f"  .amdhsa_accum_offset {NV}",
            "  .amdhsa_group_segment_fixed_size 0", "  .amdhsa_kernarg_size 104", "  .amdhsa_user_sgpr_count 2",
            "  .amdhsa_user_sgpr_kernarg_segment_ptr 1", "  .amdhsa_system_sgpr_workgroup_id_x 1",
            "  .amdhsa_float_denorm_mode_32 3",
            ".end_amdhsa_kernel"]
    return "\n".join(hdr + G.L + tail) + "\n"

if __name__ == "__main__":
    import argparse, json
    ap = argparse.ArgumentParser()
    ap.add_argument("-o", default="k.s")
    ap.add_argument("kv", nargs="*")
    args = ap.parse_args()
    kw = {}
    for x in args.kv:
        k, val = x.split("=")
        kw[k] = json.loads(val)
    open(args.o, "w").write(build(**kw))
```

```python
import sys, struct, math

KN = "recurrent_scan__gqa_block_cached__mixer_token_mlp__decode_kernel"

def f2u(x):
    return struct.unpack("<I", struct.pack("<f", x))[0]

class Gen:
    def __init__(self, **kw):
        self.L = []
        self.vm = []
        self.__dict__.update(kw)
    def a(self, s): self.L.append("  " + s)
    def lab(self, s): self.L.append(s + ":")
    def c(self, s): self.L.append("  ; " + s)
    def vmem(self, s, tag=None):
        self.a(s); self.vm.append(tag)
    def wait_vm(self, tag):
        if tag not in self.vm: return
        idx = max(i for i, t in enumerate(self.vm) if t == tag)
        n = len(self.vm) - 1 - idx
        n = min(n, 63)
        self.a(f"s_waitcnt vmcnt({n})")
        self.vm = self.vm[len(self.vm)-n:] if n else []
    def nop(self, n):
        if n > 0: self.a(f"s_nop {n-1}")

WS_Q   = 0x0
WS_EP  = 0x8000
WS_CNT = 0x10000
CNT_STRIDE = 1280
CNT_BIAS = 0x10000
WS_P2  = 0x100000
WS_S2  = 0x200000
WS_TS  = 0x1000000
LDS_XN   = 0
LDS_Q    = 1024
LDS_ML   = 2048
LDS_O    = 2304
LDS_QP   = 2304
LDS_TOTAL = 2304 + 8192
LOG2E = 1.4426950408889634
SCALE = 128 ** -0.5
LCG_A, LCG_C = 1664525, 1013904223
REG = 0x200000
LIM = 0x1000000

DEFAULTS = dict(A=2, R=12, NS=37, P=3, T=20.0, dyn=True, stamps=False, tstamps=False, poll_max=4000000,
                cu_issue=(0, 1, 6, 10), q_sleep=12, q_first=0, pretouch=0, stf='sc1', ldf='sc1')

def build(**kw):
    p = dict(DEFAULTS); p.update(kw)
    G = Gen(**p)
    a, lab, c, vmem, wait_vm, nop = G.a, G.lab, G.c, G.vmem, G.wait_vm, G.nop
    A, R, NS = G.A, G.R, G.NS
    E = len(G.cu_issue)
    assert A <= E <= 4 and R <= 12
    POLL_MAX = G.poll_max
    hdr = [f"; @launch grid=(256,1,1) block=(256,1,1) lds={LDS_TOTAL}",
           '.amdgcn_target "amdgcn-amd-amdhsa--gfx950"', ".text", f".globl {KN}", ".p2align 8",
           f".type {KN},@function", f"{KN}:"]
    sX, sK, sV, sWQ, sWO, sBX, sW1, sB1 = 16, 18, 20, 22, 24, 26, 28, 30
    sW2, sB2, sOUT, sDBG, sWS = 32, 34, 36, 38, 40
    sTAGL, sTAGH = 42, 43
    srdK, srdV = 44, 48
    sOFF = 52; sTK = 56; sDYNB = 60; sTG16 = 61
    sWV, sA, sB, sG, sI = 72, 73, 74, 75, 76
    sN, sSTAT, sEXH, sCNTOFF, sBH = 77, 78, 79, 80, 81
    sT0, sT1, sT2, sT3 = 82, 83, 84, 85
    sTHR, sFLOOR = 86, 87
    sXD = 88
    sC0 = 90
    sPC = 92
    sTS0 = 94
    sLOG2E, sSCALE = 98, 99
    def sp(r): return f"s[{r}:{r+1}]"
    def sq(r): return f"s[{r}:{r+3}]"
    vLANE = 1; vKOFF = 2; vVOFF = 3
    vQ = 4; vO = 20; vNM = 28; vL = 29; vSEL = 30; vS = 34; vX = 38
    vT = 46
    vA = 80
    vPA = 96
    vMASK = 100
    vW = 104
    vWO = 136
    vG = 232
    NV = 236
    def v(r): return f"v{r}"
    def vr(r, n): return f"v[{r}:{r+n-1}]"
    def slot_reg(slot, off, n):
        if slot < 8:
            r = 32*slot + off
            return f"a[{r}:{r+n-1}]"
        r = vW + 32*(slot-8) + off
        return f"v[{r}:{r+n-1}]"
    def stamp(k):
        if G.stamps and not G.tstamps: a(f"s_memrealtime s[{4+2*k}:{5+2*k}]")
    def tstamp(k):
        if G.tstamps: a(f"s_memrealtime s[{4+2*k}:{5+2*k}]")
    DPP = "row_mask:0xf bank_mask:0xf"
    def allred16(op, r, steps=("quad_perm:[1,0,3,2]", "quad_perm:[2,3,0,1]", "row_half_mirror", "row_mirror")):
        for s in steps:
            nop(2)
            a(f"{op}_dpp {v(r)}, {v(r)}, {v(r)} {s} {DPP}")
    def allred_rows(op, r, t):
        a(f"v_mov_b32 {v(t)}, {v(r)}")
        nop(2)
        a(f"v_permlane16_swap_b32 {v(r)}, {v(t)}")
        nop(1)
        a(f"{op} {v(r)}, {v(r)}, {v(t)}")
        a(f"v_mov_b32 {v(t)}, {v(r)}")
        nop(2)
        a(f"v_permlane32_swap_b32 {v(r)}, {v(t)}")
        nop(1)
        a(f"{op} {v(r)}, {v(r)}, {v(t)}")
    def allred64(op, r, t):
        allred16(op, r); allred_rows(op, r, t)
    def rbf(r):
        a(f"v_cvt_pk_bf16_f32 {v(r)}, {v(r)}, {v(r)}")
        a(f"v_and_b32 {v(r)}, 0xffff0000, {v(r)}")
    def rbf2(r0, r1):
        a(f"v_cvt_pk_bf16_f32 {v(r1)}, {v(r0)}, {v(r1)}")
        a(f"v_lshlrev_b32 {v(r0)}, 16, {v(r1)}")
        a(f"v_and_b32 {v(r1)}, 0xffff0000, {v(r1)}")
    def poll_tail(label, sleep=0):
        if sleep: a(f"s_sleep {sleep}")
        a(f"s_add_u32 s{sT3}, s{sT3}, 1")
        a(f"s_cmp_lt_u32 s{sT3}, {POLL_MAX}")
        a(f"s_cbranch_scc1 {label}")
    def tags():
        a(f"s_mul_i32 s{sTAGL}, s{sTAGL}, {LCG_A}")
        a(f"s_add_u32 s{sTAGL}, s{sTAGL}, {LCG_C}")
        a(f"s_mul_i32 s{sTAGH}, s{sTAGH}, {LCG_A}")
        a(f"s_add_u32 s{sTAGH}, s{sTAGH}, {LCG_C}")
        a(f"s_and_b32 s{sTG16}, s{sTAGL}, 0xffff0000")

    t0, t1, t2, t3 = vS, vS+1, vS+2, vS+3
    F = vX
    def unpack8(dst, src):
        for j in range(4):
            a(f"v_lshlrev_b32 {v(dst+2*j)}, 16, {v(src+j)}")
            a(f"v_and_b32 {v(dst+2*j+1)}, 0xffff0000, {v(src+j)}")
    def ln_stats(F):
        a(f"v_add_f32 {v(t0)}, {v(F)}, {v(F+1)}")
        a(f"v_add_f32 {v(t1)}, {v(F+2)}, {v(F+3)}")
        a(f"v_add_f32 {v(t2)}, {v(F+4)}, {v(F+5)}")
        a(f"v_add_f32 {v(t3)}, {v(F+6)}, {v(F+7)}")
        a(f"v_add_f32 {v(t0)}, {v(t0)}, {v(t1)}")
        a(f"v_add_f32 {v(t2)}, {v(t2)}, {v(t3)}")
        a(f"v_add_f32 {v(t0)}, {v(t0)}, {v(t2)}")
        allred64("v_add_f32", t0, t3)
        a(f"v_mul_f32 {v(t0)}, 0x3b000000, {v(t0)}")
        a(f"v_sub_f32 {v(t2)}, {v(F)}, {v(t0)}")
        a(f"v_mul_f32 {v(t1)}, {v(t2)}, {v(t2)}")
        for j in range(1, 8):
            a(f"v_sub_f32 {v(t2)}, {v(F+j)}, {v(t0)}")
            a(f"v_fmac_f32 {v(t1)}, {v(t2)}, {v(t2)}")
        allred64("v_add_f32", t1, t3)
        a(f"v_mul_f32 {v(t1)}, 0x3b000000, {v(t1)}")
        rbf2(t0, t1)
        a(f"v_add_f32 {v(t1)}, 0x{f2u(1e-5):08x}, {v(t1)}")
        rbf(t1)
        a(f"v_sqrt_f32 {v(t2)}, {v(t1)}")
        nop(1)
        a(f"v_rcp_f32 {v(t3)}, {v(t2)}")
        a(f"v_fma_f32 {v(vT)}, -{v(t2)}, {v(t2)}, {v(t1)}")
        a(f"v_mul_f32 {v(t3)}, 0.5, {v(t3)}")
        a(f"v_fma_f32 {v(t1)}, {v(vT)}, {v(t3)}, {v(t2)}")
        rbf(t1)
        a(f"v_rcp_f32 {v(t2)}, {v(t1)}")
        nop(1)
        a(f"v_fma_f32 {v(t3)}, -{v(t1)}, {v(t2)}, 1.0")
        a(f"v_fma_f32 {v(t2)}, {v(t3)}, {v(t2)}, {v(t2)}")
    def ln_apply2(r0, r1, tmp):
        a(f"v_sub_f32 {v(r0)}, {v(r0)}, {v(t0)}")
        a(f"v_sub_f32 {v(r1)}, {v(r1)}, {v(t0)}")
        rbf2(r0, r1)
        for r in (r0, r1):
            a(f"v_mul_f32 {v(tmp)}, {v(r)}, {v(t2)}")
            a(f"v_fma_f32 {v(r)}, -{v(tmp)}, {v(t1)}, {v(r)}")
            a(f"v_fma_f32 {v(r)}, {v(r)}, {v(t2)}, {v(tmp)}")
    def wo_issue():
        a(f"v_lshrrev_b32 {v(vT)}, 4, {v(vLANE)}")
        a(f"v_and_b32 {v(vT+1)}, 1, {v(vT)}")
        a(f"v_lshlrev_b32 {v(vT+1)}, 1, {v(vT+1)}")
        a(f"v_lshrrev_b32 {v(vT)}, 1, {v(vT)}")
        a(f"v_add_u32 {v(vT)}, {v(vT)}, {v(vT+1)}")
        a(f"v_lshlrev_b32 {v(vT)}, 10, {v(vT)}")
        a(f"v_and_b32 {v(vT+1)}, 15, {v(vLANE)}")
        a(f"v_lshl_add_u32 {v(vT)}, {v(vT+1)}, 4, {v(vT)}")
        a(f"s_lshl_b32 s{sT1}, s{sG}, 5")
        a(f"s_add_u32 s{sT1}, s{sT1}, s{sI}")
        a(f"s_lshl_b32 s{sT1}, s{sT1}, 14")
        a(f"v_add_u32 {v(vT+11)}, s{sT1}, {v(vT)}")
        a(f"v_add_u32 {v(vT+12)}, 0x1000, {v(vT+11)}")
        a(f"v_add_u32 {v(vT+13)}, 0x2000, {v(vT+11)}")
        a(f"v_add_u32 {v(vT+14)}, 0x3000, {v(vT+11)}")
        for u, r in enumerate((vT+11, vT+12, vT+13, vT+14)):
            for cb in range(4):
                a(f"global_load_dwordx4 {vr(vWO+16*cb+4*u,4)}, {v(r)}, {sp(sWO)} offset:{256*cb} nt")
    def tail_addr():
        a(f"s_lshl_b32 s{sT0}, s{sG}, 2")
        a(f"s_add_u32 s{sT0}, s{sT0}, s{sWV}")
        a(f"s_lshl_b32 s{sT1}, s{sT0}, 15")
        a(f"s_lshl_b32 s{sT2}, s{sI}, 7")
        a(f"s_add_u32 s{sT1}, s{sT1}, s{sT2}")
        a(f"s_add_u32 s{sT1}, s{sT1}, {WS_P2}")
        a(f"v_lshrrev_b32 {v(vT)}, 3, {v(vLANE)}")
        a(f"v_lshlrev_b32 {v(vT)}, 12, {v(vT)}")
        a(f"v_and_b32 {v(vT+1)}, 7, {v(vLANE)}")
        a(f"v_lshl_add_u32 {v(vT)}, {v(vT+1)}, 4, {v(vT)}")
        a(f"v_add_u32 {v(vA)}, s{sT1}, {v(vT)}")
        a(f"s_lshl_b32 s{sT1}, s{sWV}, 11")
        a(f"v_lshl_add_u32 {v(vA+1)}, {v(vLANE)}, 5, s{sT1}")
        a(f"v_bfe_u32 {v(vT+1)}, {v(vLANE)}, 2, 2")
        a(f"s_lshl_b32 s{sT1}, s{sWV}, 3")
        a(f"v_lshl_add_u32 {v(vA+2)}, {v(vT+1)}, 5, s{sT1}")
        a(f"s_lshl_b32 s{sT1}, s{sWV}, 5")
        a(f"v_mov_b32 {v(vA+3)}, s{sT1}")
        a(f"s_lshl_b32 s{sT1}, s{sWV}, 9")
        a(f"v_lshl_add_u32 {v(vA+4)}, {v(vLANE)}, 3, s{sT1}")
        a(f"v_and_b32 {v(vT)}, 1, {v(vLANE)}")
        a(f"v_lshlrev_b32 {v(vA+5)}, 4, {v(vT)}")
        a(f"v_and_b32 {v(vA+6)}, 2, {v(vLANE)}")
    def issue_tile(slot, soff, tag=None, track=True):
        for t in range(4):
            s = f"buffer_load_dwordx4 {slot_reg(slot,4*t,4)}, {v(vKOFF)}, {sq(srdK)}, {soff} offen offset:{64*t} nt"
            vmem(s, ("K", tag)) if track else a(s)
        for u in range(4):
            s = f"buffer_load_dwordx4 {slot_reg(slot,16+4*u,4)}, {v(vVOFF)}, {sq(srdV)}, {soff} offen offset:{1024*u} nt"
            vmem(s, ("V", tag)) if track else a(s)
    TSTR = 12 * 4096
    NDYN = 2 * (512 - NS * 12)
    uid = [0]
    def next_tile(ns, tag=None, track=False):
        u = uid[0]; uid[0] += 1
        if G.dyn:
            a(f"s_cmp_lt_u32 s{sN}, {NS}")
            a(f"s_cbranch_scc1 L_st{u}")
            a(f"s_waitcnt lgkmcnt({G.P-1})")
            a(f"s_cmp_lg_u32 s{sTK+ns}, 1")
            a(f"s_cbranch_scc1 L_tk{u}")
            a("s_waitcnt lgkmcnt(0)")
            lab(f"L_tk{u}")
            a(f"s_and_b32 s{sT1}, s{sTK+ns}, 1")
            a(f"s_lshl_b32 s{sT1}, s{sT1}, 21")
            a(f"s_and_b32 s{sSTAT}, s{sTK+ns}, 0xfffe")
            a(f"s_lshl_b32 s{sSTAT}, s{sSTAT}, 11")
            a(f"s_add_u32 s{sSTAT}, s{sSTAT}, s{sT1}")
            a(f"s_add_u32 s{sSTAT}, s{sSTAT}, s{sDYNB}")
            a(f"s_cmp_ge_u32 s{sTK+ns}, {CNT_BIAS + NDYN}")
            a(f"s_cselect_b32 s{sEXH}, 0x{LIM:x}, s{sEXH}")
            a(f"s_max_u32 s{sSTAT}, s{sSTAT}, s{sEXH}")
            lab(f"L_st{u}")
            a(f"s_mov_b32 s{sOFF+ns}, s{sSTAT}")
            a(f"s_add_u32 s{sSTAT}, s{sSTAT}, {TSTR}")
            a(f"s_add_u32 s{sN}, s{sN}, 1")
            a(f"s_cmp_lg_u32 s{sEXH}, 0")
            a(f"s_cbranch_scc1 L_nq{u}")
            a(f"s_cmp_lt_u32 s{sN}, {NS - G.P + 1}")
            a(f"s_cbranch_scc1 L_nq{u}")
            a(f"s_mov_b32 s{sTK+(ns+G.P)%4}, 1")
            a(f"s_atomic_add s{sTK+(ns+G.P)%4}, {sp(sWS)}, s{sCNTOFF} glc")
            lab(f"L_nq{u}")
        else:
            a(f"s_cmp_ge_u32 s{sSTAT}, s{sDYNB}")
            a(f"s_cselect_b32 s{sOFF+ns}, 0x{LIM:x}, s{sSTAT}")
            a(f"s_add_u32 s{sSTAT}, s{sSTAT}, {TSTR}")
        issue_tile(ns, f"s{sOFF+ns}", tag, track)

    a("s_cmp_ge_u32 s2, 256")
    a("s_cbranch_scc1 L_end")
    if G.stamps: a(f"s_memrealtime {sp(sTS0)}")
    a("s_load_dwordx16 s[16:31], s[0:1], 0")
    a("s_load_dwordx8 s[32:39], s[0:1], 64")
    a("s_load_dwordx2 s[40:41], s[0:1], 96")
    a(f"v_and_b32 {v(vLANE)}, 63, v0")
    a(f"v_lshrrev_b32 {v(vT)}, 6, v0")
    a(f"s_and_b32 s{sA}, s2, 7")
    a(f"v_readfirstlane_b32 s{sWV}, {v(vT)}")
    a(f"s_lshr_b32 s{sB}, s2, 3")
    a(f"v_lshlrev_b32 {v(vVOFF)}, 4, {v(vLANE)}")
    a(f"s_and_b32 s{sG}, s{sB}, 7")
    a(f"s_lshr_b32 s{sBH}, s{sB}, 3")
    a(f"s_lshl_b32 s{sT0}, s{sBH}, 3")
    a(f"s_add_u32 s{sI}, s{sT0}, s{sA}")
    a(f"s_mov_b32 s{sLOG2E}, 0x{f2u(LOG2E):08x}")
    a(f"s_mov_b32 s{sN}, 0")
    a(f"s_cmp_eq_u32 s{sBH}, 0")
    a("s_cbranch_scc1 L_prod")
    a(f"s_cmp_lg_u32 s{sWV}, 0")
    a("s_cbranch_scc1 L_stream")
    a("s_waitcnt lgkmcnt(0)")
    a(f"s_load_dwordx2 {sp(sTAGL)}, {sp(sWS)}, {WS_EP}")
    a(f"global_load_dwordx4 {vr(vW,4)}, {v(vVOFF)}, {sp(sX)}")
    a("s_waitcnt vmcnt(0)")
    a("s_branch L_ln1")

    lab("L_prod")
    a(f"v_lshrrev_b32 {v(vT)}, 3, {v(vLANE)}")
    a(f"v_lshlrev_b32 {v(vT)}, 17, {v(vT)}")
    a(f"v_and_b32 {v(vT+1)}, 7, {v(vLANE)}")
    a(f"v_lshl_add_u32 {v(vT)}, {v(vT+1)}, 4, {v(vT)}")
    a(f"s_lshl_b32 s{sT1}, s{sA}, 3")
    a(f"s_add_u32 s{sT3}, s{sT1}, s{sG}")
    a(f"s_lshl_b32 s{sT1}, s{sT3}, 7")
    a(f"s_lshl_b32 s{sT2}, s{sWV}, 20")
    a(f"s_add_u32 s{sT1}, s{sT1}, s{sT2}")
    a(f"v_add_u32 {v(vT+16)}, s{sT1}, {v(vT)}")
    a(f"v_add_u32 {v(vT+17)}, 0x2000, {v(vT+16)}")
    a(f"s_lshl_b32 s{sT1}, s{sA}, 2")
    a(f"s_and_b32 s{sT2}, s{sG}, 3")
    a(f"s_add_u32 s{sT1}, s{sT1}, s{sT2}")
    a(f"s_mul_i32 s{sT1}, s{sT1}, {CNT_STRIDE}")
    a(f"s_add_u32 s{sT1}, s{sT1}, {WS_CNT}")
    a(f"v_mov_b32 {v(vT+9)}, s{sT1}")
    a(f"v_mov_b32 {v(vT+10)}, 0x{CNT_BIAS:x}")
    a("s_waitcnt lgkmcnt(0)")
    a(f"s_load_dwordx2 {sp(sTAGL)}, {sp(sWS)}, {WS_EP}")
    vmem(f"global_load_dwordx4 {vr(vW,4)}, {v(vVOFF)}, {sp(sX)}", "x")
    a("s_mov_b64 exec, 1")
    vmem(f"global_store_dword {v(vT+9)}, {v(vT+10)}, {sp(sWS)} sc1", "clr")
    a("s_mov_b64 exec, -1")
    W0 = vW + 4
    for j in range(8):
        vmem(f"global_load_dwordx4 {vr(W0+8*j,4)}, {v(vT+16)}, {sp(sWQ)} nt", ("wq", j))
        vmem(f"global_load_dwordx4 {vr(W0+8*j+4,4)}, {v(vT+17)}, {sp(sWQ)} nt", ("wq", j))
        if j < 7:
            a(f"v_add_u32 {v(vT+16)}, 0x4000, {v(vT+16)}")
            a(f"v_add_u32 {v(vT+17)}, 0x4000, {v(vT+17)}")
    wait_vm("x")
    lab("L_ln1")
    stamp(0)
    unpack8(F, vW)
    ln_stats(F)
    for j in range(4):
        ln_apply2(F+2*j, F+2*j+1, vT)
        a(f"v_cvt_pk_bf16_f32 {v(vW+j)}, {v(F+2*j)}, {v(F+2*j+1)}")
    a(f"ds_write_b128 {v(vVOFF)}, {vr(vW,4)} offset:{LDS_XN}")
    a(f"s_mov_b32 s{sT1}, 0x05040100")
    a(f"s_mov_b32 s{sT2}, 0x07060302")
    a("s_waitcnt lgkmcnt(0)")
    a(f"s_cmp_lg_u32 s{sBH}, 0")
    a("s_cbranch_scc1 L_svc0")
    XN = vX
    a(f"v_lshrrev_b32 {v(vT+1)}, 3, {v(vLANE)}")
    a(f"s_lshl_b32 s{sT0}, s{sWV}, 8")
    a(f"v_lshl_add_u32 {v(vT+1)}, {v(vT+1)}, 5, s{sT0}")
    a(f"ds_read_b128 {vr(XN,4)}, {v(vT+1)} offset:{LDS_XN}")
    a(f"ds_read_b128 {vr(XN+4,4)}, {v(vT+1)} offset:{LDS_XN+16}")
    ACC = vQ; PT = vQ + 8
    for j in range(8):
        wait_vm(("wq", j))
        if j == 0: stamp(1)
        ra, rb = W0 + 8*j, W0 + 8*j + 4
        for d in range(4):
            a(f"v_perm_b32 {v(PT+2*d)}, {v(rb+d)}, {v(ra+d)}, s{sT1}")
            a(f"v_perm_b32 {v(PT+2*d+1)}, {v(rb+d)}, {v(ra+d)}, s{sT2}")
        if j == 0: a("s_waitcnt lgkmcnt(0)")
        for cidx in range(8):
            cc = "0" if j == 0 else v(ACC+cidx)
            a(f"v_dot2_f32_bf16 {v(ACC+cidx)}, {v(PT+cidx)}, {v(XN+j)}, {cc}")
    a(f"v_and_b32 {v(vT)}, 7, {v(vLANE)}")
    a(f"v_lshrrev_b32 {v(vT+1)}, 4, {v(vLANE)}")
    a(f"v_lshl_add_u32 {v(vT)}, {v(vT)}, 2, {v(vT+1)}")
    a(f"v_lshl_add_u32 {v(vT)}, {v(vT)}, 3, s{sT0}")
    for cidx in range(4):
        a(f"v_permlane32_swap_b32 {v(ACC+cidx)}, {v(ACC+cidx+4)}")
    nop(1)
    for cidx in range(4):
        a(f"v_add_f32 {v(ACC+cidx)}, {v(ACC+cidx)}, {v(ACC+cidx+4)}")
    nop(1)
    for cidx in range(2):
        a(f"v_permlane16_swap_b32 {v(ACC+cidx)}, {v(ACC+cidx+2)}")
    nop(1)
    for cidx in range(2):
        a(f"v_add_f32 {v(ACC+cidx)}, {v(ACC+cidx)}, {v(ACC+cidx+2)}")
    nop(1)
    a(f"v_add_f32_dpp {v(ACC)}, {v(ACC)}, {v(ACC)} row_ror:8 {DPP}")
    a(f"v_add_f32_dpp {v(ACC+1)}, {v(ACC+1)}, {v(ACC+1)} row_ror:8 {DPP}")
    a(f"ds_write_b64 {v(vT)}, {vr(ACC,2)} offset:{LDS_QP}")
    stamp(2)
    a("s_waitcnt lgkmcnt(0)")
    a("s_barrier")
    a(f"s_cmp_lg_u32 s{sWV}, 0")
    a("s_cbranch_scc1 L_stream2")
    a(f"v_and_b32 {v(vT)}, 15, {v(vLANE)}")
    a(f"v_lshlrev_b32 {v(vT)}, 4, {v(vT)}")
    for w in range(4):
        a(f"ds_read_b128 {vr(ACC+4*w,4)}, {v(vT)} offset:{LDS_QP + 256*w}")
    a(f"s_lshl_b32 s{sT3}, s{sT3}, 8")
    a(f"v_add_u32 {v(vT+21)}, s{sT3}, {v(vT)}")
    tags()
    a("s_waitcnt lgkmcnt(0)")
    for e in range(4): a(f"v_add_f32 {v(ACC+e)}, {v(ACC+e)}, {v(ACC+4+e)}")
    for e in range(4): a(f"v_add_f32 {v(ACC+8+e)}, {v(ACC+8+e)}, {v(ACC+12+e)}")
    for e in range(4): a(f"v_add_f32 {v(ACC+e)}, {v(ACC+e)}, {v(ACC+8+e)}")
    a(f"v_cvt_pk_bf16_f32 {v(ACC+4)}, {v(ACC)}, {v(ACC+1)}")
    a(f"v_cvt_pk_bf16_f32 {v(ACC+5)}, {v(ACC+2)}, {v(ACC+3)}")
    a(f"v_mov_b32 {v(ACC+6)}, s{sTAGL}")
    a(f"v_mov_b32 {v(ACC+7)}, s{sTAGH}")
    a("s_mov_b64 exec, 0xffff")
    a(f"global_store_dwordx4 {v(vT+21)}, {vr(ACC+4,4)}, {sp(sWS)} offset:{WS_Q} sc1")
    a("s_mov_b64 exec, -1")
    a("s_branch L_svc")
    lab("L_svc0")
    tags()
    lab("L_svc")
    stamp(3)
    a(f"s_lshl_b32 s{sC0}, s{sA}, 6")
    a(f"s_lshl_b32 s{sT1}, s{sB}, 1")
    a(f"s_add_u32 s{sC0}, s{sC0}, s{sT1}")
    a(f"s_lshl_b32 s{sT2}, s{sG}, 11")
    a(f"v_add_u32 {v(vT+22)}, s{sT2}, {v(vVOFF)}")
    unpack8(F, vW)
    ln_stats(F)
    a(f"s_lshl_b32 s{sT2}, s{sC0}, 1")
    a(f"v_mov_b32 {v(vT+1)}, s{sT2}")
    a(f"ds_read_b32 {v(vT+4)}, {v(vT+1)} offset:{LDS_XN}")
    a(f"s_load_dword s{sXD}, {sp(sX)}, s{sT2}")
    h0, h1 = vG, vG+1
    a("s_waitcnt lgkmcnt(0)")
    a(f"v_lshlrev_b32 {v(h0)}, 16, {v(vT+4)}")
    a(f"v_and_b32 {v(h1)}, 0xffff0000, {v(vT+4)}")
    ln_apply2(h0, h1, vT)
    rbf2(h0, h1)
    a(f"s_mov_b32 s{sT3}, 0")
    QB = vW + 8
    if G.q_first: a(f"s_sleep {G.q_first}")
    lab("L_pollQ")
    a(f"global_load_dwordx4 {vr(QB,4)}, {v(vT+22)}, {sp(sWS)} offset:{WS_Q} sc1")
    a(f"global_load_dwordx4 {vr(QB+4,4)}, {v(vT+22)}, {sp(sWS)} offset:{WS_Q+1024} sc1")
    a("s_waitcnt vmcnt(0)")
    a(f"v_xor_b32 {v(vT)}, s{sTAGL}, {v(QB+2)}")
    a(f"v_xor_b32 {v(vT+1)}, s{sTAGH}, {v(QB+3)}")
    a(f"v_xor_b32 {v(vT+2)}, s{sTAGL}, {v(QB+6)}")
    a(f"v_xor_b32 {v(vT+3)}, s{sTAGH}, {v(QB+7)}")
    a(f"v_or3_b32 {v(vT)}, {v(vT)}, {v(vT+1)}, {v(vT+2)}")
    a(f"v_or_b32 {v(vT)}, {v(vT)}, {v(vT+3)}")
    a(f"v_cmp_ne_u32 vcc, 0, {v(vT)}")
    a("s_and_b64 exec, exec, vcc")
    a("s_cbranch_execz L_pollQ_done")
    poll_tail("L_pollQ", G.q_sleep)
    lab("L_pollQ_done")
    a("s_mov_b64 exec, -1")
    stamp(4)
    a(f"v_lshlrev_b32 {v(vT)}, 3, {v(vLANE)}")
    a(f"ds_write_b64 {v(vT)}, {vr(QB,2)} offset:{LDS_Q}")
    a(f"ds_write_b64 {v(vT)}, {vr(QB+4,2)} offset:{LDS_Q+512}")
    a("s_waitcnt lgkmcnt(0)")
    a("s_barrier")
    stamp(5)
    if G.stamps: a(f"s_memrealtime {sp(sTS0+2)}")
    wo_issue()
    a(f"v_mov_b32 {v(vT+20)}, 0")
    a(f"global_load_ushort {v(vMASK)}, {v(vT+20)}, {sp(sB2)}")
    y0, y1 = vX+2, vX+3
    a(f"v_mov_b32 {v(y0)}, 0")
    a(f"v_mov_b32 {v(y1)}, 0")
    K1 = 2.0 * math.sqrt(2.0 / math.pi) * LOG2E
    a(f"s_mov_b32 s{sT1}, 0x{f2u(-K1*0.044715):08x}")
    a(f"v_mov_b32 {v(vT+5)}, 0x{f2u(-K1):08x}")
    a(f"v_lshlrev_b32 {v(vT+6)}, 3, {v(vLANE)}")
    a(f"s_mov_b32 s{sT2}, 0")
    BW = vW
    wv1, bv1, wv2 = vX+4, vX+5, vX+6
    u0, u1, e0, e1 = vT, vT+1, vT+2, vT+3
    lab("L_bloop")
    a(f"global_load_dwordx2 {vr(BW,2)}, {v(vT+6)}, {sp(sW1)}")
    a(f"global_load_dwordx2 {vr(BW+2,2)}, {v(vT+6)}, {sp(sB1)}")
    a(f"global_load_dwordx2 {vr(BW+4,2)}, {v(vT+6)}, {sp(sW2)}")
    a(f"v_add_u32 {v(vT+6)}, 512, {v(vT+6)}")
    a("s_waitcnt vmcnt(0)")
    for j in range(4):
        d, hi = j // 2, j % 2
        for (dst, src) in ((wv1, BW+d), (bv1, BW+2+d), (wv2, BW+4+d)):
            if hi: a(f"v_and_b32 {v(dst)}, 0xffff0000, {v(src)}")
            else:  a(f"v_lshlrev_b32 {v(dst)}, 16, {v(src)}")
        a(f"v_mul_f32 {v(u0)}, {v(h0)}, {v(wv1)}")
        a(f"v_mul_f32 {v(u1)}, {v(h1)}, {v(wv1)}")
        rbf2(u0, u1)
        a(f"v_add_f32 {v(u0)}, {v(u0)}, {v(bv1)}")
        a(f"v_add_f32 {v(u1)}, {v(u1)}, {v(bv1)}")
        rbf2(u0, u1)
        a(f"v_mul_f32 {v(e0)}, {v(u0)}, {v(u0)}")
        a(f"v_mul_f32 {v(e1)}, {v(u1)}, {v(u1)}")
        a(f"v_fma_f32 {v(e0)}, {v(e0)}, s{sT1}, {v(vT+5)}")
        a(f"v_fma_f32 {v(e1)}, {v(e1)}, s{sT1}, {v(vT+5)}")
        a(f"v_mul_f32 {v(e0)}, {v(e0)}, {v(u0)}")
        a(f"v_mul_f32 {v(e1)}, {v(e1)}, {v(u1)}")
        a(f"v_exp_f32 {v(e0)}, {v(e0)}")
        a(f"v_exp_f32 {v(e1)}, {v(e1)}")
        nop(1)
        a(f"v_add_f32 {v(e0)}, 1.0, {v(e0)}")
        a(f"v_add_f32 {v(e1)}, 1.0, {v(e1)}")
        a(f"v_rcp_f32 {v(e0)}, {v(e0)}")
        a(f"v_rcp_f32 {v(e1)}, {v(e1)}")
        nop(1)
        a(f"v_mul_f32 {v(e0)}, {v(e0)}, {v(u0)}")
        a(f"v_mul_f32 {v(e1)}, {v(e1)}, {v(u1)}")
        rbf2(e0, e1)
        a(f"v_fmac_f32 {v(y0)}, {v(e0)}, {v(wv2)}")
        a(f"v_fmac_f32 {v(y1)}, {v(e1)}, {v(wv2)}")
    a(f"s_add_u32 s{sT2}, s{sT2}, 1")
    a(f"s_cmp_lt_u32 s{sT2}, 7")
    a("s_cbranch_scc1 L_bloop")
    allred64("v_add_f32", y0, vT)
    allred64("v_add_f32", y1, vT)
    a(f"v_lshlrev_b32 {v(vT+2)}, 16, {v(vMASK)}")
    rbf2(y0, y1)
    a(f"v_add_f32 {v(y0)}, {v(y0)}, {v(vT+2)}")
    a(f"v_add_f32 {v(y1)}, {v(y1)}, {v(vT+2)}")
    rbf2(y0, y1)
    g0, g1 = vG, vG+1
    a(f"v_mul_f32 {v(e0)}, s{sLOG2E}, {v(y0)}")
    a(f"v_mul_f32 {v(e1)}, s{sLOG2E}, {v(y1)}")
    a(f"v_exp_f32 {v(e0)}, -{v(e0)}")
    a(f"v_exp_f32 {v(e1)}, -{v(e1)}")
    nop(1)
    a(f"v_add_f32 {v(e0)}, 1.0, {v(e0)}")
    a(f"v_add_f32 {v(e1)}, 1.0, {v(e1)}")
    a(f"v_rcp_f32 {v(e0)}, {v(e0)}")
    a(f"v_rcp_f32 {v(e1)}, {v(e1)}")
    nop(1)
    a(f"v_mul_f32 {v(g0)}, {v(y0)}, {v(e0)}")
    a(f"v_mul_f32 {v(g1)}, {v(y1)}, {v(e1)}")
    rbf2(g0, g1)
    tail_addr()
    a(f"s_lshl_b32 s{sT2}, s{sG}, 5")
    a(f"s_add_u32 s{sT2}, s{sT2}, s{sI}")
    a(f"s_lshl_b32 s{sT2}, s{sT2}, 12")
    a(f"s_add_u32 s{sT1}, s{sT2}, {WS_P2}")
    a(f"v_add_u32 {v(vA+8)}, s{sT1}, {v(vVOFF)}")
    a(f"s_add_u32 s{sT1}, s{sT2}, {WS_S2}")
    a(f"v_and_b32 {v(vT)}, 15, {v(vLANE)}")
    a(f"v_lshlrev_b32 {v(vT)}, 6, {v(vT)}")
    a(f"v_bfe_u32 {v(vT+1)}, {v(vLANE)}, 4, 1")
    a(f"v_lshl_add_u32 {v(vT)}, {v(vT+1)}, 5, {v(vT)}")
    a(f"v_lshrrev_b32 {v(vT+1)}, 5, {v(vLANE)}")
    a(f"v_lshl_add_u32 {v(vT)}, {v(vT+1)}, 4, {v(vT)}")
    a(f"v_add_u32 {v(vA+9)}, s{sT1}, {v(vT)}")
    a(f"s_lshl_b32 s{sT1}, s{sC0}, 3")
    a(f"s_add_u32 s{sT1}, s{sT1}, {WS_S2}")
    a(f"v_lshl_add_u32 {v(vPA)}, {v(vLANE)}, 12, s{sT1}")
    a(f"v_add_u32 {v(vPA+1)}, 0x40000, {v(vPA)}")
    a(f"v_add_u32 {v(vPA+2)}, 0x80000, {v(vPA)}")
    a(f"v_add_u32 {v(vPA+3)}, 0xc0000, {v(vPA)}")
    a(f"v_and_b32 {v(vT)}, 15, {v(vLANE)}")
    a(f"v_and_b32 {v(vT+1)}, 1, {v(vLANE)}")
    a(f"v_cmp_eq_u32 vcc, 1, {v(vT+1)}")
    a(f"v_mov_b32 {v(vT+2)}, 0xffff")
    a(f"v_mov_b32 {v(vT+3)}, 0xffff0000")
    a(f"v_cndmask_b32 {v(vT+2)}, {v(vT+2)}, {v(vT+3)}, vcc")
    a(f"v_lshrrev_b32 {v(vT)}, 1, {v(vT)}")
    for r in range(4):
        a(f"v_cmp_eq_u32 vcc, {r}, {v(vT)}")
        nop(2)
        a(f"v_cndmask_b32 {v(vMASK+r)}, 0, {v(vT+2)}, vcc")
    a(f"s_lshl_b32 s{sT1}, s{sC0}, 1")
    a(f"v_mov_b32 {v(vA+10)}, s{sT1}")
    a(f"s_lshl_b32 s{sT1}, s{sXD}, 16")
    a(f"s_and_b32 s{sT2}, s{sXD}, 0xffff0000")
    a(f"v_mov_b32 {v(vA+11)}, s{sT1}")
    a(f"v_mov_b32 {v(vA+12)}, s{sT2}")
    a(f"s_mov_b32 s{sT0}, 0x05040100")
    if G.pretouch & 1:
        for k in range(4):
            a(f"global_load_dwordx4 {vr(vW+4*k,4)}, {v(vA+8)}, {sp(sWS)} offset:{1024*k} sc1")
    if G.pretouch & 2:
        for k in range(4):
            a(f"global_load_dwordx4 {vr(vW+4*k,4)}, {v(vPA+k)}, {sp(sWS)} sc1")
    if G.pretouch & 4:
        a(f"global_load_dword {v(vW)}, {v(vA+10)}, {sp(sOUT)}")
    if G.pretouch: a("s_waitcnt vmcnt(0)")
    if G.stamps: a(f"s_memrealtime s[100:101]")
    a("s_branch L_tail")

    lab("L_stream")
    a("s_waitcnt lgkmcnt(0)")
    a(f"s_load_dwordx2 {sp(sTAGL)}, {sp(sWS)}, {WS_EP}")
    lab("L_stream2")
    G.vm = []
    a(f"v_and_b32 {v(vT)}, 3, {v(vLANE)}")
    a(f"v_lshlrev_b32 {v(vT)}, 2, {v(vT)}")
    a(f"v_bfe_u32 {v(vT+1)}, {v(vLANE)}, 2, 2")
    a(f"v_add_u32 {v(vT)}, {v(vT)}, {v(vT+1)}")
    a(f"v_lshlrev_b32 {v(vT)}, 8, {v(vT)}")
    a(f"v_lshrrev_b32 {v(vT+1)}, 4, {v(vLANE)}")
    a(f"v_lshl_add_u32 {v(vKOFF)}, {v(vT+1)}, 4, {v(vT)}")
    a(f"s_mul_i32 s{sSTAT}, s{sBH}, 3")
    a(f"s_add_u32 s{sSTAT}, s{sSTAT}, s{sWV}")
    a(f"s_sub_u32 s{sSTAT}, s{sSTAT}, 1")
    a(f"s_lshl_b32 s{sSTAT}, s{sSTAT}, 12")
    a(f"s_lshl_b32 s{sT1}, s{sG}, 24")
    a(f"s_lshl_b32 s{sT2}, s{sA}, 21")
    a(f"s_add_u32 s{sSTAT}, s{sSTAT}, s{sT2}")
    for srd, ptr in ((srdK, sK), (srdV, sV)):
        a(f"s_add_u32 s{srd}, s{ptr}, s{sT1}")
        a(f"s_addc_u32 s{srd+1}, s{ptr+1}, 0")
        a(f"s_and_b32 s{srd+1}, s{srd+1}, 0xffff")
        a(f"s_mov_b32 s{srd+2}, 0x{LIM:x}")
        a(f"s_mov_b32 s{srd+3}, 0x20000")
    def setup_consts():
        Z = 0x0c0c0c0c
        lo_to_lo, lo_to_hi = 0x0c0c0100, 0x01000c0c
        hi_to_lo, hi_to_hi = 0x0c0c0302, 0x03020c0c
        a(f"v_and_b32 {v(vT+1)}, 3, {v(vLANE)}")
        for k in range(4): a(f"v_mov_b32 {v(vSEL+k)}, 0x{Z:08x}")
        for jp, (sr, val_lo, val_hi) in enumerate(((0, lo_to_lo, hi_to_lo), (0, lo_to_hi, hi_to_hi), (1, lo_to_lo, hi_to_lo), (1, lo_to_hi, hi_to_hi))):
            a(f"v_cmp_eq_u32 vcc, {jp}, {v(vT+1)}")
            a(f"v_mov_b32 {v(vT+2)}, 0x{val_lo:08x}")
            a(f"v_mov_b32 {v(vT+3)}, 0x{val_hi:08x}")
            a(f"v_cndmask_b32 {v(vSEL+sr)}, {v(vSEL+sr)}, {v(vT+2)}, vcc")
            a(f"v_cndmask_b32 {v(vSEL+2+sr)}, {v(vSEL+2+sr)}, {v(vT+3)}, vcc")
        for k in range(8): a(f"v_mov_b32 {v(vO+k)}, 0")
        a(f"v_mov_b32 {v(vNM)}, 0")
        a(f"v_mov_b32 {v(vL)}, 0")
        a(f"s_mov_b32 s{sTHR}, 0xff800000")
        a(f"s_mov_b32 s{sFLOOR}, 0xff7fffff")
        a(f"s_mov_b32 s{sSCALE}, 0x{f2u(SCALE):08x}")
        a(f"s_mov_b32 s{sEXH}, 0")
        a(f"s_mov_b32 s{sN}, {R}")
        a(f"s_add_u32 s{sT1}, s{sBH}, s{sA}")
        a(f"s_and_b32 s{sT1}, s{sT1}, 3")
        if G.dyn:
            a(f"s_lshl_b32 s{sDYNB}, s{sT1}, 22")
            a(f"s_add_u32 s{sDYNB}, s{sDYNB}, {NS*TSTR}")
        else:
            a(f"s_add_u32 s{sDYNB}, s{sA}, 1")
            a(f"s_lshl_b32 s{sDYNB}, s{sDYNB}, 21")
        a(f"s_lshl_b32 s{sT2}, s{sG}, 2")
        a(f"s_add_u32 s{sT2}, s{sT2}, s{sT1}")
        a(f"s_mul_i32 s{sCNTOFF}, s{sT2}, {CNT_STRIDE}")
        a(f"s_add_u32 s{sCNTOFF}, s{sCNTOFF}, {WS_CNT}")
        for k in range(4): a(f"s_mov_b32 s{sTK+k}, 0")
        a(f"v_bfe_u32 {v(vT+8)}, {v(vLANE)}, 2, 2")
        a(f"v_lshlrev_b32 {v(vT+8)}, 8, {v(vT+8)}")
        a(f"v_lshrrev_b32 {v(vT+1)}, 4, {v(vLANE)}")
        a(f"v_lshl_add_u32 {v(vT+8)}, {v(vT+1)}, 4, {v(vT+8)}")
    for n in range(R):
        if n >= A:
            wait_vm(("K", n - A))
        issue_tile(n, f"s{sSTAT}", n)
        a(f"s_add_u32 s{sSTAT}, s{sSTAT}, {TSTR}")
        if n == A - 1:
            setup_consts()
        if n == 3:
            tail_addr()
            a("s_waitcnt lgkmcnt(0)")
            tags()
        if G.stamps and not G.tstamps and n in (1, 3, 5, 7, 9, 11): a(f"s_memrealtime s[{4+2*(n//2)}:{5+2*(n//2)}]")
    a("s_barrier")
    for t in range(4):
        a(f"ds_read_b128 {vr(vQ+4*t,4)}, {v(vT+8)} offset:{LDS_Q + 64*t}")
    if G.stamps: a(f"s_memrealtime {sp(sTS0+2)}")
    a("s_waitcnt lgkmcnt(0)")

    rare_id = [0]
    def compute_qk(slot):
        for t in range(4):
            cc = "0" if t == 0 else vr(vS, 4)
            a(f"v_mfma_f32_16x16x32_bf16 {vr(vS,4)}, {slot_reg(slot,4*t,4)}, {vr(vQ+4*t,4)}, {cc}")
    def softmax():
        rid = rare_id[0]; rare_id[0] += 1
        p01, p23 = vT, vT+1
        b = vT + 2
        a(f"v_cvt_pk_bf16_f32 {v(p01)}, {v(vS)}, {v(vS+1)}")
        a(f"v_cvt_pk_bf16_f32 {v(p23)}, {v(vS+2)}, {v(vS+3)}")
        a(f"v_lshlrev_b32 {v(b)}, 16, {v(p01)}")
        a(f"v_and_b32 {v(b+1)}, 0xffff0000, {v(p01)}")
        a(f"v_lshlrev_b32 {v(b+2)}, 16, {v(p23)}")
        a(f"v_and_b32 {v(b+3)}, 0xffff0000, {v(p23)}")
        for k in range(4): a(f"v_mul_f32 {v(b+k)}, s{sSCALE}, {v(b+k)}")
        a(f"v_cvt_pk_bf16_f32 {v(p01)}, {v(b)}, {v(b+1)}")
        a(f"v_cvt_pk_bf16_f32 {v(p23)}, {v(b+2)}, {v(b+3)}")
        a(f"v_lshlrev_b32 {v(b)}, 16, {v(p01)}")
        a(f"v_and_b32 {v(b+1)}, 0xffff0000, {v(p01)}")
        a(f"v_lshlrev_b32 {v(b+2)}, 16, {v(p23)}")
        a(f"v_and_b32 {v(b+3)}, 0xffff0000, {v(p23)}")
        for k in range(4): a(f"v_fma_f32 {v(b+k)}, {v(b+k)}, s{sLOG2E}, {v(vNM)}")
        mx = vT + 6
        a(f"v_max3_f32 {v(mx)}, {v(b)}, {v(b+1)}, {v(b+2)}")
        a(f"v_max_f32 {v(mx)}, {v(mx)}, {v(b+3)}")
        a(f"v_cmp_lt_f32 vcc, s{sTHR}, {v(mx)}")
        a(f"s_cbranch_vccz L_back{rid}")
        a(f"s_call_b64 {sp(sPC)}, L_rare")
        lab(f"L_back{rid}")
        for k in range(4): a(f"v_exp_f32 {v(b+k)}, {v(b+k)}")
        nop(1)
        a(f"v_cvt_pk_bf16_f32 {v(p01)}, {v(b)}, {v(b+1)}")
        a(f"v_cvt_pk_bf16_f32 {v(p23)}, {v(b+2)}, {v(b+3)}")
        a(f"v_add_f32 {v(b)}, {v(b)}, {v(b+1)}")
        a(f"v_add_f32 {v(b+2)}, {v(b+2)}, {v(b+3)}")
        for k in range(4): a(f"v_perm_b32 {v(vX+k)}, {v(p01)}, {v(p01)}, {v(vSEL+k)}")
        for k in range(4): a(f"v_perm_b32 {v(vX+4+k)}, {v(p23)}, {v(p23)}, {v(vSEL+k)}")
        a(f"v_add_f32 {v(b)}, {v(b)}, {v(b+2)}")
        a(f"v_add_f32 {v(vL)}, {v(vL)}, {v(b)}")
    def compute_pv(slot):
        for u in range(4):
            a(f"v_mfma_f32_16x16x16_bf16 {vr(vO,4)}, {vr(vX+2*u,2)}, {slot_reg(slot,16+4*u,2)}, {vr(vO,4)}")
            a(f"v_mfma_f32_16x16x16_bf16 {vr(vO+4,4)}, {vr(vX+2*u,2)}, {slot_reg(slot,16+4*u+2,2)}, {vr(vO+4,4)}")

    k_iss = 0
    for n in range(R + E - A):
        slot = n if n < R else n - R
        c(f"catch-up step {n}")
        wait_vm(("K", n))
        compute_qk(slot)
        nop(8)
        softmax()
        wait_vm(("V", n))
        compute_pv(slot)
        if n in G.cu_issue:
            assert k_iss <= n
            next_tile(k_iss, R + k_iss, track=True)
            k_iss += 1
    assert k_iss == E
    lab("L_loop")
    for k in range(4):
        s = (E - A + k) % 4
        c(f"steady step slot {s}")
        ns = (s + A) % 4
        a(f"s_cmp_ge_u32 s{sOFF+s}, 0x{LIM:x}")
        a("s_cbranch_scc1 L_done")
        a(f"s_waitcnt vmcnt({8*A-4})")
        compute_qk(s)
        next_tile(ns)
        softmax()
        a(f"s_waitcnt vmcnt({8*A})")
        compute_pv(s)
    a("s_branch L_loop")

    lab("L_rare")
    b = vT + 2; mx = vT + 6; t = vT + 7; f = vT + 8
    allred_rows("v_max_f32", mx, t)
    a(f"v_max_f32 {v(mx)}, s{sFLOOR}, {v(mx)}")
    for k in range(4): a(f"v_sub_f32 {v(b+k)}, {v(b+k)}, {v(mx)}")
    a(f"v_sub_f32 {v(vNM)}, {v(vNM)}, {v(mx)}")
    a(f"v_max_f32 {v(t)}, 0, {v(mx)}")
    a(f"v_exp_f32 {v(t)}, -{v(t)}")
    nop(1)
    a(f"v_mul_f32 {v(vL)}, {v(vL)}, {v(t)}")
    nop(1)
    for h in range(4):
        a(f"v_mov_b32_dpp {v(f)}, {v(t)} row_newbcast:{4*h} row_mask:0x{1<<h:x} bank_mask:0xf")
    for k in range(8): a(f"v_mul_f32 {v(vO+k)}, {v(vO+k)}, {v(f)}")
    a(f"s_mov_b32 s{sTHR}, 0x{f2u(G.T):08x}")
    a(f"s_mov_b32 s{sFLOOR}, 0")
    a(f"s_setpc_b64 {sp(sPC)}")

    def stageA():
        a(f"v_cmp_ne_u32 vcc, 0, {v(vA+6)}")
        a("s_waitcnt lgkmcnt(0)")
        tstamp(0)
        a("s_barrier")
        if G.tstamps:
            tstamp(1); a("s_waitcnt lgkmcnt(0)")
        a(f"ds_read_b64 {vr(vQ+2,2)}, {v(vA+3)} offset:{LDS_ML+8}")
        a(f"ds_read_b128 {vr(vQ+4,4)}, {v(vA+3)} offset:{LDS_ML+16}")
        OO = vT + 4
        for w in range(1, 4):
            a(f"ds_read_b64 {vr(OO+2*w,2)}, {v(vA+4)} offset:{LDS_O + 2048*w}")
        RES = vQ + 12
        a(f"v_mov_b32 {v(RES+3)}, s{sTAGH}")
        a("s_waitcnt lgkmcnt(3)")
        nmM = vQ + 8
        a(f"v_min3_f32 {v(nmM)}, {v(vQ+2)}, {v(vQ+4)}, {v(vQ+6)}")
        for k in range(1, 4): a(f"v_sub_f32 {v(vQ+2*k)}, {v(nmM)}, {v(vQ+2*k)}")
        for k in range(1, 4): a(f"v_exp_f32 {v(vQ+2*k)}, {v(vQ+2*k)}")
        nop(1)
        a(f"v_mul_f32 {v(nmM+1)}, {v(vQ+2)}, {v(vQ+3)}")
        for k in range(2, 4): a(f"v_fmac_f32 {v(nmM+1)}, {v(vQ+2*k)}, {v(vQ+2*k+1)}")
        a(f"v_cndmask_b32 {v(nmM)}, {v(nmM)}, {v(nmM+1)}, vcc")
        a(f"v_bfe_u32 {v(nmM)}, {v(nmM)}, {v(vA+5)}, 16")
        a(f"v_or_b32 {v(RES+2)}, s{sTG16}, {v(nmM)}")
        a("s_waitcnt lgkmcnt(0)")
        for e in range(2): a(f"v_mul_f32 {v(RES+e)}, {v(vQ+2)}, {v(OO+2+e)}")
        for k in range(2, 4):
            for e in range(2): a(f"v_fmac_f32 {v(RES+e)}, {v(vQ+2*k)}, {v(OO+2*k+e)}")
        a(f"global_store_dwordx4 {v(vA)}, {vr(RES,4)}, {sp(sWS)} {G.stf}")
        tstamp(2)
    lab("L_done")
    if G.stamps: a(f"s_memrealtime s[100:101]")
    allred_rows("v_add_f32", vL, vT)
    a(f"ds_write_b128 {v(vA+1)}, {vr(vO,4)} offset:{LDS_O}")
    a(f"ds_write_b128 {v(vA+1)}, {vr(vO+4,4)} offset:{LDS_O+16}")
    a(f"ds_write_b64 {v(vA+2)}, {vr(vNM,2)} offset:{LDS_ML}")
    stageA()
    a("s_branch L_fin")
    lab("L_tail")
    stageA()
    PB = vW
    a(f"s_mov_b32 s{sT3}, 0")
    lab("L_pollB")
    for k in range(4):
        a(f"global_load_dwordx4 {vr(PB+4*k,4)}, {v(vA+8)}, {sp(sWS)} offset:{1024*k} {G.ldf}")
    a("s_waitcnt vmcnt(0)")
    a(f"v_xor_b32 {v(vT)}, s{sTG16}, {v(PB+2)}")
    a(f"v_xor_b32 {v(vT+1)}, s{sTG16}, {v(PB+6)}")
    a(f"v_xor_b32 {v(vT+2)}, s{sTG16}, {v(PB+10)}")
    a(f"v_xor_b32 {v(vT+3)}, s{sTG16}, {v(PB+14)}")
    a(f"v_or3_b32 {v(vT)}, {v(vT)}, {v(vT+1)}, {v(vT+2)}")
    a(f"v_or_b32 {v(vT)}, {v(vT)}, {v(vT+3)}")
    a(f"v_lshrrev_b32 {v(vT)}, 16, {v(vT)}")
    a(f"v_xor_b32 {v(vT+1)}, s{sTAGH}, {v(PB+3)}")
    a(f"v_xor_b32 {v(vT+2)}, s{sTAGH}, {v(PB+7)}")
    a(f"v_or3_b32 {v(vT)}, {v(vT)}, {v(vT+1)}, {v(vT+2)}")
    a(f"v_xor_b32 {v(vT+1)}, s{sTAGH}, {v(PB+11)}")
    a(f"v_xor_b32 {v(vT+2)}, s{sTAGH}, {v(PB+15)}")
    a(f"v_or3_b32 {v(vT)}, {v(vT)}, {v(vT+1)}, {v(vT+2)}")
    a(f"v_cmp_ne_u32 vcc, 0, {v(vT)}")
    a("s_and_b64 exec, exec, vcc")
    a("s_cbranch_execz L_pollB_done")
    poll_tail("L_pollB")
    lab("L_pollB_done")
    tstamp(3)
    a("s_mov_b64 exec, -1")
    NMr, Lr = vT + 4, vT + 8
    TA, TB = vT + 12, vT + 16
    for k in range(4):
        a(f"v_mov_b32_dpp {v(TA+k)}, {v(PB+4*k+2)} quad_perm:[0,0,0,0] {DPP}")
        a(f"v_mov_b32_dpp {v(TB+k)}, {v(PB+4*k+2)} quad_perm:[1,1,1,1] {DPP}")
    for k in range(4):
        a(f"v_perm_b32 {v(NMr+k)}, {v(TB+k)}, {v(TA+k)}, s{sT0}")
    M = vT
    a(f"v_min3_f32 {v(M)}, {v(NMr)}, {v(NMr+1)}, {v(NMr+2)}")
    a(f"v_min_f32 {v(M)}, {v(M)}, {v(NMr+3)}")
    a(f"v_mov_b32_dpp {v(TA)}, {v(PB+2)} quad_perm:[2,2,2,2] {DPP}")
    a(f"v_mov_b32_dpp {v(TB)}, {v(PB+2)} quad_perm:[3,3,3,3] {DPP}")
    a(f"v_min_f32_dpp {v(M)}, {v(M)}, {v(M)} row_ror:8 {DPP}")
    a(f"v_mov_b32 {v(vT+1)}, {v(M)}")
    a(f"v_mov_b32_dpp {v(TA+1)}, {v(PB+6)} quad_perm:[2,2,2,2] {DPP}")
    a(f"v_mov_b32_dpp {v(TB+1)}, {v(PB+6)} quad_perm:[3,3,3,3] {DPP}")
    a(f"v_permlane16_swap_b32 {v(M)}, {v(vT+1)}")
    a(f"v_mov_b32_dpp {v(TA+2)}, {v(PB+10)} quad_perm:[2,2,2,2] {DPP}")
    a(f"v_min_f32 {v(M)}, {v(M)}, {v(vT+1)}")
    a(f"v_mov_b32 {v(vT+1)}, {v(M)}")
    a(f"v_mov_b32_dpp {v(TB+2)}, {v(PB+10)} quad_perm:[3,3,3,3] {DPP}")
    a(f"v_mov_b32_dpp {v(TA+3)}, {v(PB+14)} quad_perm:[2,2,2,2] {DPP}")
    a(f"v_permlane32_swap_b32 {v(M)}, {v(vT+1)}")
    a(f"v_mov_b32_dpp {v(TB+3)}, {v(PB+14)} quad_perm:[3,3,3,3] {DPP}")
    a(f"v_min_f32 {v(M)}, {v(M)}, {v(vT+1)}")
    for k in range(4): a(f"v_sub_f32 {v(NMr+k)}, {v(M)}, {v(NMr+k)}")
    for k in range(4): a(f"v_exp_f32 {v(NMr+k)}, {v(NMr+k)}")
    for k in range(4): a(f"v_perm_b32 {v(Lr+k)}, {v(TB+k)}, {v(TA+k)}, s{sT0}")
    o0, o1, la, lb = vT, vT+1, vT+2, vT+3
    a(f"v_mul_f32 {v(o0)}, {v(NMr)}, {v(PB)}")
    a(f"v_mul_f32 {v(o1)}, {v(NMr)}, {v(PB+1)}")
    a(f"v_mul_f32 {v(la)}, {v(NMr)}, {v(Lr)}")
    for k in range(1, 4):
        a(f"v_fmac_f32 {v(o0)}, {v(NMr+k)}, {v(PB+4*k)}")
        a(f"v_fmac_f32 {v(o1)}, {v(NMr+k)}, {v(PB+4*k+1)}")
        a(f"v_fmac_f32 {v(la)}, {v(NMr+k)}, {v(Lr+k)}")
    a(f"v_mov_b32 {v(lb)}, {v(la)}")
    a(f"v_permlane32_swap_b32 {v(o0)}, {v(o1)}")
    nop(1)
    a(f"v_permlane32_swap_b32 {v(la)}, {v(lb)}")
    a(f"v_add_f32 {v(o0)}, {v(o0)}, {v(o1)}")
    a(f"v_add_f32 {v(la)}, {v(la)}, {v(lb)}")
    a(f"v_mov_b32 {v(o1)}, {v(o0)}")
    a(f"v_mov_b32 {v(lb)}, {v(la)}")
    nop(1)
    a(f"v_permlane16_swap_b32 {v(o0)}, {v(o1)}")
    a(f"v_permlane16_swap_b32 {v(la)}, {v(lb)}")
    a(f"v_add_f32 {v(o0)}, {v(o0)}, {v(o1)}")
    a(f"v_add_f32 {v(la)}, {v(la)}, {v(lb)}")
    nop(1)
    a(f"v_add_f32_dpp {v(o0)}, {v(o0)}, {v(o0)} row_ror:8 {DPP}")
    a(f"v_add_f32_dpp {v(la)}, {v(la)}, {v(la)} row_ror:8 {DPP}")
    a(f"v_rcp_f32 {v(lb)}, {v(la)}")
    a(f"v_mov_b32_dpp {v(o0)}, {v(o0)} row_shl:1 row_mask:0xa bank_mask:0xf")
    a(f"v_fma_f32 {v(o1)}, -{v(la)}, {v(lb)}, 1.0")
    a(f"v_fma_f32 {v(lb)}, {v(o1)}, {v(lb)}, {v(lb)}")
    a(f"v_mul_f32 {v(o0)}, {v(o0)}, {v(lb)}")
    a(f"v_cvt_pk_bf16_f32 {v(o0)}, {v(o0)}, {v(o0)}")
    nop(2)
    AO = vQ
    DD = vW + 16
    for u in range(4):
        for r in range(4):
            a(f"v_and_b32_dpp {v(AO+4*u+r)}, {v(o0)}, {v(vMASK+r)} row_newbcast:{2*u} {DPP}")
    nop(1)
    for cb in range(4):
        for u in range(4):
            cc = "0" if u == 0 else vr(DD+4*cb, 4)
            a(f"v_mfma_f32_16x16x32_bf16 {vr(DD+4*cb,4)}, {vr(AO+4*u,4)}, {vr(vWO+16*cb+4*u,4)}, {cc}")
    for cb in range(4):
        d = DD + 4*cb
        if cb == 3: nop(2)
        a(f"v_permlane32_swap_b32 {v(d)}, {v(d+2)}")
        a(f"v_permlane32_swap_b32 {v(d+1)}, {v(d+3)}")
        a(f"v_mov_b32 {v(d+2)}, s{sTAGL}")
        a(f"v_mov_b32 {v(d+3)}, s{sTAGH}")
        a(f"global_store_dwordx4 {v(vA+9)}, {vr(d,4)}, {sp(sWS)} offset:{1024*cb} {G.stf}")
    tstamp(4)
    PC = vW
    a(f"s_mov_b32 s{sT3}, 0")
    lab("L_pollC")
    for k in range(4):
        a(f"global_load_dwordx4 {vr(PC+4*k,4)}, {v(vPA+k)}, {sp(sWS)} {G.ldf}")
    a("s_waitcnt vmcnt(0)")
    a(f"v_xor_b32 {v(vT)}, s{sTAGL}, {v(PC+2)}")
    a(f"v_xor_b32 {v(vT+1)}, s{sTAGH}, {v(PC+3)}")
    for k in range(1, 4):
        a(f"v_xor_b32 {v(vT+2)}, s{sTAGL}, {v(PC+4*k+2)}")
        a(f"v_xor_b32 {v(vT+3)}, s{sTAGH}, {v(PC+4*k+3)}")
        a(f"v_or3_b32 {v(vT)}, {v(vT)}, {v(vT+2)}, {v(vT+3)}")
    a(f"v_or_b32 {v(vT)}, {v(vT)}, {v(vT+1)}")
    a(f"v_cmp_ne_u32 vcc, 0, {v(vT)}")
    a("s_and_b64 exec, exec, vcc")
    a("s_cbranch_execz L_pollC_done")
    poll_tail("L_pollC")
    lab("L_pollC_done")
    tstamp(5)
    a("s_mov_b64 exec, -1")
    a(f"v_add_f32 {v(PC)}, {v(PC)}, {v(PC+4)}")
    a(f"v_add_f32 {v(PC+1)}, {v(PC+1)}, {v(PC+5)}")
    a(f"v_add_f32 {v(PC+8)}, {v(PC+8)}, {v(PC+12)}")
    a(f"v_add_f32 {v(PC+9)}, {v(PC+9)}, {v(PC+13)}")
    a(f"v_add_f32 {v(PC)}, {v(PC)}, {v(PC+8)}")
    a(f"v_add_f32 {v(PC+1)}, {v(PC+1)}, {v(PC+9)}")
    nop(2)
    a(f"v_permlane32_swap_b32 {v(PC)}, {v(PC+1)}")
    nop(1)
    a(f"v_add_f32 {v(PC)}, {v(PC)}, {v(PC+1)}")
    allred16("v_add_f32", PC)
    a(f"v_mov_b32 {v(vT)}, {v(PC)}")
    nop(2)
    a(f"v_permlane16_swap_b32 {v(PC)}, {v(vT)}")
    nop(1)
    a(f"v_add_f32 {v(PC)}, {v(PC)}, {v(vT)}")
    a(f"v_mov_b32 {v(PC+1)}, {v(PC)}")
    nop(2)
    a(f"v_permlane32_swap_b32 {v(PC)}, {v(PC+1)}")
    nop(1)
    rbf2(PC, PC+1)
    a(f"v_mul_f32 {v(PC)}, {v(PC)}, {v(g0)}")
    a(f"v_mul_f32 {v(PC+1)}, {v(PC+1)}, {v(g1)}")
    rbf2(PC, PC+1)
    a(f"v_add_f32 {v(PC)}, {v(PC)}, {v(vA+11)}")
    a(f"v_add_f32 {v(PC+1)}, {v(PC+1)}, {v(vA+12)}")
    a(f"v_cvt_pk_bf16_f32 {v(PC)}, {v(PC)}, {v(PC+1)}")
    a("s_mov_b64 exec, 1")
    a(f"global_store_dword {v(vA+10)}, {v(PC)}, {sp(sOUT)}")
    a("s_cmp_lg_u32 s2, 0")
    a("s_cbranch_scc1 L_noep")
    a(f"v_mov_b32 {v(vT)}, {WS_EP}")
    a(f"v_mov_b32 {v(vT+2)}, s{sTAGL}")
    a(f"v_mov_b32 {v(vT+3)}, s{sTAGH}")
    a(f"global_store_dwordx2 {v(vT)}, {vr(vT+2,2)}, {sp(sWS)} sc1")
    lab("L_noep")
    a("s_mov_b64 exec, -1")
    lab("L_fin")
    if G.stamps:
        a(f"s_memrealtime s[82:83]")
        a("s_waitcnt lgkmcnt(0)")
        a(f"s_lshl_b32 s{sT2}, s2, 2")
        a(f"s_add_u32 s{sT2}, s{sT2}, s{sWV}")
        a(f"s_lshl_b32 s{sT2}, s{sT2}, 6")
        a(f"s_add_u32 s{sT2}, s{sT2}, {WS_TS}")
        a(f"v_mov_b32 v2, s{sT2}")
        a(f"v_mov_b32 v4, s{sTS0}")
        a(f"v_mov_b32 v5, s{sTS0+2}")
        a(f"v_mov_b32 v6, s100")
        a(f"v_mov_b32 v7, s82")
        a(f"v_mov_b32 v8, s{sN}")
        a(f"s_getreg_b32 s{sT2}, hwreg(HW_REG_XCC_ID)")
        a(f"v_mov_b32 v9, s{sT2}")
        a("s_mov_b64 exec, 1")
        a(f"global_store_dwordx4 v2, v[4:7], {sp(sWS)}")
        a(f"global_store_dwordx2 v2, v[8:9], {sp(sWS)} offset:16")
        for k in range(6): a(f"v_mov_b32 v{10+k}, s{4+2*k}")
        a(f"global_store_dwordx4 v2, v[10:13], {sp(sWS)} offset:32")
        a(f"global_store_dwordx2 v2, v[14:15], {sp(sWS)} offset:48")
    lab("L_end")
    a("s_endpgm")
    tail = ['.section .rodata,"a"', ".p2align 6", f".amdhsa_kernel {KN}",
            f"  .amdhsa_next_free_vgpr {NV+256}", "  .amdhsa_next_free_sgpr 102", f"  .amdhsa_accum_offset {NV}",
            "  .amdhsa_group_segment_fixed_size 0", "  .amdhsa_kernarg_size 104", "  .amdhsa_user_sgpr_count 2",
            "  .amdhsa_user_sgpr_kernarg_segment_ptr 1", "  .amdhsa_system_sgpr_workgroup_id_x 1",
            "  .amdhsa_float_denorm_mode_32 3",
            ".end_amdhsa_kernel"]
    return "\n".join(hdr + G.L + tail) + "\n"

if __name__ == "__main__":
    import argparse, json
    ap = argparse.ArgumentParser()
    ap.add_argument("-o", default="k.s")
    ap.add_argument("kv", nargs="*")
    args = ap.parse_args()
    kw = {}
    for x in args.kv:
        k, val = x.split("=")
        kw[k] = json.loads(val)
    open(args.o, "w").write(build(**kw))
```

```python
import sys, struct, math

KN = "recurrent_scan__gqa_block_cached__mixer_token_mlp__decode_kernel"

def f2u(x):
    return struct.unpack("<I", struct.pack("<f", x))[0]

class Gen:
    def __init__(self, **kw):
        self.L = []
        self.vm = []
        self.__dict__.update(kw)
    def a(self, s): self.L.append("  " + s)
    def lab(self, s): self.L.append(s + ":")
    def c(self, s): self.L.append("  ; " + s)
    def vmem(self, s, tag=None):
        self.a(s); self.vm.append(tag)
    def wait_vm(self, tag):
        if tag not in self.vm: return
        idx = max(i for i, t in enumerate(self.vm) if t == tag)
        n = len(self.vm) - 1 - idx
        n = min(n, 63)
        self.a(f"s_waitcnt vmcnt({n})")
        self.vm = self.vm[len(self.vm)-n:] if n else []
    def nop(self, n):
        if n > 0: self.a(f"s_nop {n-1}")

WS_Q   = 0x40000
WS_EP  = 0x8000
WS_CNT = 0x10000
CNT_STRIDE = 1280
CNT_BIAS = 0x10000
WS_P2  = 0x100000
WS_S2  = 0x200000
WS_TS  = 0x1000000
LDS_XN   = 0
LDS_Q    = 1024
LDS_ML   = 2048
LDS_O    = 2304
LDS_QP   = 2304
LDS_TOTAL = 2304 + 8192
LOG2E = 1.4426950408889634
SCALE = 128 ** -0.5
LCG_A, LCG_C = 1664525, 1013904223
REG = 0x200000
LIM = 0x1000000

DEFAULTS = dict(A=2, R=12, NS=40, P=3, T=20.0, dyn=True, stamps=False, tstamps=False, poll_max=4000000,
                cu_issue=(0, 1, 6, 10), q_sleep=12, q_first=0, pretouch=0, stf='sc1', ldf='sc1')

def build(**kw):
    p = dict(DEFAULTS); p.update(kw)
    G = Gen(**p)
    a, lab, c, vmem, wait_vm, nop = G.a, G.lab, G.c, G.vmem, G.wait_vm, G.nop
    A, R, NS = G.A, G.R, G.NS
    E = len(G.cu_issue)
    assert A <= E <= 4 and R <= 12
    POLL_MAX = G.poll_max
    hdr = [f"; @launch grid=(256,1,1) block=(256,1,1) lds={LDS_TOTAL}",
           '.amdgcn_target "amdgcn-amd-amdhsa--gfx950"', ".text", f".globl {KN}", ".p2align 8",
           f".type {KN},@function", f"{KN}:"]
    sX, sK, sV, sWQ, sWO, sBX, sW1, sB1 = 16, 18, 20, 22, 24, 26, 28, 30
    sW2, sB2, sOUT, sDBG, sWS = 32, 34, 36, 38, 40
    sTAGL, sTAGH = 42, 43
    srdK, srdV = 44, 48
    sOFF = 52; sTK = 56; sDYNB = 60; sTG16 = 61
    sWV, sA, sB, sG, sI = 72, 73, 74, 75, 76
    sN, sSTAT, sEXH, sCNTOFF, sBH = 77, 78, 79, 80, 81
    sT0, sT1, sT2, sT3 = 82, 83, 84, 85
    sTHR, sFLOOR = 86, 87
    sXD = 88
    sC0 = 90
    sPC = 92
    sTS0 = 94
    sLOG2E, sSCALE = 98, 99
    def sp(r): return f"s[{r}:{r+1}]"
    def sq(r): return f"s[{r}:{r+3}]"
    vLANE = 1; vKOFF = 2; vVOFF = 3
    vQ = 4; vO = 20; vNM = 28; vL = 29; vSEL = 30; vS = 34; vX = 38
    vT = 46
    vA = 80
    vPA = 96
    vMASK = 100
    vW = 104
    vWO = 136
    vG = 232
    NV = 236
    def v(r): return f"v{r}"
    def vr(r, n): return f"v[{r}:{r+n-1}]"
    def slot_reg(slot, off, n):
        if slot < 8:
            r = 32*slot + off
            return f"a[{r}:{r+n-1}]"
        r = vW + 32*(slot-8) + off
        return f"v[{r}:{r+n-1}]"
    def stamp(k):
        if G.stamps and not G.tstamps: a(f"s_memrealtime s[{4+2*k}:{5+2*k}]")
    def tstamp(k):
        if G.tstamps: a(f"s_memrealtime s[{4+2*k}:{5+2*k}]")
    DPP = "row_mask:0xf bank_mask:0xf"
    def allred16(op, r, steps=("quad_perm:[1,0,3,2]", "quad_perm:[2,3,0,1]", "row_half_mirror", "row_mirror")):
        for s in steps:
            nop(2)
            a(f"{op}_dpp {v(r)}, {v(r)}, {v(r)} {s} {DPP}")
    def allred_rows(op, r, t):
        a(f"v_mov_b32 {v(t)}, {v(r)}")
        nop(2)
        a(f"v_permlane16_swap_b32 {v(r)}, {v(t)}")
        nop(1)
        a(f"{op} {v(r)}, {v(r)}, {v(t)}")
        a(f"v_mov_b32 {v(t)}, {v(r)}")
        nop(2)
        a(f"v_permlane32_swap_b32 {v(r)}, {v(t)}")
        nop(1)
        a(f"{op} {v(r)}, {v(r)}, {v(t)}")
    def allred64(op, r, t):
        allred16(op, r); allred_rows(op, r, t)
    def rbf(r):
        a(f"v_cvt_pk_bf16_f32 {v(r)}, {v(r)}, {v(r)}")
        a(f"v_and_b32 {v(r)}, 0xffff0000, {v(r)}")
    def rbf2(r0, r1):
        a(f"v_cvt_pk_bf16_f32 {v(r1)}, {v(r0)}, {v(r1)}")
        a(f"v_lshlrev_b32 {v(r0)}, 16, {v(r1)}")
        a(f"v_and_b32 {v(r1)}, 0xffff0000, {v(r1)}")
    def poll_tail(label, sleep=0):
        if sleep: a(f"s_sleep {sleep}")
        a(f"s_add_u32 s{sT3}, s{sT3}, 1")
        a(f"s_cmp_lt_u32 s{sT3}, {POLL_MAX}")
        a(f"s_cbranch_scc1 {label}")
    def tags():
        a(f"s_mul_i32 s{sTAGL}, s{sTAGL}, {LCG_A}")
        a(f"s_add_u32 s{sTAGL}, s{sTAGL}, {LCG_C}")
        a(f"s_mul_i32 s{sTAGH}, s{sTAGH}, {LCG_A}")
        a(f"s_add_u32 s{sTAGH}, s{sTAGH}, {LCG_C}")
        a(f"s_and_b32 s{sTG16}, s{sTAGL}, 0xffff0000")

    t0, t1, t2, t3 = vS, vS+1, vS+2, vS+3
    F = vX
    def unpack8(dst, src):
        for j in range(4):
            a(f"v_lshlrev_b32 {v(dst+2*j)}, 16, {v(src+j)}")
            a(f"v_and_b32 {v(dst+2*j+1)}, 0xffff0000, {v(src+j)}")
    def ln_stats(F):
        a(f"v_add_f32 {v(t0)}, {v(F)}, {v(F+1)}")
        a(f"v_add_f32 {v(t1)}, {v(F+2)}, {v(F+3)}")
        a(f"v_add_f32 {v(t2)}, {v(F+4)}, {v(F+5)}")
        a(f"v_add_f32 {v(t3)}, {v(F+6)}, {v(F+7)}")
        a(f"v_add_f32 {v(t0)}, {v(t0)}, {v(t1)}")
        a(f"v_add_f32 {v(t2)}, {v(t2)}, {v(t3)}")
        a(f"v_add_f32 {v(t0)}, {v(t0)}, {v(t2)}")
        allred64("v_add_f32", t0, t3)
        a(f"v_mul_f32 {v(t0)}, 0x3b000000, {v(t0)}")
        a(f"v_sub_f32 {v(t2)}, {v(F)}, {v(t0)}")
        a(f"v_mul_f32 {v(t1)}, {v(t2)}, {v(t2)}")
        for j in range(1, 8):
            a(f"v_sub_f32 {v(t2)}, {v(F+j)}, {v(t0)}")
            a(f"v_fmac_f32 {v(t1)}, {v(t2)}, {v(t2)}")
        allred64("v_add_f32", t1, t3)
        a(f"v_mul_f32 {v(t1)}, 0x3b000000, {v(t1)}")
        rbf2(t0, t1)
        a(f"v_add_f32 {v(t1)}, 0x{f2u(1e-5):08x}, {v(t1)}")
        rbf(t1)
        a(f"v_sqrt_f32 {v(t2)}, {v(t1)}")
        nop(1)
        a(f"v_rcp_f32 {v(t3)}, {v(t2)}")
        a(f"v_fma_f32 {v(vT)}, -{v(t2)}, {v(t2)}, {v(t1)}")
        a(f"v_mul_f32 {v(t3)}, 0.5, {v(t3)}")
        a(f"v_fma_f32 {v(t1)}, {v(vT)}, {v(t3)}, {v(t2)}")
        rbf(t1)
        a(f"v_rcp_f32 {v(t2)}, {v(t1)}")
        nop(1)
        a(f"v_fma_f32 {v(t3)}, -{v(t1)}, {v(t2)}, 1.0")
        a(f"v_fma_f32 {v(t2)}, {v(t3)}, {v(t2)}, {v(t2)}")
    def ln_apply2(r0, r1, tmp):
        a(f"v_sub_f32 {v(r0)}, {v(r0)}, {v(t0)}")
        a(f"v_sub_f32 {v(r1)}, {v(r1)}, {v(t0)}")
        rbf2(r0, r1)
        for r in (r0, r1):
            a(f"v_mul_f32 {v(tmp)}, {v(r)}, {v(t2)}")
            a(f"v_fma_f32 {v(r)}, -{v(tmp)}, {v(t1)}, {v(r)}")
            a(f"v_fma_f32 {v(r)}, {v(r)}, {v(t2)}, {v(tmp)}")
    def wo_issue():
        a(f"v_lshrrev_b32 {v(vT)}, 4, {v(vLANE)}")
        a(f"v_and_b32 {v(vT+1)}, 1, {v(vT)}")
        a(f"v_lshlrev_b32 {v(vT+1)}, 1, {v(vT+1)}")
        a(f"v_lshrrev_b32 {v(vT)}, 1, {v(vT)}")
        a(f"v_add_u32 {v(vT)}, {v(vT)}, {v(vT+1)}")
        a(f"v_lshlrev_b32 {v(vT)}, 10, {v(vT)}")
        a(f"v_and_b32 {v(vT+1)}, 15, {v(vLANE)}")
        a(f"v_lshl_add_u32 {v(vT)}, {v(vT+1)}, 4, {v(vT)}")
        a(f"s_lshl_b32 s{sT1}, s{sG}, 5")
        a(f"s_add_u32 s{sT1}, s{sT1}, s{sI}")
        a(f"s_lshl_b32 s{sT1}, s{sT1}, 14")
        a(f"v_add_u32 {v(vT+11)}, s{sT1}, {v(vT)}")
        a(f"v_add_u32 {v(vT+12)}, 0x1000, {v(vT+11)}")
        a(f"v_add_u32 {v(vT+13)}, 0x2000, {v(vT+11)}")
        a(f"v_add_u32 {v(vT+14)}, 0x3000, {v(vT+11)}")
        for u, r in enumerate((vT+11, vT+12, vT+13, vT+14)):
            for cb in range(4):
                a(f"global_load_dwordx4 {vr(vWO+16*cb+4*u,4)}, {v(r)}, {sp(sWO)} offset:{256*cb} nt")
    def tail_addr():
        a(f"s_lshl_b32 s{sT0}, s{sG}, 2")
        a(f"s_add_u32 s{sT0}, s{sT0}, s{sWV}")
        a(f"s_lshl_b32 s{sT1}, s{sT0}, 15")
        a(f"s_lshl_b32 s{sT2}, s{sI}, 7")
        a(f"s_add_u32 s{sT1}, s{sT1}, s{sT2}")
        a(f"s_add_u32 s{sT1}, s{sT1}, {WS_P2}")
        a(f"v_lshrrev_b32 {v(vT)}, 3, {v(vLANE)}")
        a(f"v_lshlrev_b32 {v(vT)}, 12, {v(vT)}")
        a(f"v_and_b32 {v(vT+1)}, 7, {v(vLANE)}")
        a(f"v_lshl_add_u32 {v(vT)}, {v(vT+1)}, 4, {v(vT)}")
        a(f"v_add_u32 {v(vA)}, s{sT1}, {v(vT)}")
        a(f"s_lshl_b32 s{sT1}, s{sWV}, 11")
        a(f"v_lshl_add_u32 {v(vA+1)}, {v(vLANE)}, 5, s{sT1}")
        a(f"v_bfe_u32 {v(vT+1)}, {v(vLANE)}, 2, 2")
        a(f"s_lshl_b32 s{sT1}, s{sWV}, 3")
        a(f"v_lshl_add_u32 {v(vA+2)}, {v(vT+1)}, 5, s{sT1}")
        a(f"s_lshl_b32 s{sT1}, s{sWV}, 5")
        a(f"v_mov_b32 {v(vA+3)}, s{sT1}")
        a(f"s_lshl_b32 s{sT1}, s{sWV}, 9")
        a(f"v_lshl_add_u32 {v(vA+4)}, {v(vLANE)}, 3, s{sT1}")
        a(f"v_and_b32 {v(vT)}, 1, {v(vLANE)}")
        a(f"v_lshlrev_b32 {v(vA+5)}, 4, {v(vT)}")
        a(f"v_and_b32 {v(vA+6)}, 2, {v(vLANE)}")
    def issue_tile(slot, soff, tag=None, track=True):
        for t in range(4):
            s = f"buffer_load_dwordx4 {slot_reg(slot,4*t,4)}, {v(vKOFF)}, {sq(srdK)}, {soff} offen offset:{64*t} nt"
            vmem(s, ("K", tag)) if track else a(s)
        for u in range(4):
            s = f"buffer_load_dwordx4 {slot_reg(slot,16+4*u,4)}, {v(vVOFF)}, {sq(srdV)}, {soff} offen offset:{1024*u} nt"
            vmem(s, ("V", tag)) if track else a(s)
    TSTR = 12 * 4096
    NDYN = 2 * (512 - NS * 12)
    uid = [0]
    def next_tile(ns, tag=None, track=False):
        u = uid[0]; uid[0] += 1
        if G.dyn:
            a(f"s_cmp_lt_u32 s{sN}, {NS}")
            a(f"s_cbranch_scc1 L_st{u}")
            a(f"s_waitcnt lgkmcnt({G.P-1})")
            a(f"s_cmp_lg_u32 s{sTK+ns}, 1")
            a(f"s_cbranch_scc1 L_tk{u}")
            a("s_waitcnt lgkmcnt(0)")
            lab(f"L_tk{u}")
            a(f"s_and_b32 s{sT1}, s{sTK+ns}, 1")
            a(f"s_lshl_b32 s{sT1}, s{sT1}, 21")
            a(f"s_and_b32 s{sSTAT}, s{sTK+ns}, 0xfffe")
            a(f"s_lshl_b32 s{sSTAT}, s{sSTAT}, 11")
            a(f"s_add_u32 s{sSTAT}, s{sSTAT}, s{sT1}")
            a(f"s_add_u32 s{sSTAT}, s{sSTAT}, s{sDYNB}")
            a(f"s_cmp_ge_u32 s{sTK+ns}, {CNT_BIAS + NDYN}")
            a(f"s_cselect_b32 s{sEXH}, 0x{LIM:x}, s{sEXH}")
            a(f"s_max_u32 s{sSTAT}, s{sSTAT}, s{sEXH}")
            lab(f"L_st{u}")
            a(f"s_mov_b32 s{sOFF+ns}, s{sSTAT}")
            a(f"s_add_u32 s{sSTAT}, s{sSTAT}, {TSTR}")
            a(f"s_add_u32 s{sN}, s{sN}, 1")
            a(f"s_cmp_lg_u32 s{sEXH}, 0")
            a(f"s_cbranch_scc1 L_nq{u}")
            a(f"s_cmp_lt_u32 s{sN}, {NS - G.P + 1}")
            a(f"s_cbranch_scc1 L_nq{u}")
            a(f"s_mov_b32 s{sTK+(ns+G.P)%4}, 1")
            a(f"s_atomic_add s{sTK+(ns+G.P)%4}, {sp(sWS)}, s{sCNTOFF} glc")
            lab(f"L_nq{u}")
        else:
            a(f"s_cmp_ge_u32 s{sSTAT}, s{sDYNB}")
            a(f"s_cselect_b32 s{sOFF+ns}, 0x{LIM:x}, s{sSTAT}")
            a(f"s_add_u32 s{sSTAT}, s{sSTAT}, {TSTR}")
        issue_tile(ns, f"s{sOFF+ns}", tag, track)

    a("s_cmp_ge_u32 s2, 256")
    a("s_cbranch_scc1 L_end")
    if G.stamps: a(f"s_memrealtime {sp(sTS0)}")
    a("s_load_dwordx16 s[16:31], s[0:1], 0")
    a("s_load_dwordx8 s[32:39], s[0:1], 64")
    a("s_load_dwordx2 s[40:41], s[0:1], 96")
    a(f"v_and_b32 {v(vLANE)}, 63, v0")
    a(f"v_lshrrev_b32 {v(vT)}, 6, v0")
    a(f"s_and_b32 s{sA}, s2, 7")
    a(f"v_readfirstlane_b32 s{sWV}, {v(vT)}")
    a(f"s_lshr_b32 s{sB}, s2, 3")
    a(f"v_lshlrev_b32 {v(vVOFF)}, 4, {v(vLANE)}")
    a(f"s_and_b32 s{sG}, s{sB}, 7")
    a(f"s_lshr_b32 s{sBH}, s{sB}, 3")
    a(f"s_lshl_b32 s{sT0}, s{sBH}, 3")
    a(f"s_add_u32 s{sI}, s{sT0}, s{sA}")
    a(f"s_mov_b32 s{sLOG2E}, 0x{f2u(LOG2E):08x}")
    a(f"s_mov_b32 s{sN}, 0")
    a(f"s_cmp_lg_u32 s{sWV}, 0")
    a("s_cbranch_scc1 L_stream")
    a(f"v_lshrrev_b32 {v(vT)}, 3, {v(vLANE)}")
    a(f"v_lshlrev_b32 {v(vT)}, 17, {v(vT)}")
    a(f"v_and_b32 {v(vT+1)}, 7, {v(vLANE)}")
    a(f"v_lshl_add_u32 {v(vT)}, {v(vT+1)}, 4, {v(vT)}")
    a(f"s_lshl_b32 s{sT1}, s{sA}, 3")
    a(f"s_add_u32 s{sT3}, s{sT1}, s{sG}")
    a(f"s_lshl_b32 s{sT1}, s{sT3}, 7")
    a(f"s_lshl_b32 s{sT2}, s{sBH}, 20")
    a(f"s_add_u32 s{sT1}, s{sT1}, s{sT2}")
    a(f"v_add_u32 {v(vT+16)}, s{sT1}, {v(vT)}")
    a(f"v_add_u32 {v(vT+17)}, 0x2000, {v(vT+16)}")
    a(f"s_lshl_b32 s{sT1}, s{sA}, 2")
    a(f"s_and_b32 s{sT2}, s{sG}, 3")
    a(f"s_add_u32 s{sT1}, s{sT1}, s{sT2}")
    a(f"s_mul_i32 s{sT1}, s{sT1}, {CNT_STRIDE}")
    a(f"s_add_u32 s{sT1}, s{sT1}, {WS_CNT}")
    a(f"v_mov_b32 {v(vT+9)}, s{sT1}")
    a(f"v_mov_b32 {v(vT+10)}, 0x{CNT_BIAS:x}")
    a("s_waitcnt lgkmcnt(0)")
    a(f"s_load_dwordx2 {sp(sTAGL)}, {sp(sWS)}, {WS_EP}")
    vmem(f"global_load_dwordx4 {vr(vW,4)}, {v(vVOFF)}, {sp(sX)}", "x")
    W0 = vW + 4
    for j in range(8):
        vmem(f"global_load_dwordx4 {vr(W0+8*j,4)}, {v(vT+16)}, {sp(sWQ)} nt", ("wq", j))
        vmem(f"global_load_dwordx4 {vr(W0+8*j+4,4)}, {v(vT+17)}, {sp(sWQ)} nt", ("wq", j))
        if j < 7:
            a(f"v_add_u32 {v(vT+16)}, 0x4000, {v(vT+16)}")
            a(f"v_add_u32 {v(vT+17)}, 0x4000, {v(vT+17)}")
        if j == 3:
            a("s_mov_b64 exec, 1")
            vmem(f"global_store_dword {v(vT+9)}, {v(vT+10)}, {sp(sWS)} sc1", "clr")
            a("s_mov_b64 exec, -1")
    a(f"s_lshl_b32 s{sT1}, s{sA}, 2")
    a(f"s_add_u32 s{sT1}, s{sT1}, s{sBH}")
    a(f"s_lshl_b32 s{sT1}, s{sT1}, 3")
    a(f"s_add_u32 s{sT1}, s{sT1}, s{sG}")
    a(f"s_lshl_b32 s{sT1}, s{sT1}, 9")
    a(f"s_add_u32 s{sT1}, s{sT1}, {WS_Q}")
    a(f"v_and_b32 {v(vT)}, 7, {v(vLANE)}")
    a(f"v_lshrrev_b32 {v(vT+1)}, 4, {v(vLANE)}")
    a(f"v_lshl_add_u32 {v(vT)}, {v(vT)}, 2, {v(vT+1)}")
    a(f"v_lshl_add_u32 {v(vT+21)}, {v(vT)}, 4, s{sT1}")
    a(f"s_lshl_b32 s{sT2}, s{sG}, 14")
    a(f"s_add_u32 s{sT2}, s{sT2}, {WS_Q}")
    a(f"v_add_u32 {v(vT+22)}, s{sT2}, {v(vVOFF)}")
    a(f"v_add_u32 {v(vT+23)}, 0x1000, {v(vT+22)}")
    a(f"v_add_u32 {v(vT+24)}, 0x2000, {v(vT+22)}")
    a(f"v_add_u32 {v(vT+25)}, 0x3000, {v(vT+22)}")
    a(f"v_and_b32 {v(vT)}, 31, {v(vLANE)}")
    a(f"v_lshl_add_u32 {v(vT+26)}, {v(vT)}, 9, s{sT2}")
    a(f"s_lshl_b32 s{sC0}, s{sA}, 6")
    a(f"s_lshl_b32 s{sT1}, s{sB}, 1")
    a(f"s_add_u32 s{sC0}, s{sC0}, s{sT1}")
    wait_vm("x")
    stamp(0)
    unpack8(F, vW)
    ln_stats(F)
    for j in range(4):
        ln_apply2(F+2*j, F+2*j+1, vT)
        a(f"v_cvt_pk_bf16_f32 {v(vW+j)}, {v(F+2*j)}, {v(F+2*j+1)}")
    a(f"ds_write_b128 {v(vVOFF)}, {vr(vW,4)} offset:{LDS_XN}")
    a(f"s_mov_b32 s{sT1}, 0x05040100")
    a(f"s_mov_b32 s{sT2}, 0x07060302")
    XN = vX
    a(f"v_lshrrev_b32 {v(vT+1)}, 3, {v(vLANE)}")
    a(f"s_lshl_b32 s{sT0}, s{sBH}, 8")
    a(f"v_lshl_add_u32 {v(vT+1)}, {v(vT+1)}, 5, s{sT0}")
    a(f"ds_read_b128 {vr(XN,4)}, {v(vT+1)} offset:{LDS_XN}")
    a(f"ds_read_b128 {vr(XN+4,4)}, {v(vT+1)} offset:{LDS_XN+16}")
    ACC = vQ; PT = vQ + 8
    for j in range(8):
        wait_vm(("wq", j))
        if j == 0: stamp(1)
        ra, rb = W0 + 8*j, W0 + 8*j + 4
        for d in range(4):
            a(f"v_perm_b32 {v(PT+2*d)}, {v(rb+d)}, {v(ra+d)}, s{sT1}")
            a(f"v_perm_b32 {v(PT+2*d+1)}, {v(rb+d)}, {v(ra+d)}, s{sT2}")
        if j == 0: a("s_waitcnt lgkmcnt(0)")
        for cidx in range(8):
            cc = "0" if j == 0 else v(ACC+cidx)
            a(f"v_dot2_f32_bf16 {v(ACC+cidx)}, {v(PT+cidx)}, {v(XN+j)}, {cc}")
    tags()
    for cidx in range(4):
        a(f"v_permlane32_swap_b32 {v(ACC+cidx)}, {v(ACC+cidx+4)}")
    nop(1)
    for cidx in range(4):
        a(f"v_add_f32 {v(ACC+cidx)}, {v(ACC+cidx)}, {v(ACC+cidx+4)}")
    nop(1)
    for cidx in range(2):
        a(f"v_permlane16_swap_b32 {v(ACC+cidx)}, {v(ACC+cidx+2)}")
    nop(1)
    for cidx in range(2):
        a(f"v_add_f32 {v(ACC+cidx)}, {v(ACC+cidx)}, {v(ACC+cidx+2)}")
    a(f"v_mov_b32 {v(ACC+2)}, s{sTAGL}")
    a(f"v_add_f32_dpp {v(ACC)}, {v(ACC)}, {v(ACC)} row_ror:8 {DPP}")
    a(f"v_add_f32_dpp {v(ACC+1)}, {v(ACC+1)}, {v(ACC+1)} row_ror:8 {DPP}")
    a(f"v_mov_b32 {v(ACC+3)}, s{sTAGH}")
    stamp(2)
    a("s_mov_b32 exec_lo, 0x00ff00ff")
    a("s_mov_b32 exec_hi, 0x00ff00ff")
    a(f"global_store_dwordx4 {v(vT+21)}, {vr(ACC,4)}, {sp(sWS)} sc1")
    a("s_mov_b64 exec, -1")
    stamp(3)
    unpack8(F, vW)
    ln_stats(F)
    a(f"s_lshl_b32 s{sT2}, s{sC0}, 1")
    a(f"v_mov_b32 {v(vT+1)}, s{sT2}")
    a(f"ds_read_b32 {v(vT+4)}, {v(vT+1)} offset:{LDS_XN}")
    a(f"s_load_dword s{sXD}, {sp(sX)}, s{sT2}")
    h0, h1 = vG, vG+1
    a("s_waitcnt lgkmcnt(0)")
    a(f"v_lshlrev_b32 {v(h0)}, 16, {v(vT+4)}")
    a(f"v_and_b32 {v(h1)}, 0xffff0000, {v(vT+4)}")
    ln_apply2(h0, h1, vT)
    rbf2(h0, h1)
    QB = vW + 8
    a(f"s_mov_b32 s{sT3}, 0")
    a("s_mov_b64 exec, 0xffffffff")
    lab("L_pollL")
    a(f"global_load_dwordx2 {vr(QB,2)}, {v(vT+26)}, {sp(sWS)} offset:504 sc1")
    a("s_waitcnt vmcnt(0)")
    a(f"v_cmp_ne_u32 vcc, s{sTAGH}, {v(QB+1)}")
    a("s_and_b64 exec, exec, vcc")
    a("s_cbranch_execz L_pollL_done")
    poll_tail("L_pollL", G.q_sleep)
    lab("L_pollL_done")
    a("s_mov_b64 exec, -1")
    a(f"s_mov_b32 s{sT3}, 0")
    lab("L_pollQ")
    for ks in range(4):
        for m in range(4):
            a(f"global_load_dwordx4 {vr(QB+16*ks+4*m,4)}, {v(vT+22+ks)}, {sp(sWS)} offset:{1024*m} sc1")
    a("s_waitcnt vmcnt(0)")
    a(f"v_mov_b32 {v(vT)}, 0")
    for k in range(16):
        a(f"v_xor_b32 {v(vT+1)}, s{sTAGL}, {v(QB+4*k+2)}")
        a(f"v_xor_b32 {v(vT+2)}, s{sTAGH}, {v(QB+4*k+3)}")
        a(f"v_or3_b32 {v(vT)}, {v(vT)}, {v(vT+1)}, {v(vT+2)}")
    a(f"v_cmp_ne_u32 vcc, 0, {v(vT)}")
    a("s_and_b64 exec, exec, vcc")
    a("s_cbranch_execz L_pollQ_done")
    poll_tail("L_pollQ", G.q_sleep)
    lab("L_pollQ_done")
    a("s_mov_b64 exec, -1")
    stamp(4)
    a(f"v_lshlrev_b32 {v(vT)}, 2, {v(vLANE)}")
    for m in range(4):
        for e in range(2):
            a(f"v_add_f32 {v(QB+4*m+e)}, {v(QB+4*m+e)}, {v(QB+16+4*m+e)}")
            a(f"v_add_f32 {v(QB+32+4*m+e)}, {v(QB+32+4*m+e)}, {v(QB+48+4*m+e)}")
            a(f"v_add_f32 {v(QB+4*m+e)}, {v(QB+4*m+e)}, {v(QB+32+4*m+e)}")
        a(f"v_cvt_pk_bf16_f32 {v(QB+4*m)}, {v(QB+4*m)}, {v(QB+4*m+1)}")
        a(f"ds_write_b32 {v(vT)}, {v(QB+4*m)} offset:{LDS_Q + 256*m}")
    a("s_waitcnt lgkmcnt(0)")
    a("s_barrier")
    stamp(5)
    if G.stamps: a(f"s_memrealtime {sp(sTS0+2)}")
    wo_issue()
    a(f"v_mov_b32 {v(vT+20)}, 0")
    a(f"global_load_ushort {v(vMASK)}, {v(vT+20)}, {sp(sB2)}")
    y0, y1 = vX+2, vX+3
    a(f"v_mov_b32 {v(y0)}, 0")
    a(f"v_mov_b32 {v(y1)}, 0")
    K1 = 2.0 * math.sqrt(2.0 / math.pi) * LOG2E
    a(f"s_mov_b32 s{sT1}, 0x{f2u(-K1*0.044715):08x}")
    a(f"v_mov_b32 {v(vT+5)}, 0x{f2u(-K1):08x}")
    a(f"v_lshlrev_b32 {v(vT+6)}, 3, {v(vLANE)}")
    a(f"s_mov_b32 s{sT2}, 0")
    BW = vW
    wv1, bv1, wv2 = vX+4, vX+5, vX+6
    u0, u1, e0, e1 = vT, vT+1, vT+2, vT+3
    lab("L_bloop")
    a(f"global_load_dwordx2 {vr(BW,2)}, {v(vT+6)}, {sp(sW1)}")
    a(f"global_load_dwordx2 {vr(BW+2,2)}, {v(vT+6)}, {sp(sB1)}")
    a(f"global_load_dwordx2 {vr(BW+4,2)}, {v(vT+6)}, {sp(sW2)}")
    a(f"v_add_u32 {v(vT+6)}, 512, {v(vT+6)}")
    a("s_waitcnt vmcnt(0)")
    for j in range(4):
        d, hi = j // 2, j % 2
        for (dst, src) in ((wv1, BW+d), (bv1, BW+2+d), (wv2, BW+4+d)):
            if hi: a(f"v_and_b32 {v(dst)}, 0xffff0000, {v(src)}")
            else:  a(f"v_lshlrev_b32 {v(dst)}, 16, {v(src)}")
        a(f"v_mul_f32 {v(u0)}, {v(h0)}, {v(wv1)}")
        a(f"v_mul_f32 {v(u1)}, {v(h1)}, {v(wv1)}")
        rbf2(u0, u1)
        a(f"v_add_f32 {v(u0)}, {v(u0)}, {v(bv1)}")
        a(f"v_add_f32 {v(u1)}, {v(u1)}, {v(bv1)}")
        rbf2(u0, u1)
        a(f"v_mul_f32 {v(e0)}, {v(u0)}, {v(u0)}")
        a(f"v_mul_f32 {v(e1)}, {v(u1)}, {v(u1)}")
        a(f"v_fma_f32 {v(e0)}, {v(e0)}, s{sT1}, {v(vT+5)}")
        a(f"v_fma_f32 {v(e1)}, {v(e1)}, s{sT1}, {v(vT+5)}")
        a(f"v_mul_f32 {v(e0)}, {v(e0)}, {v(u0)}")
        a(f"v_mul_f32 {v(e1)}, {v(e1)}, {v(u1)}")
        a(f"v_exp_f32 {v(e0)}, {v(e0)}")
        a(f"v_exp_f32 {v(e1)}, {v(e1)}")
        nop(1)
        a(f"v_add_f32 {v(e0)}, 1.0, {v(e0)}")
        a(f"v_add_f32 {v(e1)}, 1.0, {v(e1)}")
        a(f"v_rcp_f32 {v(e0)}, {v(e0)}")
        a(f"v_rcp_f32 {v(e1)}, {v(e1)}")
        nop(1)
        a(f"v_mul_f32 {v(e0)}, {v(e0)}, {v(u0)}")
        a(f"v_mul_f32 {v(e1)}, {v(e1)}, {v(u1)}")
        rbf2(e0, e1)
        a(f"v_fmac_f32 {v(y0)}, {v(e0)}, {v(wv2)}")
        a(f"v_fmac_f32 {v(y1)}, {v(e1)}, {v(wv2)}")
    a(f"s_add_u32 s{sT2}, s{sT2}, 1")
    a(f"s_cmp_lt_u32 s{sT2}, 7")
    a("s_cbranch_scc1 L_bloop")
    allred64("v_add_f32", y0, vT)
    allred64("v_add_f32", y1, vT)
    a(f"v_lshlrev_b32 {v(vT+2)}, 16, {v(vMASK)}")
    rbf2(y0, y1)
    a(f"v_add_f32 {v(y0)}, {v(y0)}, {v(vT+2)}")
    a(f"v_add_f32 {v(y1)}, {v(y1)}, {v(vT+2)}")
    rbf2(y0, y1)
    g0, g1 = vG, vG+1
    a(f"v_mul_f32 {v(e0)}, s{sLOG2E}, {v(y0)}")
    a(f"v_mul_f32 {v(e1)}, s{sLOG2E}, {v(y1)}")
    a(f"v_exp_f32 {v(e0)}, -{v(e0)}")
    a(f"v_exp_f32 {v(e1)}, -{v(e1)}")
    nop(1)
    a(f"v_add_f32 {v(e0)}, 1.0, {v(e0)}")
    a(f"v_add_f32 {v(e1)}, 1.0, {v(e1)}")
    a(f"v_rcp_f32 {v(e0)}, {v(e0)}")
    a(f"v_rcp_f32 {v(e1)}, {v(e1)}")
    nop(1)
    a(f"v_mul_f32 {v(g0)}, {v(y0)}, {v(e0)}")
    a(f"v_mul_f32 {v(g1)}, {v(y1)}, {v(e1)}")
    rbf2(g0, g1)
    tail_addr()
    a(f"s_lshl_b32 s{sT2}, s{sG}, 5")
    a(f"s_add_u32 s{sT2}, s{sT2}, s{sI}")
    a(f"s_lshl_b32 s{sT2}, s{sT2}, 12")
    a(f"s_add_u32 s{sT1}, s{sT2}, {WS_P2}")
    a(f"v_add_u32 {v(vA+8)}, s{sT1}, {v(vVOFF)}")
    a(f"s_add_u32 s{sT1}, s{sT2}, {WS_S2}")
    a(f"v_and_b32 {v(vT)}, 15, {v(vLANE)}")
    a(f"v_lshlrev_b32 {v(vT)}, 6, {v(vT)}")
    a(f"v_bfe_u32 {v(vT+1)}, {v(vLANE)}, 4, 1")
    a(f"v_lshl_add_u32 {v(vT)}, {v(vT+1)}, 5, {v(vT)}")
    a(f"v_lshrrev_b32 {v(vT+1)}, 5, {v(vLANE)}")
    a(f"v_lshl_add_u32 {v(vT)}, {v(vT+1)}, 4, {v(vT)}")
    a(f"v_add_u32 {v(vA+9)}, s{sT1}, {v(vT)}")
    a(f"s_lshl_b32 s{sT1}, s{sC0}, 3")
    a(f"s_add_u32 s{sT1}, s{sT1}, {WS_S2}")
    a(f"v_lshl_add_u32 {v(vPA)}, {v(vLANE)}, 12, s{sT1}")
    a(f"v_add_u32 {v(vPA+1)}, 0x40000, {v(vPA)}")
    a(f"v_add_u32 {v(vPA+2)}, 0x80000, {v(vPA)}")
    a(f"v_add_u32 {v(vPA+3)}, 0xc0000, {v(vPA)}")
    a(f"v_and_b32 {v(vT)}, 15, {v(vLANE)}")
    a(f"v_and_b32 {v(vT+1)}, 1, {v(vLANE)}")
    a(f"v_cmp_eq_u32 vcc, 1, {v(vT+1)}")
    a(f"v_mov_b32 {v(vT+2)}, 0xffff")
    a(f"v_mov_b32 {v(vT+3)}, 0xffff0000")
    a(f"v_cndmask_b32 {v(vT+2)}, {v(vT+2)}, {v(vT+3)}, vcc")
    a(f"v_lshrrev_b32 {v(vT)}, 1, {v(vT)}")
    for r in range(4):
        a(f"v_cmp_eq_u32 vcc, {r}, {v(vT)}")
        nop(2)
        a(f"v_cndmask_b32 {v(vMASK+r)}, 0, {v(vT+2)}, vcc")
    a(f"s_lshl_b32 s{sT1}, s{sC0}, 1")
    a(f"v_mov_b32 {v(vA+10)}, s{sT1}")
    a(f"s_lshl_b32 s{sT1}, s{sXD}, 16")
    a(f"s_and_b32 s{sT2}, s{sXD}, 0xffff0000")
    a(f"v_mov_b32 {v(vA+11)}, s{sT1}")
    a(f"v_mov_b32 {v(vA+12)}, s{sT2}")
    a(f"s_mov_b32 s{sT0}, 0x05040100")
    if G.pretouch & 1:
        for k in range(4):
            a(f"global_load_dwordx4 {vr(vW+4*k,4)}, {v(vA+8)}, {sp(sWS)} offset:{1024*k} sc1")
    if G.pretouch & 2:
        for k in range(4):
            a(f"global_load_dwordx4 {vr(vW+4*k,4)}, {v(vPA+k)}, {sp(sWS)} sc1")
    if G.pretouch & 4:
        a(f"global_load_dword {v(vW)}, {v(vA+10)}, {sp(sOUT)}")
    if G.pretouch: a("s_waitcnt vmcnt(0)")
    if G.stamps: a(f"s_memrealtime s[100:101]")
    a("s_branch L_tail")

    lab("L_stream")
    a("s_waitcnt lgkmcnt(0)")
    a(f"s_load_dwordx2 {sp(sTAGL)}, {sp(sWS)}, {WS_EP}")
    G.vm = []
    a(f"v_and_b32 {v(vT)}, 3, {v(vLANE)}")
    a(f"v_lshlrev_b32 {v(vT)}, 2, {v(vT)}")
    a(f"v_bfe_u32 {v(vT+1)}, {v(vLANE)}, 2, 2")
    a(f"v_add_u32 {v(vT)}, {v(vT)}, {v(vT+1)}")
    a(f"v_lshlrev_b32 {v(vT)}, 8, {v(vT)}")
    a(f"v_lshrrev_b32 {v(vT+1)}, 4, {v(vLANE)}")
    a(f"v_lshl_add_u32 {v(vKOFF)}, {v(vT+1)}, 4, {v(vT)}")
    a(f"s_mul_i32 s{sSTAT}, s{sBH}, 3")
    a(f"s_add_u32 s{sSTAT}, s{sSTAT}, s{sWV}")
    a(f"s_sub_u32 s{sSTAT}, s{sSTAT}, 1")
    a(f"s_lshl_b32 s{sSTAT}, s{sSTAT}, 12")
    a(f"s_lshl_b32 s{sT1}, s{sG}, 24")
    a(f"s_lshl_b32 s{sT2}, s{sA}, 21")
    a(f"s_add_u32 s{sSTAT}, s{sSTAT}, s{sT2}")
    for srd, ptr in ((srdK, sK), (srdV, sV)):
        a(f"s_add_u32 s{srd}, s{ptr}, s{sT1}")
        a(f"s_addc_u32 s{srd+1}, s{ptr+1}, 0")
        a(f"s_and_b32 s{srd+1}, s{srd+1}, 0xffff")
        a(f"s_mov_b32 s{srd+2}, 0x{LIM:x}")
        a(f"s_mov_b32 s{srd+3}, 0x20000")
    def setup_consts():
        Z = 0x0c0c0c0c
        lo_to_lo, lo_to_hi = 0x0c0c0100, 0x01000c0c
        hi_to_lo, hi_to_hi = 0x0c0c0302, 0x03020c0c
        a(f"v_and_b32 {v(vT+1)}, 3, {v(vLANE)}")
        for k in range(4): a(f"v_mov_b32 {v(vSEL+k)}, 0x{Z:08x}")
        for jp, (sr, val_lo, val_hi) in enumerate(((0, lo_to_lo, hi_to_lo), (0, lo_to_hi, hi_to_hi), (1, lo_to_lo, hi_to_lo), (1, lo_to_hi, hi_to_hi))):
            a(f"v_cmp_eq_u32 vcc, {jp}, {v(vT+1)}")
            a(f"v_mov_b32 {v(vT+2)}, 0x{val_lo:08x}")
            a(f"v_mov_b32 {v(vT+3)}, 0x{val_hi:08x}")
            a(f"v_cndmask_b32 {v(vSEL+sr)}, {v(vSEL+sr)}, {v(vT+2)}, vcc")
            a(f"v_cndmask_b32 {v(vSEL+2+sr)}, {v(vSEL+2+sr)}, {v(vT+3)}, vcc")
        for k in range(8): a(f"v_mov_b32 {v(vO+k)}, 0")
        a(f"v_mov_b32 {v(vNM)}, 0")
        a(f"v_mov_b32 {v(vL)}, 0")
        a(f"s_mov_b32 s{sTHR}, 0xff800000")
        a(f"s_mov_b32 s{sFLOOR}, 0xff7fffff")
        a(f"s_mov_b32 s{sSCALE}, 0x{f2u(SCALE):08x}")
        a(f"s_mov_b32 s{sEXH}, 0")
        a(f"s_mov_b32 s{sN}, {R}")
        a(f"s_add_u32 s{sT1}, s{sBH}, s{sA}")
        a(f"s_and_b32 s{sT1}, s{sT1}, 3")
        if G.dyn:
            a(f"s_lshl_b32 s{sDYNB}, s{sT1}, 22")
            a(f"s_add_u32 s{sDYNB}, s{sDYNB}, {NS*TSTR}")
        else:
            a(f"s_add_u32 s{sDYNB}, s{sA}, 1")
            a(f"s_lshl_b32 s{sDYNB}, s{sDYNB}, 21")
        a(f"s_lshl_b32 s{sT2}, s{sG}, 2")
        a(f"s_add_u32 s{sT2}, s{sT2}, s{sT1}")
        a(f"s_mul_i32 s{sCNTOFF}, s{sT2}, {CNT_STRIDE}")
        a(f"s_add_u32 s{sCNTOFF}, s{sCNTOFF}, {WS_CNT}")
        for k in range(4): a(f"s_mov_b32 s{sTK+k}, 0")
        a(f"v_bfe_u32 {v(vT+8)}, {v(vLANE)}, 2, 2")
        a(f"v_lshlrev_b32 {v(vT+8)}, 8, {v(vT+8)}")
        a(f"v_lshrrev_b32 {v(vT+1)}, 4, {v(vLANE)}")
        a(f"v_lshl_add_u32 {v(vT+8)}, {v(vT+1)}, 4, {v(vT+8)}")
    for n in range(R):
        if n >= A:
            wait_vm(("K", n - A))
        issue_tile(n, f"s{sSTAT}", n)
        a(f"s_add_u32 s{sSTAT}, s{sSTAT}, {TSTR}")
        if n == A - 1:
            setup_consts()
        if n == 3:
            tail_addr()
            a("s_waitcnt lgkmcnt(0)")
            tags()
        if G.stamps and not G.tstamps and n in (1, 3, 5, 7, 9, 11): a(f"s_memrealtime s[{4+2*(n//2)}:{5+2*(n//2)}]")
    a("s_barrier")
    for t in range(4):
        a(f"ds_read_b128 {vr(vQ+4*t,4)}, {v(vT+8)} offset:{LDS_Q + 64*t}")
    if G.stamps: a(f"s_memrealtime {sp(sTS0+2)}")
    a("s_waitcnt lgkmcnt(0)")

    rare_id = [0]
    def compute_qk(slot):
        for t in range(4):
            cc = "0" if t == 0 else vr(vS, 4)
            a(f"v_mfma_f32_16x16x32_bf16 {vr(vS,4)}, {slot_reg(slot,4*t,4)}, {vr(vQ+4*t,4)}, {cc}")
    def softmax():
        rid = rare_id[0]; rare_id[0] += 1
        p01, p23 = vT, vT+1
        b = vT + 2
        a(f"v_cvt_pk_bf16_f32 {v(p01)}, {v(vS)}, {v(vS+1)}")
        a(f"v_cvt_pk_bf16_f32 {v(p23)}, {v(vS+2)}, {v(vS+3)}")
        a(f"v_lshlrev_b32 {v(b)}, 16, {v(p01)}")
        a(f"v_and_b32 {v(b+1)}, 0xffff0000, {v(p01)}")
        a(f"v_lshlrev_b32 {v(b+2)}, 16, {v(p23)}")
        a(f"v_and_b32 {v(b+3)}, 0xffff0000, {v(p23)}")
        for k in range(4): a(f"v_mul_f32 {v(b+k)}, s{sSCALE}, {v(b+k)}")
        a(f"v_cvt_pk_bf16_f32 {v(p01)}, {v(b)}, {v(b+1)}")
        a(f"v_cvt_pk_bf16_f32 {v(p23)}, {v(b+2)}, {v(b+3)}")
        a(f"v_lshlrev_b32 {v(b)}, 16, {v(p01)}")
        a(f"v_and_b32 {v(b+1)}, 0xffff0000, {v(p01)}")
        a(f"v_lshlrev_b32 {v(b+2)}, 16, {v(p23)}")
        a(f"v_and_b32 {v(b+3)}, 0xffff0000, {v(p23)}")
        for k in range(4): a(f"v_fma_f32 {v(b+k)}, {v(b+k)}, s{sLOG2E}, {v(vNM)}")
        mx = vT + 6
        a(f"v_max3_f32 {v(mx)}, {v(b)}, {v(b+1)}, {v(b+2)}")
        a(f"v_max_f32 {v(mx)}, {v(mx)}, {v(b+3)}")
        a(f"v_cmp_lt_f32 vcc, s{sTHR}, {v(mx)}")
        a(f"s_cbranch_vccz L_back{rid}")
        a(f"s_call_b64 {sp(sPC)}, L_rare")
        lab(f"L_back{rid}")
        for k in range(4): a(f"v_exp_f32 {v(b+k)}, {v(b+k)}")
        nop(1)
        a(f"v_cvt_pk_bf16_f32 {v(p01)}, {v(b)}, {v(b+1)}")
        a(f"v_cvt_pk_bf16_f32 {v(p23)}, {v(b+2)}, {v(b+3)}")
        a(f"v_add_f32 {v(b)}, {v(b)}, {v(b+1)}")
        a(f"v_add_f32 {v(b+2)}, {v(b+2)}, {v(b+3)}")
        for k in range(4): a(f"v_perm_b32 {v(vX+k)}, {v(p01)}, {v(p01)}, {v(vSEL+k)}")
        for k in range(4): a(f"v_perm_b32 {v(vX+4+k)}, {v(p23)}, {v(p23)}, {v(vSEL+k)}")
        a(f"v_add_f32 {v(b)}, {v(b)}, {v(b+2)}")
        a(f"v_add_f32 {v(vL)}, {v(vL)}, {v(b)}")
    def compute_pv(slot):
        for u in range(4):
            a(f"v_mfma_f32_16x16x16_bf16 {vr(vO,4)}, {vr(vX+2*u,2)}, {slot_reg(slot,16+4*u,2)}, {vr(vO,4)}")
            a(f"v_mfma_f32_16x16x16_bf16 {vr(vO+4,4)}, {vr(vX+2*u,2)}, {slot_reg(slot,16+4*u+2,2)}, {vr(vO+4,4)}")

    k_iss = 0
    for n in range(R + E - A):
        slot = n if n < R else n - R
        c(f"catch-up step {n}")
        wait_vm(("K", n))
        compute_qk(slot)
        nop(8)
        softmax()
        wait_vm(("V", n))
        compute_pv(slot)
        if n in G.cu_issue:
            assert k_iss <= n
            next_tile(k_iss, R + k_iss, track=True)
            k_iss += 1
    assert k_iss == E
    lab("L_loop")
    for k in range(4):
        s = (E - A + k) % 4
        c(f"steady step slot {s}")
        ns = (s + A) % 4
        a(f"s_cmp_ge_u32 s{sOFF+s}, 0x{LIM:x}")
        a("s_cbranch_scc1 L_done")
        a(f"s_waitcnt vmcnt({8*A-4})")
        compute_qk(s)
        next_tile(ns)
        softmax()
        a(f"s_waitcnt vmcnt({8*A})")
        compute_pv(s)
    a("s_branch L_loop")

    lab("L_rare")
    b = vT + 2; mx = vT + 6; t = vT + 7; f = vT + 8
    allred_rows("v_max_f32", mx, t)
    a(f"v_max_f32 {v(mx)}, s{sFLOOR}, {v(mx)}")
    for k in range(4): a(f"v_sub_f32 {v(b+k)}, {v(b+k)}, {v(mx)}")
    a(f"v_sub_f32 {v(vNM)}, {v(vNM)}, {v(mx)}")
    a(f"v_max_f32 {v(t)}, 0, {v(mx)}")
    a(f"v_exp_f32 {v(t)}, -{v(t)}")
    nop(1)
    a(f"v_mul_f32 {v(vL)}, {v(vL)}, {v(t)}")
    nop(1)
    for h in range(4):
        a(f"v_mov_b32_dpp {v(f)}, {v(t)} row_newbcast:{4*h} row_mask:0x{1<<h:x} bank_mask:0xf")
    for k in range(8): a(f"v_mul_f32 {v(vO+k)}, {v(vO+k)}, {v(f)}")
    a(f"s_mov_b32 s{sTHR}, 0x{f2u(G.T):08x}")
    a(f"s_mov_b32 s{sFLOOR}, 0")
    a(f"s_setpc_b64 {sp(sPC)}")

    def stageA():
        a(f"v_cmp_ne_u32 vcc, 0, {v(vA+6)}")
        a("s_waitcnt lgkmcnt(0)")
        tstamp(0)
        a("s_barrier")
        if G.tstamps:
            tstamp(1); a("s_waitcnt lgkmcnt(0)")
        a(f"ds_read_b64 {vr(vQ+2,2)}, {v(vA+3)} offset:{LDS_ML+8}")
        a(f"ds_read_b128 {vr(vQ+4,4)}, {v(vA+3)} offset:{LDS_ML+16}")
        OO = vT + 4
        for w in range(1, 4):
            a(f"ds_read_b64 {vr(OO+2*w,2)}, {v(vA+4)} offset:{LDS_O + 2048*w}")
        RES = vQ + 12
        a(f"v_mov_b32 {v(RES+3)}, s{sTAGH}")
        a("s_waitcnt lgkmcnt(3)")
        nmM = vQ + 8
        a(f"v_min3_f32 {v(nmM)}, {v(vQ+2)}, {v(vQ+4)}, {v(vQ+6)}")
        for k in range(1, 4): a(f"v_sub_f32 {v(vQ+2*k)}, {v(nmM)}, {v(vQ+2*k)}")
        for k in range(1, 4): a(f"v_exp_f32 {v(vQ+2*k)}, {v(vQ+2*k)}")
        nop(1)
        a(f"v_mul_f32 {v(nmM+1)}, {v(vQ+2)}, {v(vQ+3)}")
        for k in range(2, 4): a(f"v_fmac_f32 {v(nmM+1)}, {v(vQ+2*k)}, {v(vQ+2*k+1)}")
        a(f"v_cndmask_b32 {v(nmM)}, {v(nmM)}, {v(nmM+1)}, vcc")
        a(f"v_bfe_u32 {v(nmM)}, {v(nmM)}, {v(vA+5)}, 16")
        a(f"v_or_b32 {v(RES+2)}, s{sTG16}, {v(nmM)}")
        a("s_waitcnt lgkmcnt(0)")
        for e in range(2): a(f"v_mul_f32 {v(RES+e)}, {v(vQ+2)}, {v(OO+2+e)}")
        for k in range(2, 4):
            for e in range(2): a(f"v_fmac_f32 {v(RES+e)}, {v(vQ+2*k)}, {v(OO+2*k+e)}")
        a(f"global_store_dwordx4 {v(vA)}, {vr(RES,4)}, {sp(sWS)} {G.stf}")
        tstamp(2)
    lab("L_done")
    if G.stamps: a(f"s_memrealtime s[100:101]")
    allred_rows("v_add_f32", vL, vT)
    a(f"ds_write_b128 {v(vA+1)}, {vr(vO,4)} offset:{LDS_O}")
    a(f"ds_write_b128 {v(vA+1)}, {vr(vO+4,4)} offset:{LDS_O+16}")
    a(f"ds_write_b64 {v(vA+2)}, {vr(vNM,2)} offset:{LDS_ML}")
    stageA()
    a("s_branch L_fin")
    lab("L_tail")
    stageA()
    PB = vW
    a(f"s_mov_b32 s{sT3}, 0")
    lab("L_pollB")
    for k in range(4):
        a(f"global_load_dwordx4 {vr(PB+4*k,4)}, {v(vA+8)}, {sp(sWS)} offset:{1024*k} {G.ldf}")
    a("s_waitcnt vmcnt(0)")
    a(f"v_xor_b32 {v(vT)}, s{sTG16}, {v(PB+2)}")
    a(f"v_xor_b32 {v(vT+1)}, s{sTG16}, {v(PB+6)}")
    a(f"v_xor_b32 {v(vT+2)}, s{sTG16}, {v(PB+10)}")
    a(f"v_xor_b32 {v(vT+3)}, s{sTG16}, {v(PB+14)}")
    a(f"v_or3_b32 {v(vT)}, {v(vT)}, {v(vT+1)}, {v(vT+2)}")
    a(f"v_or_b32 {v(vT)}, {v(vT)}, {v(vT+3)}")
    a(f"v_lshrrev_b32 {v(vT)}, 16, {v(vT)}")
    a(f"v_xor_b32 {v(vT+1)}, s{sTAGH}, {v(PB+3)}")
    a(f"v_xor_b32 {v(vT+2)}, s{sTAGH}, {v(PB+7)}")
    a(f"v_or3_b32 {v(vT)}, {v(vT)}, {v(vT+1)}, {v(vT+2)}")
    a(f"v_xor_b32 {v(vT+1)}, s{sTAGH}, {v(PB+11)}")
    a(f"v_xor_b32 {v(vT+2)}, s{sTAGH}, {v(PB+15)}")
    a(f"v_or3_b32 {v(vT)}, {v(vT)}, {v(vT+1)}, {v(vT+2)}")
    a(f"v_cmp_ne_u32 vcc, 0, {v(vT)}")
    a("s_and_b64 exec, exec, vcc")
    a("s_cbranch_execz L_pollB_done")
    poll_tail("L_pollB")
    lab("L_pollB_done")
    tstamp(3)
    a("s_mov_b64 exec, -1")
    NMr, Lr = vT + 4, vT + 8
    TA, TB = vT + 12, vT + 16
    for k in range(4):
        a(f"v_mov_b32_dpp {v(TA+k)}, {v(PB+4*k+2)} quad_perm:[0,0,0,0] {DPP}")
        a(f"v_mov_b32_dpp {v(TB+k)}, {v(PB+4*k+2)} quad_perm:[1,1,1,1] {DPP}")
    for k in range(4):
        a(f"v_perm_b32 {v(NMr+k)}, {v(TB+k)}, {v(TA+k)}, s{sT0}")
    M = vT
    a(f"v_min3_f32 {v(M)}, {v(NMr)}, {v(NMr+1)}, {v(NMr+2)}")
    a(f"v_min_f32 {v(M)}, {v(M)}, {v(NMr+3)}")
    a(f"v_mov_b32_dpp {v(TA)}, {v(PB+2)} quad_perm:[2,2,2,2] {DPP}")
    a(f"v_mov_b32_dpp {v(TB)}, {v(PB+2)} quad_perm:[3,3,3,3] {DPP}")
    a(f"v_min_f32_dpp {v(M)}, {v(M)}, {v(M)} row_ror:8 {DPP}")
    a(f"v_mov_b32 {v(vT+1)}, {v(M)}")
    a(f"v_mov_b32_dpp {v(TA+1)}, {v(PB+6)} quad_perm:[2,2,2,2] {DPP}")
    a(f"v_mov_b32_dpp {v(TB+1)}, {v(PB+6)} quad_perm:[3,3,3,3] {DPP}")
    a(f"v_permlane16_swap_b32 {v(M)}, {v(vT+1)}")
    a(f"v_mov_b32_dpp {v(TA+2)}, {v(PB+10)} quad_perm:[2,2,2,2] {DPP}")
    a(f"v_min_f32 {v(M)}, {v(M)}, {v(vT+1)}")
    a(f"v_mov_b32 {v(vT+1)}, {v(M)}")
    a(f"v_mov_b32_dpp {v(TB+2)}, {v(PB+10)} quad_perm:[3,3,3,3] {DPP}")
    a(f"v_mov_b32_dpp {v(TA+3)}, {v(PB+14)} quad_perm:[2,2,2,2] {DPP}")
    a(f"v_permlane32_swap_b32 {v(M)}, {v(vT+1)}")
    a(f"v_mov_b32_dpp {v(TB+3)}, {v(PB+14)} quad_perm:[3,3,3,3] {DPP}")
    a(f"v_min_f32 {v(M)}, {v(M)}, {v(vT+1)}")
    for k in range(4): a(f"v_sub_f32 {v(NMr+k)}, {v(M)}, {v(NMr+k)}")
    for k in range(4): a(f"v_exp_f32 {v(NMr+k)}, {v(NMr+k)}")
    for k in range(4): a(f"v_perm_b32 {v(Lr+k)}, {v(TB+k)}, {v(TA+k)}, s{sT0}")
    o0, o1, la, lb = vT, vT+1, vT+2, vT+3
    a(f"v_mul_f32 {v(o0)}, {v(NMr)}, {v(PB)}")
    a(f"v_mul_f32 {v(o1)}, {v(NMr)}, {v(PB+1)}")
    a(f"v_mul_f32 {v(la)}, {v(NMr)}, {v(Lr)}")
    for k in range(1, 4):
        a(f"v_fmac_f32 {v(o0)}, {v(NMr+k)}, {v(PB+4*k)}")
        a(f"v_fmac_f32 {v(o1)}, {v(NMr+k)}, {v(PB+4*k+1)}")
        a(f"v_fmac_f32 {v(la)}, {v(NMr+k)}, {v(Lr+k)}")
    a(f"v_mov_b32 {v(lb)}, {v(la)}")
    a(f"v_permlane32_swap_b32 {v(o0)}, {v(o1)}")
    nop(1)
    a(f"v_permlane32_swap_b32 {v(la)}, {v(lb)}")
    a(f"v_add_f32 {v(o0)}, {v(o0)}, {v(o1)}")
    a(f"v_add_f32 {v(la)}, {v(la)}, {v(lb)}")
    a(f"v_mov_b32 {v(o1)}, {v(o0)}")
    a(f"v_mov_b32 {v(lb)}, {v(la)}")
    nop(1)
    a(f"v_permlane16_swap_b32 {v(o0)}, {v(o1)}")
    a(f"v_permlane16_swap_b32 {v(la)}, {v(lb)}")
    a(f"v_add_f32 {v(o0)}, {v(o0)}, {v(o1)}")
    a(f"v_add_f32 {v(la)}, {v(la)}, {v(lb)}")
    nop(1)
    a(f"v_add_f32_dpp {v(o0)}, {v(o0)}, {v(o0)} row_ror:8 {DPP}")
    a(f"v_add_f32_dpp {v(la)}, {v(la)}, {v(la)} row_ror:8 {DPP}")
    a(f"v_rcp_f32 {v(lb)}, {v(la)}")
    a(f"v_mov_b32_dpp {v(o0)}, {v(o0)} row_shl:1 row_mask:0xa bank_mask:0xf")
    a(f"v_fma_f32 {v(o1)}, -{v(la)}, {v(lb)}, 1.0")
    a(f"v_fma_f32 {v(lb)}, {v(o1)}, {v(lb)}, {v(lb)}")
    a(f"v_mul_f32 {v(o0)}, {v(o0)}, {v(lb)}")
    a(f"v_cvt_pk_bf16_f32 {v(o0)}, {v(o0)}, {v(o0)}")
    nop(2)
    AO = vQ
    DD = vW + 16
    for u in range(4):
        for r in range(4):
            a(f"v_and_b32_dpp {v(AO+4*u+r)}, {v(o0)}, {v(vMASK+r)} row_newbcast:{2*u} {DPP}")
    nop(1)
    for cb in range(4):
        for u in range(4):
            cc = "0" if u == 0 else vr(DD+4*cb, 4)
            a(f"v_mfma_f32_16x16x32_bf16 {vr(DD+4*cb,4)}, {vr(AO+4*u,4)}, {vr(vWO+16*cb+4*u,4)}, {cc}")
    for cb in range(4):
        d = DD + 4*cb
        if cb == 3: nop(2)
        a(f"v_permlane32_swap_b32 {v(d)}, {v(d+2)}")
        a(f"v_permlane32_swap_b32 {v(d+1)}, {v(d+3)}")
        a(f"v_mov_b32 {v(d+2)}, s{sTAGL}")
        a(f"v_mov_b32 {v(d+3)}, s{sTAGH}")
        a(f"global_store_dwordx4 {v(vA+9)}, {vr(d,4)}, {sp(sWS)} offset:{1024*cb} {G.stf}")
    tstamp(4)
    PC = vW
    a(f"s_mov_b32 s{sT3}, 0")
    lab("L_pollC")
    for k in range(4):
        a(f"global_load_dwordx4 {vr(PC+4*k,4)}, {v(vPA+k)}, {sp(sWS)} {G.ldf}")
    a("s_waitcnt vmcnt(0)")
    a(f"v_xor_b32 {v(vT)}, s{sTAGL}, {v(PC+2)}")
    a(f"v_xor_b32 {v(vT+1)}, s{sTAGH}, {v(PC+3)}")
    for k in range(1, 4):
        a(f"v_xor_b32 {v(vT+2)}, s{sTAGL}, {v(PC+4*k+2)}")
        a(f"v_xor_b32 {v(vT+3)}, s{sTAGH}, {v(PC+4*k+3)}")
        a(f"v_or3_b32 {v(vT)}, {v(vT)}, {v(vT+2)}, {v(vT+3)}")
    a(f"v_or_b32 {v(vT)}, {v(vT)}, {v(vT+1)}")
    a(f"v_cmp_ne_u32 vcc, 0, {v(vT)}")
    a("s_and_b64 exec, exec, vcc")
    a("s_cbranch_execz L_pollC_done")
    poll_tail("L_pollC")
    lab("L_pollC_done")
    tstamp(5)
    a("s_mov_b64 exec, -1")
    a(f"v_add_f32 {v(PC)}, {v(PC)}, {v(PC+4)}")
    a(f"v_add_f32 {v(PC+1)}, {v(PC+1)}, {v(PC+5)}")
    a(f"v_add_f32 {v(PC+8)}, {v(PC+8)}, {v(PC+12)}")
    a(f"v_add_f32 {v(PC+9)}, {v(PC+9)}, {v(PC+13)}")
    a(f"v_add_f32 {v(PC)}, {v(PC)}, {v(PC+8)}")
    a(f"v_add_f32 {v(PC+1)}, {v(PC+1)}, {v(PC+9)}")
    nop(2)
    a(f"v_permlane32_swap_b32 {v(PC)}, {v(PC+1)}")
    nop(1)
    a(f"v_add_f32 {v(PC)}, {v(PC)}, {v(PC+1)}")
    allred16("v_add_f32", PC)
    a(f"v_mov_b32 {v(vT)}, {v(PC)}")
    nop(2)
    a(f"v_permlane16_swap_b32 {v(PC)}, {v(vT)}")
    nop(1)
    a(f"v_add_f32 {v(PC)}, {v(PC)}, {v(vT)}")
    a(f"v_mov_b32 {v(PC+1)}, {v(PC)}")
    nop(2)
    a(f"v_permlane32_swap_b32 {v(PC)}, {v(PC+1)}")
    nop(1)
    rbf2(PC, PC+1)
    a(f"v_mul_f32 {v(PC)}, {v(PC)}, {v(g0)}")
    a(f"v_mul_f32 {v(PC+1)}, {v(PC+1)}, {v(g1)}")
    rbf2(PC, PC+1)
    a(f"v_add_f32 {v(PC)}, {v(PC)}, {v(vA+11)}")
    a(f"v_add_f32 {v(PC+1)}, {v(PC+1)}, {v(vA+12)}")
    a(f"v_cvt_pk_bf16_f32 {v(PC)}, {v(PC)}, {v(PC+1)}")
    a("s_mov_b64 exec, 1")
    a(f"global_store_dword {v(vA+10)}, {v(PC)}, {sp(sOUT)}")
    a("s_cmp_lg_u32 s2, 0")
    a("s_cbranch_scc1 L_noep")
    a(f"v_mov_b32 {v(vT)}, {WS_EP}")
    a(f"v_mov_b32 {v(vT+2)}, s{sTAGL}")
    a(f"v_mov_b32 {v(vT+3)}, s{sTAGH}")
    a(f"global_store_dwordx2 {v(vT)}, {vr(vT+2,2)}, {sp(sWS)} sc1")
    lab("L_noep")
    a("s_mov_b64 exec, -1")
    lab("L_fin")
    if G.stamps:
        a(f"s_memrealtime s[82:83]")
        a("s_waitcnt lgkmcnt(0)")
        a(f"s_lshl_b32 s{sT2}, s2, 2")
        a(f"s_add_u32 s{sT2}, s{sT2}, s{sWV}")
        a(f"s_lshl_b32 s{sT2}, s{sT2}, 6")
        a(f"s_add_u32 s{sT2}, s{sT2}, {WS_TS}")
        a(f"v_mov_b32 v2, s{sT2}")
        a(f"v_mov_b32 v4, s{sTS0}")
        a(f"v_mov_b32 v5, s{sTS0+2}")
        a(f"v_mov_b32 v6, s100")
        a(f"v_mov_b32 v7, s82")
        a(f"v_mov_b32 v8, s{sN}")
        a(f"s_getreg_b32 s{sT2}, hwreg(HW_REG_XCC_ID)")
        a(f"v_mov_b32 v9, s{sT2}")
        a("s_mov_b64 exec, 1")
        a(f"global_store_dwordx4 v2, v[4:7], {sp(sWS)}")
        a(f"global_store_dwordx2 v2, v[8:9], {sp(sWS)} offset:16")
        for k in range(6): a(f"v_mov_b32 v{10+k}, s{4+2*k}")
        a(f"global_store_dwordx4 v2, v[10:13], {sp(sWS)} offset:32")
        a(f"global_store_dwordx2 v2, v[14:15], {sp(sWS)} offset:48")
    lab("L_end")
    a("s_endpgm")
    tail = ['.section .rodata,"a"', ".p2align 6", f".amdhsa_kernel {KN}",
            f"  .amdhsa_next_free_vgpr {NV+256}", "  .amdhsa_next_free_sgpr 102", f"  .amdhsa_accum_offset {NV}",
            "  .amdhsa_group_segment_fixed_size 0", "  .amdhsa_kernarg_size 104", "  .amdhsa_user_sgpr_count 2",
            "  .amdhsa_user_sgpr_kernarg_segment_ptr 1", "  .amdhsa_system_sgpr_workgroup_id_x 1",
            "  .amdhsa_float_denorm_mode_32 3",
            ".end_amdhsa_kernel"]
    return "\n".join(hdr + G.L + tail) + "\n"

if __name__ == "__main__":
    import argparse, json
    ap = argparse.ArgumentParser()
    ap.add_argument("-o", default="k.s")
    ap.add_argument("kv", nargs="*")
    args = ap.parse_args()
    kw = {}
    for x in args.kv:
        k, val = x.split("=")
        kw[k] = json.loads(val)
    open(args.o, "w").write(build(**kw))
```

```python
import sys, struct, math

KN = "recurrent_scan__gqa_block_cached__mixer_token_mlp__decode_kernel"

def f2u(x):
    return struct.unpack("<I", struct.pack("<f", x))[0]

class Gen:
    def __init__(self, **kw):
        self.L = []
        self.vm = []
        self.__dict__.update(kw)
    def a(self, s): self.L.append("  " + s)
    def lab(self, s): self.L.append(s + ":")
    def c(self, s): self.L.append("  ; " + s)
    def vmem(self, s, tag=None):
        self.a(s); self.vm.append(tag)
    def wait_vm(self, tag):
        if tag not in self.vm: return
        idx = max(i for i, t in enumerate(self.vm) if t == tag)
        n = len(self.vm) - 1 - idx
        n = min(n, 63)
        self.a(f"s_waitcnt vmcnt({n})")
        self.vm = self.vm[len(self.vm)-n:] if n else []
    def nop(self, n):
        if n > 0: self.a(f"s_nop {n-1}")

WS_Q   = 0x40000
WS_EP  = 0x8000
WS_CNT = 0x10000
CNT_STRIDE = 1280
CNT_BIAS = 0x10000
WS_P2  = 0x100000
WS_S2  = 0x200000
WS_TS  = 0x1000000
LDS_XN   = 0
LDS_Q    = 1024
LDS_ML   = 2048
LDS_O    = 2304
LDS_QP   = 2304
LDS_TOTAL = 2304 + 8192
LOG2E = 1.4426950408889634
SCALE = 128 ** -0.5
LCG_A, LCG_C = 1664525, 1013904223
REG = 0x200000
LIM = 0x1000000

DEFAULTS = dict(A=2, R=12, NS=40, P=3, T=20.0, dyn=True, stamps=False, tstamps=False, poll_max=4000000,
                cu_issue=(0, 1, 6, 10), q_sleep=12, q_first=0, pretouch=0, stf='sc1', ldf='sc1', dbgt=False)

def build(**kw):
    p = dict(DEFAULTS); p.update(kw)
    G = Gen(**p)
    a, lab, c, vmem, wait_vm, nop = G.a, G.lab, G.c, G.vmem, G.wait_vm, G.nop
    A, R, NS = G.A, G.R, G.NS
    E = len(G.cu_issue)
    assert A <= E <= 4 and R <= 12
    POLL_MAX = G.poll_max
    hdr = [f"; @launch grid=(256,1,1) block=(256,1,1) lds={LDS_TOTAL}",
           '.amdgcn_target "amdgcn-amd-amdhsa--gfx950"', ".text", f".globl {KN}", ".p2align 8",
           f".type {KN},@function", f"{KN}:"]
    sX, sK, sV, sWQ, sWO, sBX, sW1, sB1 = 16, 18, 20, 22, 24, 26, 28, 30
    sW2, sB2, sOUT, sDBG, sWS = 32, 34, 36, 38, 40
    sTAGL, sTAGH = 42, 43
    srdK, srdV = 44, 48
    sOFF = 52; sTK = 56; sDYNB = 60; sTG16 = 61
    sWV, sA, sB, sG, sI = 72, 73, 74, 75, 76
    sN, sSTAT, sEXH, sCNTOFF, sBH = 77, 78, 79, 80, 81
    sT0, sT1, sT2, sT3 = 82, 83, 84, 85
    sTHR, sFLOOR = 86, 87
    sXD = 88
    sC0 = 90
    sPC = 92
    sTS0 = 94
    sLOG2E, sSCALE = 98, 99
    def sp(r): return f"s[{r}:{r+1}]"
    def sq(r): return f"s[{r}:{r+3}]"
    vLANE = 1; vKOFF = 2; vVOFF = 3
    vQ = 4; vO = 20; vNM = 28; vL = 29; vSEL = 30; vS = 34; vX = 38
    vT = 46
    vA = 80
    vPA = 96
    vMASK = 100
    vW = 104
    vWO = 136
    vG = 232
    NV = 236
    def v(r): return f"v{r}"
    def vr(r, n): return f"v[{r}:{r+n-1}]"
    def slot_reg(slot, off, n):
        if slot < 8:
            r = 32*slot + off
            return f"a[{r}:{r+n-1}]"
        r = vW + 32*(slot-8) + off
        return f"v[{r}:{r+n-1}]"
    def stamp(k):
        if G.stamps and not G.tstamps: a(f"s_memrealtime s[{4+2*k}:{5+2*k}]")
    def tstamp(k):
        if G.tstamps: a(f"s_memrealtime s[{4+2*k}:{5+2*k}]")
    DPP = "row_mask:0xf bank_mask:0xf"
    def allred16(op, r, steps=("quad_perm:[1,0,3,2]", "quad_perm:[2,3,0,1]", "row_half_mirror", "row_mirror")):
        for s in steps:
            nop(2)
            a(f"{op}_dpp {v(r)}, {v(r)}, {v(r)} {s} {DPP}")
    def allred_rows(op, r, t):
        a(f"v_mov_b32 {v(t)}, {v(r)}")
        nop(2)
        a(f"v_permlane16_swap_b32 {v(r)}, {v(t)}")
        nop(1)
        a(f"{op} {v(r)}, {v(r)}, {v(t)}")
        a(f"v_mov_b32 {v(t)}, {v(r)}")
        nop(2)
        a(f"v_permlane32_swap_b32 {v(r)}, {v(t)}")
        nop(1)
        a(f"{op} {v(r)}, {v(r)}, {v(t)}")
    def allred64(op, r, t):
        allred16(op, r); allred_rows(op, r, t)
    def rbf(r):
        a(f"v_cvt_pk_bf16_f32 {v(r)}, {v(r)}, {v(r)}")
        a(f"v_and_b32 {v(r)}, 0xffff0000, {v(r)}")
    def rbf2(r0, r1):
        a(f"v_cvt_pk_bf16_f32 {v(r1)}, {v(r0)}, {v(r1)}")
        a(f"v_lshlrev_b32 {v(r0)}, 16, {v(r1)}")
        a(f"v_and_b32 {v(r1)}, 0xffff0000, {v(r1)}")
    def poll_tail(label, sleep=0):
        if sleep: a(f"s_sleep {sleep}")
        a(f"s_add_u32 s{sT3}, s{sT3}, 1")
        a(f"s_cmp_lt_u32 s{sT3}, {POLL_MAX}")
        a(f"s_cbranch_scc1 {label}")
    def tags():
        a(f"s_mul_i32 s{sTAGL}, s{sTAGL}, {LCG_A}")
        a(f"s_add_u32 s{sTAGL}, s{sTAGL}, {LCG_C}")
        a(f"s_mul_i32 s{sTAGH}, s{sTAGH}, {LCG_A}")
        a(f"s_add_u32 s{sTAGH}, s{sTAGH}, {LCG_C}")
        a(f"s_and_b32 s{sTG16}, s{sTAGL}, 0xffff0000")

    t0, t1, t2, t3 = vS, vS+1, vS+2, vS+3
    F = vX
    def unpack8(dst, src):
        for j in range(4):
            a(f"v_lshlrev_b32 {v(dst+2*j)}, 16, {v(src+j)}")
            a(f"v_and_b32 {v(dst+2*j+1)}, 0xffff0000, {v(src+j)}")
    def ln_stats(F):
        a(f"v_add_f32 {v(t0)}, {v(F)}, {v(F+1)}")
        a(f"v_add_f32 {v(t1)}, {v(F+2)}, {v(F+3)}")
        a(f"v_add_f32 {v(t2)}, {v(F+4)}, {v(F+5)}")
        a(f"v_add_f32 {v(t3)}, {v(F+6)}, {v(F+7)}")
        a(f"v_add_f32 {v(t0)}, {v(t0)}, {v(t1)}")
        a(f"v_add_f32 {v(t2)}, {v(t2)}, {v(t3)}")
        a(f"v_add_f32 {v(t0)}, {v(t0)}, {v(t2)}")
        allred64("v_add_f32", t0, t3)
        a(f"v_mul_f32 {v(t0)}, 0x3b000000, {v(t0)}")
        a(f"v_sub_f32 {v(t2)}, {v(F)}, {v(t0)}")
        a(f"v_mul_f32 {v(t1)}, {v(t2)}, {v(t2)}")
        for j in range(1, 8):
            a(f"v_sub_f32 {v(t2)}, {v(F+j)}, {v(t0)}")
            a(f"v_fmac_f32 {v(t1)}, {v(t2)}, {v(t2)}")
        allred64("v_add_f32", t1, t3)
        a(f"v_mul_f32 {v(t1)}, 0x3b000000, {v(t1)}")
        rbf2(t0, t1)
        a(f"v_add_f32 {v(t1)}, 0x{f2u(1e-5):08x}, {v(t1)}")
        rbf(t1)
        a(f"v_sqrt_f32 {v(t2)}, {v(t1)}")
        nop(1)
        a(f"v_rcp_f32 {v(t3)}, {v(t2)}")
        a(f"v_fma_f32 {v(vT)}, -{v(t2)}, {v(t2)}, {v(t1)}")
        a(f"v_mul_f32 {v(t3)}, 0.5, {v(t3)}")
        a(f"v_fma_f32 {v(t1)}, {v(vT)}, {v(t3)}, {v(t2)}")
        rbf(t1)
        a(f"v_rcp_f32 {v(t2)}, {v(t1)}")
        nop(1)
        a(f"v_fma_f32 {v(t3)}, -{v(t1)}, {v(t2)}, 1.0")
        a(f"v_fma_f32 {v(t2)}, {v(t3)}, {v(t2)}, {v(t2)}")
    def ln_apply2(r0, r1, tmp):
        a(f"v_sub_f32 {v(r0)}, {v(r0)}, {v(t0)}")
        a(f"v_sub_f32 {v(r1)}, {v(r1)}, {v(t0)}")
        rbf2(r0, r1)
        for r in (r0, r1):
            a(f"v_mul_f32 {v(tmp)}, {v(r)}, {v(t2)}")
            a(f"v_fma_f32 {v(r)}, -{v(tmp)}, {v(t1)}, {v(r)}")
            a(f"v_fma_f32 {v(r)}, {v(r)}, {v(t2)}, {v(tmp)}")
    def wo_issue():
        a(f"v_lshrrev_b32 {v(vT)}, 4, {v(vLANE)}")
        a(f"v_and_b32 {v(vT+1)}, 1, {v(vT)}")
        a(f"v_lshlrev_b32 {v(vT+1)}, 1, {v(vT+1)}")
        a(f"v_lshrrev_b32 {v(vT)}, 1, {v(vT)}")
        a(f"v_add_u32 {v(vT)}, {v(vT)}, {v(vT+1)}")
        a(f"v_lshlrev_b32 {v(vT)}, 10, {v(vT)}")
        a(f"v_and_b32 {v(vT+1)}, 15, {v(vLANE)}")
        a(f"v_lshl_add_u32 {v(vT)}, {v(vT+1)}, 4, {v(vT)}")
        a(f"s_lshl_b32 s{sT1}, s{sG}, 5")
        a(f"s_add_u32 s{sT1}, s{sT1}, s{sI}")
        a(f"s_lshl_b32 s{sT1}, s{sT1}, 14")
        a(f"v_add_u32 {v(vT+11)}, s{sT1}, {v(vT)}")
        a(f"v_add_u32 {v(vT+12)}, 0x1000, {v(vT+11)}")
        a(f"v_add_u32 {v(vT+13)}, 0x2000, {v(vT+11)}")
        a(f"v_add_u32 {v(vT+14)}, 0x3000, {v(vT+11)}")
        for u, r in enumerate((vT+11, vT+12, vT+13, vT+14)):
            for cb in range(4):
                a(f"global_load_dwordx4 {vr(vWO+16*cb+4*u,4)}, {v(r)}, {sp(sWO)} offset:{256*cb} nt")
    def tail_addr():
        a(f"s_lshl_b32 s{sT0}, s{sG}, 2")
        a(f"s_add_u32 s{sT0}, s{sT0}, s{sWV}")
        a(f"s_lshl_b32 s{sT1}, s{sT0}, 15")
        a(f"s_lshl_b32 s{sT2}, s{sI}, 7")
        a(f"s_add_u32 s{sT1}, s{sT1}, s{sT2}")
        a(f"s_add_u32 s{sT1}, s{sT1}, {WS_P2}")
        a(f"v_lshrrev_b32 {v(vT)}, 3, {v(vLANE)}")
        a(f"v_lshlrev_b32 {v(vT)}, 12, {v(vT)}")
        a(f"v_and_b32 {v(vT+1)}, 7, {v(vLANE)}")
        a(f"v_lshl_add_u32 {v(vT)}, {v(vT+1)}, 4, {v(vT)}")
        a(f"v_add_u32 {v(vA)}, s{sT1}, {v(vT)}")
        a(f"s_lshl_b32 s{sT1}, s{sWV}, 11")
        a(f"v_lshl_add_u32 {v(vA+1)}, {v(vLANE)}, 5, s{sT1}")
        a(f"v_bfe_u32 {v(vT+1)}, {v(vLANE)}, 2, 2")
        a(f"s_lshl_b32 s{sT1}, s{sWV}, 3")
        a(f"v_lshl_add_u32 {v(vA+2)}, {v(vT+1)}, 5, s{sT1}")
        a(f"s_lshl_b32 s{sT1}, s{sWV}, 5")
        a(f"v_mov_b32 {v(vA+3)}, s{sT1}")
        a(f"s_lshl_b32 s{sT1}, s{sWV}, 9")
        a(f"v_lshl_add_u32 {v(vA+4)}, {v(vLANE)}, 3, s{sT1}")
        a(f"v_and_b32 {v(vT)}, 1, {v(vLANE)}")
        a(f"v_lshlrev_b32 {v(vA+5)}, 4, {v(vT)}")
        a(f"v_and_b32 {v(vA+6)}, 2, {v(vLANE)}")
    def issue_tile(slot, soff, tag=None, track=True):
        for t in range(4):
            s = f"buffer_load_dwordx4 {slot_reg(slot,4*t,4)}, {v(vKOFF)}, {sq(srdK)}, {soff} offen offset:{64*t} nt"
            vmem(s, ("K", tag)) if track else a(s)
        for u in range(4):
            s = f"buffer_load_dwordx4 {slot_reg(slot,16+4*u,4)}, {v(vVOFF)}, {sq(srdV)}, {soff} offen offset:{1024*u} nt"
            vmem(s, ("V", tag)) if track else a(s)
    TSTR = 12 * 4096
    NDYN = 2 * (512 - NS * 12)
    uid = [0]
    def next_tile(ns, tag=None, track=False):
        u = uid[0]; uid[0] += 1
        if G.dyn:
            a(f"s_cmp_lt_u32 s{sN}, {NS}")
            a(f"s_cbranch_scc1 L_st{u}")
            a(f"s_waitcnt lgkmcnt({G.P-1})")
            a(f"s_cmp_lg_u32 s{sTK+ns}, 1")
            a(f"s_cbranch_scc1 L_tk{u}")
            a("s_waitcnt lgkmcnt(0)")
            lab(f"L_tk{u}")
            a(f"s_and_b32 s{sT1}, s{sTK+ns}, 1")
            a(f"s_lshl_b32 s{sT1}, s{sT1}, 21")
            a(f"s_and_b32 s{sSTAT}, s{sTK+ns}, 0xfffe")
            a(f"s_lshl_b32 s{sSTAT}, s{sSTAT}, 11")
            a(f"s_add_u32 s{sSTAT}, s{sSTAT}, s{sT1}")
            a(f"s_add_u32 s{sSTAT}, s{sSTAT}, s{sDYNB}")
            a(f"s_cmp_ge_u32 s{sTK+ns}, {CNT_BIAS + NDYN}")
            a(f"s_cselect_b32 s{sEXH}, 0x{LIM:x}, s{sEXH}")
            a(f"s_max_u32 s{sSTAT}, s{sSTAT}, s{sEXH}")
            lab(f"L_st{u}")
            a(f"s_mov_b32 s{sOFF+ns}, s{sSTAT}")
            a(f"s_add_u32 s{sSTAT}, s{sSTAT}, {TSTR}")
            a(f"s_add_u32 s{sN}, s{sN}, 1")
            a(f"s_cmp_lg_u32 s{sEXH}, 0")
            a(f"s_cbranch_scc1 L_nq{u}")
            a(f"s_cmp_lt_u32 s{sN}, {NS - G.P + 1}")
            a(f"s_cbranch_scc1 L_nq{u}")
            a(f"s_mov_b32 s{sTK+(ns+G.P)%4}, 1")
            a(f"s_atomic_add s{sTK+(ns+G.P)%4}, {sp(sWS)}, s{sCNTOFF} glc")
            lab(f"L_nq{u}")
        else:
            a(f"s_cmp_ge_u32 s{sSTAT}, s{sDYNB}")
            a(f"s_cselect_b32 s{sOFF+ns}, 0x{LIM:x}, s{sSTAT}")
            a(f"s_add_u32 s{sSTAT}, s{sSTAT}, {TSTR}")
        issue_tile(ns, f"s{sOFF+ns}", tag, track)

    a("s_cmp_ge_u32 s2, 256")
    a("s_cbranch_scc1 L_end")
    if G.stamps: a(f"s_memrealtime {sp(sTS0)}")
    a("s_load_dwordx16 s[16:31], s[0:1], 0")
    a("s_load_dwordx8 s[32:39], s[0:1], 64")
    a("s_load_dwordx2 s[40:41], s[0:1], 96")
    a(f"v_and_b32 {v(vLANE)}, 63, v0")
    a(f"v_lshrrev_b32 {v(vT)}, 6, v0")
    a(f"s_and_b32 s{sA}, s2, 7")
    a(f"v_readfirstlane_b32 s{sWV}, {v(vT)}")
    a(f"s_lshr_b32 s{sB}, s2, 3")
    a(f"v_lshlrev_b32 {v(vVOFF)}, 4, {v(vLANE)}")
    a(f"s_and_b32 s{sG}, s{sB}, 7")
    a(f"s_lshr_b32 s{sBH}, s{sB}, 3")
    a(f"s_lshl_b32 s{sT0}, s{sBH}, 3")
    a(f"s_add_u32 s{sI}, s{sT0}, s{sA}")
    a(f"s_mov_b32 s{sLOG2E}, 0x{f2u(LOG2E):08x}")
    a(f"s_mov_b32 s{sN}, 0")
    a(f"s_cmp_lg_u32 s{sWV}, 0")
    a("s_cbranch_scc1 L_stream")
    a(f"v_lshrrev_b32 {v(vT)}, 3, {v(vLANE)}")
    a(f"v_lshlrev_b32 {v(vT)}, 17, {v(vT)}")
    a(f"v_and_b32 {v(vT+1)}, 7, {v(vLANE)}")
    a(f"v_lshl_add_u32 {v(vT)}, {v(vT+1)}, 4, {v(vT)}")
    a(f"s_lshl_b32 s{sT1}, s{sA}, 3")
    a(f"s_add_u32 s{sT3}, s{sT1}, s{sG}")
    a(f"s_lshl_b32 s{sT1}, s{sT3}, 7")
    a(f"s_lshl_b32 s{sT2}, s{sBH}, 20")
    a(f"s_add_u32 s{sT1}, s{sT1}, s{sT2}")
    a(f"v_add_u32 {v(vT+16)}, s{sT1}, {v(vT)}")
    a(f"v_add_u32 {v(vT+17)}, 0x2000, {v(vT+16)}")
    a(f"s_lshl_b32 s{sT1}, s{sA}, 2")
    a(f"s_and_b32 s{sT2}, s{sG}, 3")
    a(f"s_add_u32 s{sT1}, s{sT1}, s{sT2}")
    a(f"s_mul_i32 s{sT1}, s{sT1}, {CNT_STRIDE}")
    a(f"s_add_u32 s{sT1}, s{sT1}, {WS_CNT}")
    a(f"v_mov_b32 {v(vT+9)}, s{sT1}")
    a(f"v_mov_b32 {v(vT+10)}, 0x{CNT_BIAS:x}")
    a("s_waitcnt lgkmcnt(0)")
    a(f"s_load_dwordx2 {sp(sTAGL)}, {sp(sWS)}, {WS_EP}")
    vmem(f"global_load_dwordx4 {vr(vW,4)}, {v(vVOFF)}, {sp(sX)}", "x")
    W0 = vW + 4
    for j in range(8):
        vmem(f"global_load_dwordx4 {vr(W0+8*j,4)}, {v(vT+16)}, {sp(sWQ)} nt", ("wq", j))
        vmem(f"global_load_dwordx4 {vr(W0+8*j+4,4)}, {v(vT+17)}, {sp(sWQ)} nt", ("wq", j))
        if j < 7:
            a(f"v_add_u32 {v(vT+16)}, 0x4000, {v(vT+16)}")
            a(f"v_add_u32 {v(vT+17)}, 0x4000, {v(vT+17)}")
        if j == 3:
            a("s_mov_b64 exec, 1")
            vmem(f"global_store_dword {v(vT+9)}, {v(vT+10)}, {sp(sWS)} sc1", "clr")
            a("s_mov_b64 exec, -1")
    a(f"s_lshl_b32 s{sT1}, s{sA}, 2")
    a(f"s_add_u32 s{sT1}, s{sT1}, s{sBH}")
    a(f"s_lshl_b32 s{sT1}, s{sT1}, 3")
    a(f"s_add_u32 s{sT1}, s{sT1}, s{sG}")
    a(f"s_lshl_b32 s{sT1}, s{sT1}, 9")
    a(f"s_add_u32 s{sT1}, s{sT1}, {WS_Q}")
    a(f"v_and_b32 {v(vT)}, 7, {v(vLANE)}")
    a(f"v_lshrrev_b32 {v(vT+1)}, 4, {v(vLANE)}")
    a(f"v_lshl_add_u32 {v(vT)}, {v(vT)}, 2, {v(vT+1)}")
    a(f"v_lshl_add_u32 {v(vT+21)}, {v(vT)}, 4, s{sT1}")
    a(f"s_lshl_b32 s{sT2}, s{sG}, 14")
    a(f"s_add_u32 s{sT2}, s{sT2}, {WS_Q}")
    a(f"v_add_u32 {v(vT+22)}, s{sT2}, {v(vVOFF)}")
    a(f"v_add_u32 {v(vT+23)}, 0x1000, {v(vT+22)}")
    a(f"v_add_u32 {v(vT+24)}, 0x2000, {v(vT+22)}")
    a(f"v_add_u32 {v(vT+25)}, 0x3000, {v(vT+22)}")
    a(f"v_and_b32 {v(vT)}, 31, {v(vLANE)}")
    a(f"v_lshl_add_u32 {v(vT+26)}, {v(vT)}, 9, s{sT2}")
    a(f"s_lshl_b32 s{sC0}, s{sA}, 6")
    a(f"s_lshl_b32 s{sT1}, s{sB}, 1")
    a(f"s_add_u32 s{sC0}, s{sC0}, s{sT1}")
    wait_vm("x")
    stamp(0)
    unpack8(F, vW)
    ln_stats(F)
    for j in range(4):
        ln_apply2(F+2*j, F+2*j+1, vT)
        a(f"v_cvt_pk_bf16_f32 {v(vW+j)}, {v(F+2*j)}, {v(F+2*j+1)}")
    a(f"ds_write_b128 {v(vVOFF)}, {vr(vW,4)} offset:{LDS_XN}")
    a(f"s_mov_b32 s{sT1}, 0x05040100")
    a(f"s_mov_b32 s{sT2}, 0x07060302")
    XN = vX
    a(f"v_lshrrev_b32 {v(vT+1)}, 3, {v(vLANE)}")
    a(f"s_lshl_b32 s{sT0}, s{sBH}, 8")
    a(f"v_lshl_add_u32 {v(vT+1)}, {v(vT+1)}, 5, s{sT0}")
    a(f"ds_read_b128 {vr(XN,4)}, {v(vT+1)} offset:{LDS_XN}")
    a(f"ds_read_b128 {vr(XN+4,4)}, {v(vT+1)} offset:{LDS_XN+16}")
    ACC = vQ; PT = vQ + 8
    for j in range(8):
        wait_vm(("wq", j))
        if j == 0: stamp(1)
        ra, rb = W0 + 8*j, W0 + 8*j + 4
        for d in range(4):
            a(f"v_perm_b32 {v(PT+2*d)}, {v(rb+d)}, {v(ra+d)}, s{sT1}")
            a(f"v_perm_b32 {v(PT+2*d+1)}, {v(rb+d)}, {v(ra+d)}, s{sT2}")
        if j == 0: a("s_waitcnt lgkmcnt(0)")
        for cidx in range(8):
            cc = "0" if j == 0 else v(ACC+cidx)
            a(f"v_dot2_f32_bf16 {v(ACC+cidx)}, {v(PT+cidx)}, {v(XN+j)}, {cc}")
    tags()
    for cidx in range(4):
        a(f"v_permlane32_swap_b32 {v(ACC+cidx)}, {v(ACC+cidx+4)}")
    nop(1)
    for cidx in range(4):
        a(f"v_add_f32 {v(ACC+cidx)}, {v(ACC+cidx)}, {v(ACC+cidx+4)}")
    nop(1)
    for cidx in range(2):
        a(f"v_permlane16_swap_b32 {v(ACC+cidx)}, {v(ACC+cidx+2)}")
    nop(1)
    for cidx in range(2):
        a(f"v_add_f32 {v(ACC+cidx)}, {v(ACC+cidx)}, {v(ACC+cidx+2)}")
    a(f"v_mov_b32 {v(ACC+2)}, s{sTAGL}")
    a(f"v_add_f32_dpp {v(ACC)}, {v(ACC)}, {v(ACC)} row_ror:8 {DPP}")
    a(f"v_add_f32_dpp {v(ACC+1)}, {v(ACC+1)}, {v(ACC+1)} row_ror:8 {DPP}")
    a(f"v_mov_b32 {v(ACC+3)}, s{sTAGH}")
    stamp(2)
    a("s_mov_b32 exec_lo, 0x00ff00ff")
    a("s_mov_b32 exec_hi, 0x00ff00ff")
    a(f"global_store_dwordx4 {v(vT+21)}, {vr(ACC,4)}, {sp(sWS)} sc1")
    a("s_mov_b64 exec, -1")
    stamp(3)
    unpack8(F, vW)
    ln_stats(F)
    a(f"s_lshl_b32 s{sT2}, s{sC0}, 1")
    a(f"v_mov_b32 {v(vT+1)}, s{sT2}")
    a(f"ds_read_b32 {v(vT+4)}, {v(vT+1)} offset:{LDS_XN}")
    a(f"s_load_dword s{sXD}, {sp(sX)}, s{sT2}")
    h0, h1 = vG, vG+1
    a("s_waitcnt lgkmcnt(0)")
    a(f"v_lshlrev_b32 {v(h0)}, 16, {v(vT+4)}")
    a(f"v_and_b32 {v(h1)}, 0xffff0000, {v(vT+4)}")
    ln_apply2(h0, h1, vT)
    rbf2(h0, h1)
    QB = vW + 8
    a(f"s_mov_b32 s{sT3}, 0")
    a("s_mov_b64 exec, 0xffffffff")
    lab("L_pollL")
    a(f"global_load_dwordx2 {vr(QB,2)}, {v(vT+26)}, {sp(sWS)} offset:504 sc1")
    a("s_waitcnt vmcnt(0)")
    a(f"v_cmp_ne_u32 vcc, s{sTAGH}, {v(QB+1)}")
    a("s_and_b64 exec, exec, vcc")
    a("s_cbranch_execz L_pollL_done")
    poll_tail("L_pollL", G.q_sleep)
    lab("L_pollL_done")
    a("s_mov_b64 exec, -1")
    a(f"s_mov_b32 s{sT3}, 0")
    lab("L_pollQ")
    for ks in range(4):
        for m in range(4):
            a(f"global_load_dwordx4 {vr(QB+16*ks+4*m,4)}, {v(vT+22+ks)}, {sp(sWS)} offset:{1024*m} sc1")
    a("s_waitcnt vmcnt(0)")
    a(f"v_mov_b32 {v(vT)}, 0")
    for k in range(16):
        a(f"v_xor_b32 {v(vT+1)}, s{sTAGL}, {v(QB+4*k+2)}")
        a(f"v_xor_b32 {v(vT+2)}, s{sTAGH}, {v(QB+4*k+3)}")
        a(f"v_or3_b32 {v(vT)}, {v(vT)}, {v(vT+1)}, {v(vT+2)}")
    a(f"v_cmp_ne_u32 vcc, 0, {v(vT)}")
    a("s_and_b64 exec, exec, vcc")
    a("s_cbranch_execz L_pollQ_done")
    poll_tail("L_pollQ", G.q_sleep)
    lab("L_pollQ_done")
    a("s_mov_b64 exec, -1")
    stamp(4)
    a(f"v_lshlrev_b32 {v(vT)}, 2, {v(vLANE)}")
    for m in range(4):
        for e in range(2):
            a(f"v_add_f32 {v(QB+4*m+e)}, {v(QB+4*m+e)}, {v(QB+16+4*m+e)}")
            a(f"v_add_f32 {v(QB+32+4*m+e)}, {v(QB+32+4*m+e)}, {v(QB+48+4*m+e)}")
            a(f"v_add_f32 {v(QB+4*m+e)}, {v(QB+4*m+e)}, {v(QB+32+4*m+e)}")
        a(f"v_cvt_pk_bf16_f32 {v(QB+4*m)}, {v(QB+4*m)}, {v(QB+4*m+1)}")
        a(f"ds_write_b32 {v(vT)}, {v(QB+4*m)} offset:{LDS_Q + 256*m}")
    a("s_waitcnt lgkmcnt(0)")
    a("s_barrier")
    stamp(5)
    if G.stamps: a(f"s_memrealtime {sp(sTS0+2)}")
    wo_issue()
    a(f"v_mov_b32 {v(vT+20)}, 0")
    a(f"global_load_ushort {v(vMASK)}, {v(vT+20)}, {sp(sB2)}")
    y0, y1 = vX+2, vX+3
    a(f"v_mov_b32 {v(y0)}, 0")
    a(f"v_mov_b32 {v(y1)}, 0")
    K1 = 2.0 * math.sqrt(2.0 / math.pi) * LOG2E
    a(f"s_mov_b32 s{sT1}, 0x{f2u(-K1*0.044715):08x}")
    a(f"v_mov_b32 {v(vT+5)}, 0x{f2u(-K1):08x}")
    a(f"v_lshlrev_b32 {v(vT+6)}, 3, {v(vLANE)}")
    a(f"s_mov_b32 s{sT2}, 0")
    BW = vW
    wv1, bv1, wv2 = vX+4, vX+5, vX+6
    u0, u1, e0, e1 = vT, vT+1, vT+2, vT+3
    lab("L_bloop")
    a(f"global_load_dwordx2 {vr(BW,2)}, {v(vT+6)}, {sp(sW1)}")
    a(f"global_load_dwordx2 {vr(BW+2,2)}, {v(vT+6)}, {sp(sB1)}")
    a(f"global_load_dwordx2 {vr(BW+4,2)}, {v(vT+6)}, {sp(sW2)}")
    a(f"v_add_u32 {v(vT+6)}, 512, {v(vT+6)}")
    a("s_waitcnt vmcnt(0)")
    for j in range(4):
        d, hi = j // 2, j % 2
        for (dst, src) in ((wv1, BW+d), (bv1, BW+2+d), (wv2, BW+4+d)):
            if hi: a(f"v_and_b32 {v(dst)}, 0xffff0000, {v(src)}")
            else:  a(f"v_lshlrev_b32 {v(dst)}, 16, {v(src)}")
        a(f"v_mul_f32 {v(u0)}, {v(h0)}, {v(wv1)}")
        a(f"v_mul_f32 {v(u1)}, {v(h1)}, {v(wv1)}")
        rbf2(u0, u1)
        a(f"v_add_f32 {v(u0)}, {v(u0)}, {v(bv1)}")
        a(f"v_add_f32 {v(u1)}, {v(u1)}, {v(bv1)}")
        rbf2(u0, u1)
        a(f"v_mul_f32 {v(e0)}, {v(u0)}, {v(u0)}")
        a(f"v_mul_f32 {v(e1)}, {v(u1)}, {v(u1)}")
        a(f"v_fma_f32 {v(e0)}, {v(e0)}, s{sT1}, {v(vT+5)}")
        a(f"v_fma_f32 {v(e1)}, {v(e1)}, s{sT1}, {v(vT+5)}")
        a(f"v_mul_f32 {v(e0)}, {v(e0)}, {v(u0)}")
        a(f"v_mul_f32 {v(e1)}, {v(e1)}, {v(u1)}")
        a(f"v_exp_f32 {v(e0)}, {v(e0)}")
        a(f"v_exp_f32 {v(e1)}, {v(e1)}")
        nop(1)
        a(f"v_add_f32 {v(e0)}, 1.0, {v(e0)}")
        a(f"v_add_f32 {v(e1)}, 1.0, {v(e1)}")
        a(f"v_rcp_f32 {v(e0)}, {v(e0)}")
        a(f"v_rcp_f32 {v(e1)}, {v(e1)}")
        nop(1)
        a(f"v_mul_f32 {v(e0)}, {v(e0)}, {v(u0)}")
        a(f"v_mul_f32 {v(e1)}, {v(e1)}, {v(u1)}")
        rbf2(e0, e1)
        a(f"v_fmac_f32 {v(y0)}, {v(e0)}, {v(wv2)}")
        a(f"v_fmac_f32 {v(y1)}, {v(e1)}, {v(wv2)}")
    a(f"s_add_u32 s{sT2}, s{sT2}, 1")
    a(f"s_cmp_lt_u32 s{sT2}, 7")
    a("s_cbranch_scc1 L_bloop")
    allred64("v_add_f32", y0, vT)
    allred64("v_add_f32", y1, vT)
    a(f"v_lshlrev_b32 {v(vT+2)}, 16, {v(vMASK)}")
    rbf2(y0, y1)
    a(f"v_add_f32 {v(y0)}, {v(y0)}, {v(vT+2)}")
    a(f"v_add_f32 {v(y1)}, {v(y1)}, {v(vT+2)}")
    rbf2(y0, y1)
    g0, g1 = vG, vG+1
    a(f"v_mul_f32 {v(e0)}, s{sLOG2E}, {v(y0)}")
    a(f"v_mul_f32 {v(e1)}, s{sLOG2E}, {v(y1)}")
    a(f"v_exp_f32 {v(e0)}, -{v(e0)}")
    a(f"v_exp_f32 {v(e1)}, -{v(e1)}")
    nop(1)
    a(f"v_add_f32 {v(e0)}, 1.0, {v(e0)}")
    a(f"v_add_f32 {v(e1)}, 1.0, {v(e1)}")
    a(f"v_rcp_f32 {v(e0)}, {v(e0)}")
    a(f"v_rcp_f32 {v(e1)}, {v(e1)}")
    nop(1)
    a(f"v_mul_f32 {v(g0)}, {v(y0)}, {v(e0)}")
    a(f"v_mul_f32 {v(g1)}, {v(y1)}, {v(e1)}")
    rbf2(g0, g1)
    tail_addr()
    a(f"s_lshl_b32 s{sT2}, s{sG}, 5")
    a(f"s_add_u32 s{sT2}, s{sT2}, s{sI}")
    a(f"s_lshl_b32 s{sT2}, s{sT2}, 12")
    a(f"s_add_u32 s{sT1}, s{sT2}, {WS_P2}")
    a(f"v_add_u32 {v(vA+8)}, s{sT1}, {v(vVOFF)}")
    a(f"s_add_u32 s{sT1}, s{sT2}, {WS_S2}")
    a(f"v_and_b32 {v(vT)}, 15, {v(vLANE)}")
    a(f"v_lshlrev_b32 {v(vT)}, 6, {v(vT)}")
    a(f"v_bfe_u32 {v(vT+1)}, {v(vLANE)}, 4, 1")
    a(f"v_lshl_add_u32 {v(vT)}, {v(vT+1)}, 5, {v(vT)}")
    a(f"v_lshrrev_b32 {v(vT+1)}, 5, {v(vLANE)}")
    a(f"v_lshl_add_u32 {v(vT)}, {v(vT+1)}, 4, {v(vT)}")
    a(f"v_add_u32 {v(vA+9)}, s{sT1}, {v(vT)}")
    a(f"s_lshl_b32 s{sT1}, s{sC0}, 3")
    a(f"s_add_u32 s{sT1}, s{sT1}, {WS_S2}")
    a(f"v_lshl_add_u32 {v(vPA)}, {v(vLANE)}, 12, s{sT1}")
    a(f"v_add_u32 {v(vPA+1)}, 0x40000, {v(vPA)}")
    a(f"v_add_u32 {v(vPA+2)}, 0x80000, {v(vPA)}")
    a(f"v_add_u32 {v(vPA+3)}, 0xc0000, {v(vPA)}")
    a(f"v_and_b32 {v(vT)}, 15, {v(vLANE)}")
    a(f"v_and_b32 {v(vT+1)}, 1, {v(vLANE)}")
    a(f"v_cmp_eq_u32 vcc, 1, {v(vT+1)}")
    a(f"v_mov_b32 {v(vT+2)}, 0xffff")
    a(f"v_mov_b32 {v(vT+3)}, 0xffff0000")
    a(f"v_cndmask_b32 {v(vT+2)}, {v(vT+2)}, {v(vT+3)}, vcc")
    a(f"v_lshrrev_b32 {v(vT)}, 1, {v(vT)}")
    for r in range(4):
        a(f"v_cmp_eq_u32 vcc, {r}, {v(vT)}")
        nop(2)
        a(f"v_cndmask_b32 {v(vMASK+r)}, 0, {v(vT+2)}, vcc")
    a(f"s_lshl_b32 s{sT1}, s{sC0}, 1")
    a(f"v_mov_b32 {v(vA+10)}, s{sT1}")
    a(f"s_lshl_b32 s{sT1}, s{sXD}, 16")
    a(f"s_and_b32 s{sT2}, s{sXD}, 0xffff0000")
    a(f"v_mov_b32 {v(vA+11)}, s{sT1}")
    a(f"v_mov_b32 {v(vA+12)}, s{sT2}")
    a(f"s_mov_b32 s{sT0}, 0x05040100")
    if G.pretouch & 1:
        for k in range(4):
            a(f"global_load_dwordx4 {vr(vW+4*k,4)}, {v(vA+8)}, {sp(sWS)} offset:{1024*k} sc1")
    if G.pretouch & 2:
        for k in range(4):
            a(f"global_load_dwordx4 {vr(vW+4*k,4)}, {v(vPA+k)}, {sp(sWS)} sc1")
    if G.pretouch & 4:
        a(f"global_load_dword {v(vW)}, {v(vA+10)}, {sp(sOUT)}")
    if G.pretouch: a("s_waitcnt vmcnt(0)")
    if G.stamps: a(f"s_memrealtime s[100:101]")
    a("s_branch L_tail")

    lab("L_stream")
    a("s_waitcnt lgkmcnt(0)")
    a(f"s_load_dwordx2 {sp(sTAGL)}, {sp(sWS)}, {WS_EP}")
    G.vm = []
    a(f"v_and_b32 {v(vT)}, 3, {v(vLANE)}")
    a(f"v_lshlrev_b32 {v(vT)}, 2, {v(vT)}")
    a(f"v_bfe_u32 {v(vT+1)}, {v(vLANE)}, 2, 2")
    a(f"v_add_u32 {v(vT)}, {v(vT)}, {v(vT+1)}")
    a(f"v_lshlrev_b32 {v(vT)}, 8, {v(vT)}")
    a(f"v_lshrrev_b32 {v(vT+1)}, 4, {v(vLANE)}")
    a(f"v_lshl_add_u32 {v(vKOFF)}, {v(vT+1)}, 4, {v(vT)}")
    a(f"s_mul_i32 s{sSTAT}, s{sBH}, 3")
    a(f"s_add_u32 s{sSTAT}, s{sSTAT}, s{sWV}")
    a(f"s_sub_u32 s{sSTAT}, s{sSTAT}, 1")
    a(f"s_lshl_b32 s{sSTAT}, s{sSTAT}, 12")
    a(f"s_lshl_b32 s{sT1}, s{sG}, 24")
    a(f"s_lshl_b32 s{sT2}, s{sA}, 21")
    a(f"s_add_u32 s{sSTAT}, s{sSTAT}, s{sT2}")
    for srd, ptr in ((srdK, sK), (srdV, sV)):
        a(f"s_add_u32 s{srd}, s{ptr}, s{sT1}")
        a(f"s_addc_u32 s{srd+1}, s{ptr+1}, 0")
        a(f"s_and_b32 s{srd+1}, s{srd+1}, 0xffff")
        a(f"s_mov_b32 s{srd+2}, 0x{LIM:x}")
        a(f"s_mov_b32 s{srd+3}, 0x20000")
    def setup_consts():
        Z = 0x0c0c0c0c
        lo_to_lo, lo_to_hi = 0x0c0c0100, 0x01000c0c
        hi_to_lo, hi_to_hi = 0x0c0c0302, 0x03020c0c
        a(f"v_and_b32 {v(vT+1)}, 3, {v(vLANE)}")
        for k in range(4): a(f"v_mov_b32 {v(vSEL+k)}, 0x{Z:08x}")
        for jp, (sr, val_lo, val_hi) in enumerate(((0, lo_to_lo, hi_to_lo), (0, lo_to_hi, hi_to_hi), (1, lo_to_lo, hi_to_lo), (1, lo_to_hi, hi_to_hi))):
            a(f"v_cmp_eq_u32 vcc, {jp}, {v(vT+1)}")
            a(f"v_mov_b32 {v(vT+2)}, 0x{val_lo:08x}")
            a(f"v_mov_b32 {v(vT+3)}, 0x{val_hi:08x}")
            a(f"v_cndmask_b32 {v(vSEL+sr)}, {v(vSEL+sr)}, {v(vT+2)}, vcc")
            a(f"v_cndmask_b32 {v(vSEL+2+sr)}, {v(vSEL+2+sr)}, {v(vT+3)}, vcc")
        for k in range(8): a(f"v_mov_b32 {v(vO+k)}, 0")
        a(f"v_mov_b32 {v(vNM)}, 0")
        a(f"v_mov_b32 {v(vL)}, 0")
        a(f"s_mov_b32 s{sTHR}, 0xff800000")
        a(f"s_mov_b32 s{sFLOOR}, 0xff7fffff")
        a(f"s_mov_b32 s{sSCALE}, 0x{f2u(SCALE):08x}")
        a(f"s_mov_b32 s{sEXH}, 0")
        a(f"s_mov_b32 s{sN}, {R}")
        a(f"s_add_u32 s{sT1}, s{sBH}, s{sA}")
        a(f"s_and_b32 s{sT1}, s{sT1}, 3")
        if G.dyn:
            a(f"s_lshl_b32 s{sDYNB}, s{sT1}, 22")
            a(f"s_add_u32 s{sDYNB}, s{sDYNB}, {NS*TSTR}")
        else:
            a(f"s_add_u32 s{sDYNB}, s{sA}, 1")
            a(f"s_lshl_b32 s{sDYNB}, s{sDYNB}, 21")
        a(f"s_lshl_b32 s{sT2}, s{sG}, 2")
        a(f"s_add_u32 s{sT2}, s{sT2}, s{sT1}")
        a(f"s_mul_i32 s{sCNTOFF}, s{sT2}, {CNT_STRIDE}")
        a(f"s_add_u32 s{sCNTOFF}, s{sCNTOFF}, {WS_CNT}")
        for k in range(4): a(f"s_mov_b32 s{sTK+k}, 0")
        a(f"v_bfe_u32 {v(vT+8)}, {v(vLANE)}, 2, 2")
        a(f"v_lshlrev_b32 {v(vT+8)}, 8, {v(vT+8)}")
        a(f"v_lshrrev_b32 {v(vT+1)}, 4, {v(vLANE)}")
        a(f"v_lshl_add_u32 {v(vT+8)}, {v(vT+1)}, 4, {v(vT+8)}")
    for n in range(R):
        if n >= A:
            wait_vm(("K", n - A))
        issue_tile(n, f"s{sSTAT}", n)
        a(f"s_add_u32 s{sSTAT}, s{sSTAT}, {TSTR}")
        if n == A - 1:
            setup_consts()
        if n == 3:
            tail_addr()
            a("s_waitcnt lgkmcnt(0)")
            tags()
        if G.stamps and not G.tstamps and n in (1, 3, 5, 7, 9, 11): a(f"s_memrealtime s[{4+2*(n//2)}:{5+2*(n//2)}]")
    a("s_barrier")
    for t in range(4):
        a(f"ds_read_b128 {vr(vQ+4*t,4)}, {v(vT+8)} offset:{LDS_Q + 64*t}")
    if G.stamps: a(f"s_memrealtime {sp(sTS0+2)}")
    a("s_waitcnt lgkmcnt(0)")

    rare_id = [0]
    def compute_qk(slot):
        for t in range(4):
            cc = "0" if t == 0 else vr(vS, 4)
            a(f"v_mfma_f32_16x16x32_bf16 {vr(vS,4)}, {slot_reg(slot,4*t,4)}, {vr(vQ+4*t,4)}, {cc}")
    def softmax():
        rid = rare_id[0]; rare_id[0] += 1
        p01, p23 = vT, vT+1
        b = vT + 2
        a(f"v_cvt_pk_bf16_f32 {v(p01)}, {v(vS)}, {v(vS+1)}")
        a(f"v_cvt_pk_bf16_f32 {v(p23)}, {v(vS+2)}, {v(vS+3)}")
        a(f"v_lshlrev_b32 {v(b)}, 16, {v(p01)}")
        a(f"v_and_b32 {v(b+1)}, 0xffff0000, {v(p01)}")
        a(f"v_lshlrev_b32 {v(b+2)}, 16, {v(p23)}")
        a(f"v_and_b32 {v(b+3)}, 0xffff0000, {v(p23)}")
        for k in range(4): a(f"v_mul_f32 {v(b+k)}, s{sSCALE}, {v(b+k)}")
        a(f"v_cvt_pk_bf16_f32 {v(p01)}, {v(b)}, {v(b+1)}")
        a(f"v_cvt_pk_bf16_f32 {v(p23)}, {v(b+2)}, {v(b+3)}")
        a(f"v_lshlrev_b32 {v(b)}, 16, {v(p01)}")
        a(f"v_and_b32 {v(b+1)}, 0xffff0000, {v(p01)}")
        a(f"v_lshlrev_b32 {v(b+2)}, 16, {v(p23)}")
        a(f"v_and_b32 {v(b+3)}, 0xffff0000, {v(p23)}")
        for k in range(4): a(f"v_fma_f32 {v(b+k)}, {v(b+k)}, s{sLOG2E}, {v(vNM)}")
        mx = vT + 6
        a(f"v_max3_f32 {v(mx)}, {v(b)}, {v(b+1)}, {v(b+2)}")
        a(f"v_max_f32 {v(mx)}, {v(mx)}, {v(b+3)}")
        a(f"v_cmp_lt_f32 vcc, s{sTHR}, {v(mx)}")
        a(f"s_cbranch_vccz L_back{rid}")
        a(f"s_call_b64 {sp(sPC)}, L_rare")
        lab(f"L_back{rid}")
        for k in range(4): a(f"v_exp_f32 {v(b+k)}, {v(b+k)}")
        nop(1)
        a(f"v_cvt_pk_bf16_f32 {v(p01)}, {v(b)}, {v(b+1)}")
        a(f"v_cvt_pk_bf16_f32 {v(p23)}, {v(b+2)}, {v(b+3)}")
        a(f"v_add_f32 {v(b)}, {v(b)}, {v(b+1)}")
        a(f"v_add_f32 {v(b+2)}, {v(b+2)}, {v(b+3)}")
        for k in range(4): a(f"v_perm_b32 {v(vX+k)}, {v(p01)}, {v(p01)}, {v(vSEL+k)}")
        for k in range(4): a(f"v_perm_b32 {v(vX+4+k)}, {v(p23)}, {v(p23)}, {v(vSEL+k)}")
        a(f"v_add_f32 {v(b)}, {v(b)}, {v(b+2)}")
        a(f"v_add_f32 {v(vL)}, {v(vL)}, {v(b)}")
    def compute_pv(slot):
        for u in range(4):
            a(f"v_mfma_f32_16x16x16_bf16 {vr(vO,4)}, {vr(vX+2*u,2)}, {slot_reg(slot,16+4*u,2)}, {vr(vO,4)}")
            a(f"v_mfma_f32_16x16x16_bf16 {vr(vO+4,4)}, {vr(vX+2*u,2)}, {slot_reg(slot,16+4*u+2,2)}, {vr(vO+4,4)}")

    k_iss = 0
    for n in range(R + E - A):
        slot = n if n < R else n - R
        c(f"catch-up step {n}")
        wait_vm(("K", n))
        compute_qk(slot)
        nop(8)
        softmax()
        wait_vm(("V", n))
        compute_pv(slot)
        if n in G.cu_issue:
            assert k_iss <= n
            next_tile(k_iss, R + k_iss, track=True)
            k_iss += 1
    assert k_iss == E
    lab("L_loop")
    for k in range(4):
        s = (E - A + k) % 4
        c(f"steady step slot {s}")
        ns = (s + A) % 4
        a(f"s_cmp_ge_u32 s{sOFF+s}, 0x{LIM:x}")
        a("s_cbranch_scc1 L_done")
        a(f"s_waitcnt vmcnt({8*A-4})")
        compute_qk(s)
        next_tile(ns)
        softmax()
        a(f"s_waitcnt vmcnt({8*A})")
        compute_pv(s)
    a("s_branch L_loop")

    lab("L_rare")
    b = vT + 2; mx = vT + 6; t = vT + 7; f = vT + 8
    allred_rows("v_max_f32", mx, t)
    a(f"v_max_f32 {v(mx)}, s{sFLOOR}, {v(mx)}")
    for k in range(4): a(f"v_sub_f32 {v(b+k)}, {v(b+k)}, {v(mx)}")
    a(f"v_sub_f32 {v(vNM)}, {v(vNM)}, {v(mx)}")
    a(f"v_max_f32 {v(t)}, 0, {v(mx)}")
    a(f"v_exp_f32 {v(t)}, -{v(t)}")
    nop(1)
    a(f"v_mul_f32 {v(vL)}, {v(vL)}, {v(t)}")
    nop(1)
    for h in range(4):
        a(f"v_mov_b32_dpp {v(f)}, {v(t)} row_newbcast:{4*h} row_mask:0x{1<<h:x} bank_mask:0xf")
    for k in range(8): a(f"v_mul_f32 {v(vO+k)}, {v(vO+k)}, {v(f)}")
    a(f"s_mov_b32 s{sTHR}, 0x{f2u(G.T):08x}")
    a(f"s_mov_b32 s{sFLOOR}, 0")
    a(f"s_setpc_b64 {sp(sPC)}")

    def stageA():
        a(f"v_cmp_ne_u32 vcc, 0, {v(vA+6)}")
        a("s_waitcnt lgkmcnt(0)")
        tstamp(0)
        a("s_barrier")
        if G.tstamps:
            tstamp(1); a("s_waitcnt lgkmcnt(0)")
        a(f"ds_read_b64 {vr(vQ+2,2)}, {v(vA+3)} offset:{LDS_ML+8}")
        a(f"ds_read_b128 {vr(vQ+4,4)}, {v(vA+3)} offset:{LDS_ML+16}")
        OO = vT + 4
        for w in range(1, 4):
            a(f"ds_read_b64 {vr(OO+2*w,2)}, {v(vA+4)} offset:{LDS_O + 2048*w}")
        RES = vQ + 12
        a(f"v_mov_b32 {v(RES+3)}, s{sTAGH}")
        a("s_waitcnt lgkmcnt(3)")
        nmM = vQ + 8
        a(f"v_min3_f32 {v(nmM)}, {v(vQ+2)}, {v(vQ+4)}, {v(vQ+6)}")
        for k in range(1, 4): a(f"v_sub_f32 {v(vQ+2*k)}, {v(nmM)}, {v(vQ+2*k)}")
        for k in range(1, 4): a(f"v_exp_f32 {v(vQ+2*k)}, {v(vQ+2*k)}")
        nop(1)
        a(f"v_mul_f32 {v(nmM+1)}, {v(vQ+2)}, {v(vQ+3)}")
        for k in range(2, 4): a(f"v_fmac_f32 {v(nmM+1)}, {v(vQ+2*k)}, {v(vQ+2*k+1)}")
        a(f"v_cndmask_b32 {v(nmM)}, {v(nmM)}, {v(nmM+1)}, vcc")
        a(f"v_bfe_u32 {v(nmM)}, {v(nmM)}, {v(vA+5)}, 16")
        a(f"v_or_b32 {v(RES+2)}, s{sTG16}, {v(nmM)}")
        a("s_waitcnt lgkmcnt(0)")
        for e in range(2): a(f"v_mul_f32 {v(RES+e)}, {v(vQ+2)}, {v(OO+2+e)}")
        for k in range(2, 4):
            for e in range(2): a(f"v_fmac_f32 {v(RES+e)}, {v(vQ+2*k)}, {v(OO+2*k+e)}")
        a(f"global_store_dwordx4 {v(vA)}, {vr(RES,4)}, {sp(sWS)} {G.stf}")
        tstamp(2)
    lab("L_done")
    if G.stamps: a(f"s_memrealtime s[100:101]")
    allred_rows("v_add_f32", vL, vT)
    a(f"ds_write_b128 {v(vA+1)}, {vr(vO,4)} offset:{LDS_O}")
    a(f"ds_write_b128 {v(vA+1)}, {vr(vO+4,4)} offset:{LDS_O+16}")
    a(f"ds_write_b64 {v(vA+2)}, {vr(vNM,2)} offset:{LDS_ML}")
    stageA()
    a("s_branch L_fin")
    lab("L_tail")
    stageA()
    PB = vW
    a(f"s_mov_b32 s{sT3}, 0")
    lab("L_pollB")
    for k in range(4):
        a(f"global_load_dwordx4 {vr(PB+4*k,4)}, {v(vA+8)}, {sp(sWS)} offset:{1024*k} {G.ldf}")
    a("s_waitcnt vmcnt(0)")
    a(f"v_xor_b32 {v(vT)}, s{sTG16}, {v(PB+2)}")
    a(f"v_xor_b32 {v(vT+1)}, s{sTG16}, {v(PB+6)}")
    a(f"v_xor_b32 {v(vT+2)}, s{sTG16}, {v(PB+10)}")
    a(f"v_xor_b32 {v(vT+3)}, s{sTG16}, {v(PB+14)}")
    a(f"v_or3_b32 {v(vT)}, {v(vT)}, {v(vT+1)}, {v(vT+2)}")
    a(f"v_or_b32 {v(vT)}, {v(vT)}, {v(vT+3)}")
    a(f"v_lshrrev_b32 {v(vT)}, 16, {v(vT)}")
    a(f"v_xor_b32 {v(vT+1)}, s{sTAGH}, {v(PB+3)}")
    a(f"v_xor_b32 {v(vT+2)}, s{sTAGH}, {v(PB+7)}")
    a(f"v_or3_b32 {v(vT)}, {v(vT)}, {v(vT+1)}, {v(vT+2)}")
    a(f"v_xor_b32 {v(vT+1)}, s{sTAGH}, {v(PB+11)}")
    a(f"v_xor_b32 {v(vT+2)}, s{sTAGH}, {v(PB+15)}")
    a(f"v_or3_b32 {v(vT)}, {v(vT)}, {v(vT+1)}, {v(vT+2)}")
    a(f"v_cmp_ne_u32 vcc, 0, {v(vT)}")
    a("s_and_b64 exec, exec, vcc")
    a("s_cbranch_execz L_pollB_done")
    poll_tail("L_pollB")
    lab("L_pollB_done")
    tstamp(3)
    a("s_mov_b64 exec, -1")
    NMr, Lr = vT + 4, vT + 8
    TA, TB = vT + 12, vT + 16
    for k in range(4):
        a(f"v_mov_b32_dpp {v(TA+k)}, {v(PB+4*k+2)} quad_perm:[0,0,0,0] {DPP}")
        a(f"v_mov_b32_dpp {v(TB+k)}, {v(PB+4*k+2)} quad_perm:[1,1,1,1] {DPP}")
    for k in range(4):
        a(f"v_perm_b32 {v(NMr+k)}, {v(TB+k)}, {v(TA+k)}, s{sT0}")
    M = vT
    a(f"v_min3_f32 {v(M)}, {v(NMr)}, {v(NMr+1)}, {v(NMr+2)}")
    a(f"v_min_f32 {v(M)}, {v(M)}, {v(NMr+3)}")
    a(f"v_mov_b32_dpp {v(TA)}, {v(PB+2)} quad_perm:[2,2,2,2] {DPP}")
    a(f"v_mov_b32_dpp {v(TB)}, {v(PB+2)} quad_perm:[3,3,3,3] {DPP}")
    a(f"v_min_f32_dpp {v(M)}, {v(M)}, {v(M)} row_ror:8 {DPP}")
    a(f"v_mov_b32 {v(vT+1)}, {v(M)}")
    a(f"v_mov_b32_dpp {v(TA+1)}, {v(PB+6)} quad_perm:[2,2,2,2] {DPP}")
    a(f"v_mov_b32_dpp {v(TB+1)}, {v(PB+6)} quad_perm:[3,3,3,3] {DPP}")
    a(f"v_permlane16_swap_b32 {v(M)}, {v(vT+1)}")
    a(f"v_mov_b32_dpp {v(TA+2)}, {v(PB+10)} quad_perm:[2,2,2,2] {DPP}")
    a(f"v_min_f32 {v(M)}, {v(M)}, {v(vT+1)}")
    a(f"v_mov_b32 {v(vT+1)}, {v(M)}")
    a(f"v_mov_b32_dpp {v(TB+2)}, {v(PB+10)} quad_perm:[3,3,3,3] {DPP}")
    a(f"v_mov_b32_dpp {v(TA+3)}, {v(PB+14)} quad_perm:[2,2,2,2] {DPP}")
    a(f"v_permlane32_swap_b32 {v(M)}, {v(vT+1)}")
    a(f"v_mov_b32_dpp {v(TB+3)}, {v(PB+14)} quad_perm:[3,3,3,3] {DPP}")
    a(f"v_min_f32 {v(M)}, {v(M)}, {v(vT+1)}")
    for k in range(4): a(f"v_sub_f32 {v(NMr+k)}, {v(M)}, {v(NMr+k)}")
    for k in range(4): a(f"v_exp_f32 {v(NMr+k)}, {v(NMr+k)}")
    for k in range(4): a(f"v_perm_b32 {v(Lr+k)}, {v(TB+k)}, {v(TA+k)}, s{sT0}")
    o0, o1, la, lb = vT, vT+1, vT+2, vT+3
    a(f"v_mul_f32 {v(o0)}, {v(NMr)}, {v(PB)}")
    a(f"v_mul_f32 {v(o1)}, {v(NMr)}, {v(PB+1)}")
    a(f"v_mul_f32 {v(la)}, {v(NMr)}, {v(Lr)}")
    for k in range(1, 4):
        a(f"v_fmac_f32 {v(o0)}, {v(NMr+k)}, {v(PB+4*k)}")
        a(f"v_fmac_f32 {v(o1)}, {v(NMr+k)}, {v(PB+4*k+1)}")
        a(f"v_fmac_f32 {v(la)}, {v(NMr+k)}, {v(Lr+k)}")
    a(f"v_mov_b32 {v(lb)}, {v(la)}")
    a(f"v_permlane32_swap_b32 {v(o0)}, {v(o1)}")
    nop(1)
    a(f"v_permlane32_swap_b32 {v(la)}, {v(lb)}")
    a(f"v_add_f32 {v(o0)}, {v(o0)}, {v(o1)}")
    a(f"v_add_f32 {v(la)}, {v(la)}, {v(lb)}")
    a(f"v_mov_b32 {v(o1)}, {v(o0)}")
    a(f"v_mov_b32 {v(lb)}, {v(la)}")
    nop(1)
    a(f"v_permlane16_swap_b32 {v(o0)}, {v(o1)}")
    a(f"v_permlane16_swap_b32 {v(la)}, {v(lb)}")
    a(f"v_add_f32 {v(o0)}, {v(o0)}, {v(o1)}")
    a(f"v_add_f32 {v(la)}, {v(la)}, {v(lb)}")
    nop(1)
    a(f"v_add_f32_dpp {v(o0)}, {v(o0)}, {v(o0)} row_ror:8 {DPP}")
    a(f"v_add_f32_dpp {v(la)}, {v(la)}, {v(la)} row_ror:8 {DPP}")
    a(f"v_rcp_f32 {v(lb)}, {v(la)}")
    a(f"v_mov_b32_dpp {v(o0)}, {v(o0)} row_shl:1 row_mask:0xa bank_mask:0xf")
    a(f"v_fma_f32 {v(o1)}, -{v(la)}, {v(lb)}, 1.0")
    a(f"v_fma_f32 {v(lb)}, {v(o1)}, {v(lb)}, {v(lb)}")
    a(f"v_mul_f32 {v(o0)}, {v(o0)}, {v(lb)}")
    a(f"v_cvt_pk_bf16_f32 {v(o0)}, {v(o0)}, {v(o0)}")
    nop(2)
    AO = vQ
    DD = vW + 16
    for u in range(4):
        for r in range(4):
            a(f"v_and_b32_dpp {v(AO+4*u+r)}, {v(o0)}, {v(vMASK+r)} row_newbcast:{2*u} {DPP}")
    nop(1)
    for cb in range(4):
        for u in range(4):
            cc = "0" if u == 0 else vr(DD+4*cb, 4)
            a(f"v_mfma_f32_16x16x32_bf16 {vr(DD+4*cb,4)}, {vr(AO+4*u,4)}, {vr(vWO+16*cb+4*u,4)}, {cc}")
    for cb in range(4):
        d = DD + 4*cb
        if cb == 3: nop(2)
        a(f"v_permlane32_swap_b32 {v(d)}, {v(d+2)}")
        a(f"v_permlane32_swap_b32 {v(d+1)}, {v(d+3)}")
        a(f"v_mov_b32 {v(d+2)}, s{sTAGL}")
        a(f"v_mov_b32 {v(d+3)}, s{sTAGH}")
        a(f"global_store_dwordx4 {v(vA+9)}, {vr(d,4)}, {sp(sWS)} offset:{1024*cb} {G.stf}")
    tstamp(4)
    PC = vW
    a(f"s_mov_b32 s{sT3}, 0")
    lab("L_pollC")
    for k in range(4):
        a(f"global_load_dwordx4 {vr(PC+4*k,4)}, {v(vPA+k)}, {sp(sWS)} {G.ldf}")
    a("s_waitcnt vmcnt(0)")
    a(f"v_xor_b32 {v(vT)}, s{sTAGL}, {v(PC+2)}")
    a(f"v_xor_b32 {v(vT+1)}, s{sTAGH}, {v(PC+3)}")
    for k in range(1, 4):
        a(f"v_xor_b32 {v(vT+2)}, s{sTAGL}, {v(PC+4*k+2)}")
        a(f"v_xor_b32 {v(vT+3)}, s{sTAGH}, {v(PC+4*k+3)}")
        a(f"v_or3_b32 {v(vT)}, {v(vT)}, {v(vT+2)}, {v(vT+3)}")
    a(f"v_or_b32 {v(vT)}, {v(vT)}, {v(vT+1)}")
    a(f"v_cmp_ne_u32 vcc, 0, {v(vT)}")
    a("s_and_b64 exec, exec, vcc")
    a("s_cbranch_execz L_pollC_done")
    poll_tail("L_pollC")
    lab("L_pollC_done")
    tstamp(5)
    a("s_mov_b64 exec, -1")
    a(f"v_add_f32 {v(PC)}, {v(PC)}, {v(PC+4)}")
    a(f"v_add_f32 {v(PC+1)}, {v(PC+1)}, {v(PC+5)}")
    a(f"v_add_f32 {v(PC+8)}, {v(PC+8)}, {v(PC+12)}")
    a(f"v_add_f32 {v(PC+9)}, {v(PC+9)}, {v(PC+13)}")
    a(f"v_add_f32 {v(PC)}, {v(PC)}, {v(PC+8)}")
    a(f"v_add_f32 {v(PC+1)}, {v(PC+1)}, {v(PC+9)}")
    nop(2)
    a(f"v_permlane32_swap_b32 {v(PC)}, {v(PC+1)}")
    nop(1)
    a(f"v_add_f32 {v(PC)}, {v(PC)}, {v(PC+1)}")
    allred16("v_add_f32", PC)
    a(f"v_mov_b32 {v(vT)}, {v(PC)}")
    nop(2)
    a(f"v_permlane16_swap_b32 {v(PC)}, {v(vT)}")
    nop(1)
    a(f"v_add_f32 {v(PC)}, {v(PC)}, {v(vT)}")
    a(f"v_mov_b32 {v(PC+1)}, {v(PC)}")
    nop(2)
    a(f"v_permlane32_swap_b32 {v(PC)}, {v(PC+1)}")
    nop(1)
    rbf2(PC, PC+1)
    a(f"v_mul_f32 {v(PC)}, {v(PC)}, {v(g0)}")
    a(f"v_mul_f32 {v(PC+1)}, {v(PC+1)}, {v(g1)}")
    rbf2(PC, PC+1)
    a(f"v_add_f32 {v(PC)}, {v(PC)}, {v(vA+11)}")
    a(f"v_add_f32 {v(PC+1)}, {v(PC+1)}, {v(vA+12)}")
    a(f"v_cvt_pk_bf16_f32 {v(PC)}, {v(PC)}, {v(PC+1)}")
    a("s_mov_b64 exec, 1")
    a(f"global_store_dword {v(vA+10)}, {v(PC)}, {sp(sOUT)}")
    a("s_cmp_lg_u32 s2, 0")
    a("s_cbranch_scc1 L_noep")
    a(f"v_mov_b32 {v(vT)}, {WS_EP}")
    a(f"v_mov_b32 {v(vT+2)}, s{sTAGL}")
    a(f"v_mov_b32 {v(vT+3)}, s{sTAGH}")
    a(f"global_store_dwordx2 {v(vT)}, {vr(vT+2,2)}, {sp(sWS)} sc1")
    lab("L_noep")
    a("s_mov_b64 exec, -1")
    lab("L_fin")
    if G.stamps:
        a(f"s_memrealtime s[82:83]")
        a("s_waitcnt lgkmcnt(0)")
        a(f"s_lshl_b32 s{sT2}, s2, 2")
        a(f"s_add_u32 s{sT2}, s{sT2}, s{sWV}")
        a(f"s_lshl_b32 s{sT2}, s{sT2}, 6")
        a(f"s_add_u32 s{sT2}, s{sT2}, {WS_TS}")
        a(f"v_mov_b32 v2, s{sT2}")
        a(f"v_mov_b32 v4, s{sTS0}")
        a(f"v_mov_b32 v5, s{sTS0+2}")
        a(f"v_mov_b32 v6, s100")
        a(f"v_mov_b32 v7, s82")
        a(f"v_mov_b32 v8, s{sN}")
        a(f"s_getreg_b32 s{sT2}, hwreg(HW_REG_XCC_ID)")
        a(f"v_mov_b32 v9, s{sT2}")
        a("s_mov_b64 exec, 1")
        a(f"global_store_dwordx4 v2, v[4:7], {sp(sWS)}")
        a(f"global_store_dwordx2 v2, v[8:9], {sp(sWS)} offset:16")
        for k in range(6): a(f"v_mov_b32 v{10+k}, s{4+2*k}")
        a(f"global_store_dwordx4 v2, v[10:13], {sp(sWS)} offset:32")
        a(f"global_store_dwordx2 v2, v[14:15], {sp(sWS)} offset:48")
    if G.dbgt:
        a("s_cmp_ge_u32 s2, 1")
        a("s_cbranch_scc1 L_end")
        a(f"s_memrealtime s[82:83]")
        a("s_waitcnt lgkmcnt(0)")
        a(f"s_sub_u32 s82, s82, s{sTS0}")
        a(f"s_sub_u32 s83, s{sTS0+2}, s{sTS0}")
        a(f"s_sub_u32 s84, s100, s{sTS0}")
        a(f"s_sub_u32 s85, s4, s{sTS0}")
        a(f"s_lshl_b32 s86, s{sWV}, 4")
        a("v_mov_b32 v2, s86")
        a("v_mov_b32 v4, s82"); a("v_mov_b32 v5, s83"); a("v_mov_b32 v6, s84"); a("v_mov_b32 v7, s85")
        a("s_mov_b64 exec, 1")
        a(f"global_store_dwordx4 v2, v[4:7], {sp(sDBG)}")
    lab("L_end")
    a("s_endpgm")
    tail = ['.section .rodata,"a"', ".p2align 6", f".amdhsa_kernel {KN}",
            f"  .amdhsa_next_free_vgpr {NV+256}", "  .amdhsa_next_free_sgpr 102", f"  .amdhsa_accum_offset {NV}",
            "  .amdhsa_group_segment_fixed_size 0", "  .amdhsa_kernarg_size 104", "  .amdhsa_user_sgpr_count 2",
            "  .amdhsa_user_sgpr_kernarg_segment_ptr 1", "  .amdhsa_system_sgpr_workgroup_id_x 1",
            "  .amdhsa_float_denorm_mode_32 3",
            ".end_amdhsa_kernel"]
    return "\n".join(hdr + G.L + tail) + "\n"

if __name__ == "__main__":
    import argparse, json
    ap = argparse.ArgumentParser()
    ap.add_argument("-o", default="k.s")
    ap.add_argument("kv", nargs="*")
    args = ap.parse_args()
    kw = {}
    for x in args.kv:
        k, val = x.split("=")
        kw[k] = json.loads(val)
    open(args.o, "w").write(build(**kw))
```

```python
import sys, struct, math

KN = "recurrent_scan__gqa_block_cached__mixer_token_mlp__decode_kernel"

def f2u(x):
    return struct.unpack("<I", struct.pack("<f", x))[0]

class Gen:
    def __init__(self, **kw):
        self.L = []
        self.vm = []
        self.__dict__.update(kw)
    def a(self, s): self.L.append("  " + s)
    def lab(self, s): self.L.append(s + ":")
    def c(self, s): self.L.append("  ; " + s)
    def vmem(self, s, tag=None):
        self.a(s); self.vm.append(tag)
    def wait_vm(self, tag):
        if tag not in self.vm: return
        idx = max(i for i, t in enumerate(self.vm) if t == tag)
        n = len(self.vm) - 1 - idx
        n = min(n, 63)
        self.a(f"s_waitcnt vmcnt({n})")
        self.vm = self.vm[len(self.vm)-n:] if n else []
    def nop(self, n):
        if n > 0: self.a(f"s_nop {n-1}")

WS_Q   = 0x40000
WS_EP  = 0x8000
WS_EPH = 0x300000
WS_CNT = 0x10000
CNT_STRIDE = 1280
CNT_BIAS = 0x10000
WS_P2  = 0x100000
WS_S2  = 0x200000
WS_TS  = 0x1000000
LDS_XN   = 0
LDS_Q    = 1024
LDS_ML   = 2048
LDS_O    = 2304
LDS_TG   = 2176
LDS_S    = 2304 + 8192
LDS_TOTAL = 2304 + 8192 + 2048
LOG2E = 1.4426950408889634
SCALE = 128 ** -0.5
LCG_A, LCG_C, LCG_C2 = 1664525, 1013904223, 2891336453
REG = 0x200000
LIM = 0x1000000

DEFAULTS = dict(A=2, R=8, NS=40, P=3, T=20.0, dyn=True, stamps=False, tstamps=False, poll_max=4000000,
                cu_issue=(0, 1, 5, 8), q_sleep=12, q_first=16, pretouch=0, stf='sc1', ldf='sc1', dbgt=False, hstart=8, nolight=True, apoll=0, ap_sleep=2, pb_first=10, pb_sleep=0, pc_first=24, pc_sleep=0)

def build(**kw):
    p = dict(DEFAULTS); p.update(kw)
    G = Gen(**p)
    a, lab, c, vmem, wait_vm, nop = G.a, G.lab, G.c, G.vmem, G.wait_vm, G.nop
    A, R, NS = G.A, G.R, G.NS
    E = len(G.cu_issue)
    assert A <= E <= 4 and R <= 8
    POLL_MAX = G.poll_max
    hdr = [f"; @launch grid=(256,1,1) block=(256,1,1) lds={LDS_TOTAL}",
           '.amdgcn_target "amdgcn-amd-amdhsa--gfx950"', ".text", f".globl {KN}", ".p2align 8",
           f".type {KN},@function", f"{KN}:"]
    sX, sK, sV, sWQ, sWO, sBX, sW1, sB1 = 16, 18, 20, 22, 24, 26, 28, 30
    sW2, sB2, sOUT, sDBG, sWS = 32, 34, 36, 38, 40
    sTAGL, sTAGH = 42, 43
    srdK, srdV = 44, 48
    sOFF = 52; sTK = 56; sDYNB = 60; sTG16 = 61
    sWV, sA, sB, sG, sI = 72, 73, 74, 75, 76
    sN, sSTAT, sEXH, sCNTOFF, sBH = 77, 78, 79, 80, 81
    sT0, sT1, sT2, sT3 = 82, 83, 84, 85
    sTHR, sFLOOR = 86, 87
    sXD = 88
    sC0 = 90
    sPC = 92
    sTS0 = 94
    sLOG2E, sSCALE = 98, 99
    def sp(r): return f"s[{r}:{r+1}]"
    def sq(r): return f"s[{r}:{r+3}]"
    vLANE = 1; vKOFF = 2; vVOFF = 3
    vQ = 4; vO = 20; vNM = 28; vL = 29; vSEL = 30; vS = 34; vX = 38
    vT = 46
    vA = 80
    vPA = 96
    vMASK = 100
    vW = 104
    vWO = 200
    vMSK = 216
    vG = 232
    NV = 236
    def v(r): return f"v{r}"
    def vr(r, n): return f"v[{r}:{r+n-1}]"
    def slot_reg(slot, off, n):
        if slot < 8:
            r = 32*slot + off
            return f"a[{r}:{r+n-1}]"
        r = vW + 32*(slot-8) + off
        return f"v[{r}:{r+n-1}]"
    def stamp(k):
        if G.stamps and not G.tstamps: a(f"s_memrealtime s[{4+2*k}:{5+2*k}]")
    def tstamp(k):
        if G.tstamps: a(f"s_memrealtime s[{4+2*k}:{5+2*k}]")
    DPP = "row_mask:0xf bank_mask:0xf"
    def allred16(op, r, steps=("quad_perm:[1,0,3,2]", "quad_perm:[2,3,0,1]", "row_half_mirror", "row_mirror")):
        for s in steps:
            nop(2)
            a(f"{op}_dpp {v(r)}, {v(r)}, {v(r)} {s} {DPP}")
    def allred_rows(op, r, t):
        a(f"v_mov_b32 {v(t)}, {v(r)}")
        nop(2)
        a(f"v_permlane16_swap_b32 {v(r)}, {v(t)}")
        nop(1)
        a(f"{op} {v(r)}, {v(r)}, {v(t)}")
        a(f"v_mov_b32 {v(t)}, {v(r)}")
        nop(2)
        a(f"v_permlane32_swap_b32 {v(r)}, {v(t)}")
        nop(1)
        a(f"{op} {v(r)}, {v(r)}, {v(t)}")
    def allred64(op, r, t):
        allred16(op, r); allred_rows(op, r, t)
    def rbf(r):
        a(f"v_cvt_pk_bf16_f32 {v(r)}, {v(r)}, {v(r)}")
        a(f"v_and_b32 {v(r)}, 0xffff0000, {v(r)}")
    def rbf2(r0, r1):
        a(f"v_cvt_pk_bf16_f32 {v(r1)}, {v(r0)}, {v(r1)}")
        a(f"v_lshlrev_b32 {v(r0)}, 16, {v(r1)}")
        a(f"v_and_b32 {v(r1)}, 0xffff0000, {v(r1)}")
    def poll_tail(label, sleep=0):
        if sleep: a(f"s_sleep {sleep}")
        a(f"s_add_u32 s{sT3}, s{sT3}, 1")
        a(f"s_cmp_lt_u32 s{sT3}, {POLL_MAX}")
        a(f"s_cbranch_scc1 {label}")
    def tags():
        a(f"s_mul_i32 s{sTAGL}, s{sTAGL}, {LCG_A}")
        a(f"s_add_u32 s{sTAGL}, s{sTAGL}, {LCG_C}")
        a(f"s_mul_i32 s{sTAGH}, s{sTAGH}, {LCG_A}")
        a(f"s_add_u32 s{sTAGH}, s{sTAGH}, {LCG_C2}")
        a(f"s_and_b32 s{sTG16}, s{sTAGL}, 0xffff0000")

    t0, t1, t2, t3 = vS, vS+1, vS+2, vS+3
    F = vX
    def unpack8(dst, src):
        for j in range(4):
            a(f"v_lshlrev_b32 {v(dst+2*j)}, 16, {v(src+j)}")
            a(f"v_and_b32 {v(dst+2*j+1)}, 0xffff0000, {v(src+j)}")
    def ln_stats(F):
        a(f"v_add_f32 {v(t0)}, {v(F)}, {v(F+1)}")
        a(f"v_add_f32 {v(t1)}, {v(F+2)}, {v(F+3)}")
        a(f"v_add_f32 {v(t2)}, {v(F+4)}, {v(F+5)}")
        a(f"v_add_f32 {v(t3)}, {v(F+6)}, {v(F+7)}")
        a(f"v_add_f32 {v(t0)}, {v(t0)}, {v(t1)}")
        a(f"v_add_f32 {v(t2)}, {v(t2)}, {v(t3)}")
        a(f"v_add_f32 {v(t0)}, {v(t0)}, {v(t2)}")
        allred64("v_add_f32", t0, t3)
        a(f"v_mul_f32 {v(t0)}, 0x3b000000, {v(t0)}")
        a(f"v_sub_f32 {v(t2)}, {v(F)}, {v(t0)}")
        a(f"v_mul_f32 {v(t1)}, {v(t2)}, {v(t2)}")
        for j in range(1, 8):
            a(f"v_sub_f32 {v(t2)}, {v(F+j)}, {v(t0)}")
            a(f"v_fmac_f32 {v(t1)}, {v(t2)}, {v(t2)}")
        allred64("v_add_f32", t1, t3)
        a(f"v_mul_f32 {v(t1)}, 0x3b000000, {v(t1)}")
        rbf2(t0, t1)
        a(f"v_add_f32 {v(t1)}, 0x{f2u(1e-5):08x}, {v(t1)}")
        rbf(t1)
        a(f"v_sqrt_f32 {v(t2)}, {v(t1)}")
        nop(1)
        a(f"v_rcp_f32 {v(t3)}, {v(t2)}")
        a(f"v_fma_f32 {v(vT)}, -{v(t2)}, {v(t2)}, {v(t1)}")
        a(f"v_mul_f32 {v(t3)}, 0.5, {v(t3)}")
        a(f"v_fma_f32 {v(t1)}, {v(vT)}, {v(t3)}, {v(t2)}")
        rbf(t1)
        a(f"v_rcp_f32 {v(t2)}, {v(t1)}")
        nop(1)
        a(f"v_fma_f32 {v(t3)}, -{v(t1)}, {v(t2)}, 1.0")
        a(f"v_fma_f32 {v(t2)}, {v(t3)}, {v(t2)}, {v(t2)}")
    def ln_apply2(r0, r1, tmp):
        a(f"v_sub_f32 {v(r0)}, {v(r0)}, {v(t0)}")
        a(f"v_sub_f32 {v(r1)}, {v(r1)}, {v(t0)}")
        rbf2(r0, r1)
        for r in (r0, r1):
            a(f"v_mul_f32 {v(tmp)}, {v(r)}, {v(t2)}")
            a(f"v_fma_f32 {v(r)}, -{v(tmp)}, {v(t1)}, {v(r)}")
            a(f"v_fma_f32 {v(r)}, {v(r)}, {v(t2)}, {v(tmp)}")
    def wo_issue(track=False):
        a(f"v_lshrrev_b32 {v(vT)}, 4, {v(vLANE)}")
        a(f"v_and_b32 {v(vT+1)}, 1, {v(vT)}")
        a(f"v_lshlrev_b32 {v(vT+1)}, 1, {v(vT+1)}")
        a(f"v_lshrrev_b32 {v(vT)}, 1, {v(vT)}")
        a(f"v_add_u32 {v(vT)}, {v(vT)}, {v(vT+1)}")
        a(f"v_lshlrev_b32 {v(vT)}, 10, {v(vT)}")
        a(f"v_and_b32 {v(vT+1)}, 15, {v(vLANE)}")
        a(f"v_lshl_add_u32 {v(vT)}, {v(vT+1)}, 4, {v(vT)}")
        a(f"s_lshl_b32 s{sT1}, s{sG}, 3")
        a(f"s_add_u32 s{sT1}, s{sT1}, s{sA}")
        a(f"s_lshl_b32 s{sT1}, s{sT1}, 2")
        a(f"s_add_u32 s{sT1}, s{sT1}, s{sWV}")
        a(f"s_lshl_b32 s{sT2}, s{sT1}, 12")
        a(f"s_add_u32 s{sT2}, s{sT2}, {WS_P2}")
        a(f"v_add_u32 {v(vA+8)}, s{sT2}, {v(vVOFF)}")
        a(f"s_lshl_b32 s{sT1}, s{sT1}, 14")
        a(f"s_lshl_b32 s{sT2}, s{sBH}, 8")
        a(f"s_add_u32 s{sT1}, s{sT1}, s{sT2}")
        a(f"v_add_u32 {v(vT+11)}, s{sT1}, {v(vT)}")
        a(f"v_add_u32 {v(vT+12)}, 0x1000, {v(vT+11)}")
        a(f"v_add_u32 {v(vT+13)}, 0x2000, {v(vT+11)}")
        a(f"v_add_u32 {v(vT+14)}, 0x3000, {v(vT+11)}")
        for u, r in enumerate((vT+11, vT+12, vT+13, vT+14)):
            ss = f"global_load_dwordx4 {vr(vWO+4*u,4)}, {v(r)}, {sp(sWO)} nt"
            vmem(ss, "wo") if track else a(ss)
        a(f"v_and_b32 {v(vT)}, 15, {v(vLANE)}")
        a(f"v_and_b32 {v(vT+1)}, 1, {v(vLANE)}")
        a(f"v_cmp_eq_u32 vcc, 1, {v(vT+1)}")
        a(f"v_mov_b32 {v(vT+2)}, 0xffff")
        a(f"v_mov_b32 {v(vT+3)}, 0xffff0000")
        a(f"v_cndmask_b32 {v(vT+2)}, {v(vT+2)}, {v(vT+3)}, vcc")
        a(f"v_lshrrev_b32 {v(vT+1)}, 1, {v(vT)}")
        for r in range(4):
            a(f"v_cmp_eq_u32 vcc, {r}, {v(vT+1)}")
            nop(2)
            a(f"v_cndmask_b32 {v(vMSK+r)}, 0, {v(vT+2)}, vcc")
        a(f"s_lshl_b32 s{sT1}, s{sWV}, 9")
        a(f"v_lshl_add_u32 {v(vT)}, {v(vT)}, 5, s{sT1}")
        a(f"v_bfe_u32 {v(vT+1)}, {v(vLANE)}, 4, 1")
        a(f"v_lshl_add_u32 {v(vA+7)}, {v(vT+1)}, 4, {v(vT)}")
    def tail_addr():
        a(f"s_lshl_b32 s{sT0}, s{sG}, 2")
        a(f"s_add_u32 s{sT0}, s{sT0}, s{sWV}")
        a(f"s_lshl_b32 s{sT1}, s{sT0}, 15")
        a(f"s_lshl_b32 s{sT2}, s{sI}, 7")
        a(f"s_add_u32 s{sT1}, s{sT1}, s{sT2}")
        a(f"s_add_u32 s{sT1}, s{sT1}, {WS_P2}")
        a(f"v_lshrrev_b32 {v(vT)}, 3, {v(vLANE)}")
        a(f"v_lshlrev_b32 {v(vT)}, 12, {v(vT)}")
        a(f"v_and_b32 {v(vT+1)}, 7, {v(vLANE)}")
        a(f"v_lshl_add_u32 {v(vT)}, {v(vT+1)}, 4, {v(vT)}")
        a(f"v_add_u32 {v(vA)}, s{sT1}, {v(vT)}")
        a(f"s_lshl_b32 s{sT1}, s{sWV}, 11")
        a(f"v_lshl_add_u32 {v(vA+1)}, {v(vLANE)}, 5, s{sT1}")
        a(f"v_bfe_u32 {v(vT+1)}, {v(vLANE)}, 2, 2")
        a(f"s_lshl_b32 s{sT1}, s{sWV}, 3")
        a(f"v_lshl_add_u32 {v(vA+2)}, {v(vT+1)}, 5, s{sT1}")
        a(f"s_lshl_b32 s{sT1}, s{sWV}, 5")
        a(f"v_mov_b32 {v(vA+3)}, s{sT1}")
        a(f"s_lshl_b32 s{sT1}, s{sWV}, 9")
        a(f"v_lshl_add_u32 {v(vA+4)}, {v(vLANE)}, 3, s{sT1}")
        a(f"v_and_b32 {v(vT)}, 1, {v(vLANE)}")
        a(f"v_lshlrev_b32 {v(vA+5)}, 4, {v(vT)}")
        a(f"v_and_b32 {v(vA+6)}, 2, {v(vLANE)}")
    def issue_tile(slot, soff, tag=None, track=True):
        for t in range(4):
            s = f"buffer_load_dwordx4 {slot_reg(slot,4*t,4)}, {v(vKOFF)}, {sq(srdK)}, {soff} offen offset:{64*t} nt"
            vmem(s, ("K", tag)) if track else a(s)
        for u in range(4):
            s = f"buffer_load_dwordx4 {slot_reg(slot,16+4*u,4)}, {v(vVOFF)}, {sq(srdV)}, {soff} offen offset:{1024*u} nt"
            vmem(s, ("V", tag)) if track else a(s)
    TSTR = 12 * 4096
    NDYN = 2 * (512 - NS * 12)
    uid = [0]
    def next_tile(ns, tag=None, track=False):
        u = uid[0]; uid[0] += 1
        if G.dyn:
            a(f"s_cmp_lt_u32 s{sN}, {NS}")
            a(f"s_cbranch_scc1 L_st{u}")
            a(f"s_waitcnt lgkmcnt({G.P-1})")
            a(f"s_cmp_lg_u32 s{sTK+ns}, 1")
            a(f"s_cbranch_scc1 L_tk{u}")
            a("s_waitcnt lgkmcnt(0)")
            lab(f"L_tk{u}")
            a(f"s_and_b32 s{sT1}, s{sTK+ns}, 1")
            a(f"s_lshl_b32 s{sT1}, s{sT1}, 21")
            a(f"s_and_b32 s{sSTAT}, s{sTK+ns}, 0xfffe")
            a(f"s_lshl_b32 s{sSTAT}, s{sSTAT}, 11")
            a(f"s_add_u32 s{sSTAT}, s{sSTAT}, s{sT1}")
            a(f"s_add_u32 s{sSTAT}, s{sSTAT}, s{sDYNB}")
            a(f"s_cmp_ge_u32 s{sTK+ns}, {CNT_BIAS + NDYN}")
            a(f"s_cselect_b32 s{sEXH}, 0x{LIM:x}, s{sEXH}")
            a(f"s_max_u32 s{sSTAT}, s{sSTAT}, s{sEXH}")
            lab(f"L_st{u}")
            a(f"s_mov_b32 s{sOFF+ns}, s{sSTAT}")
            a(f"s_add_u32 s{sSTAT}, s{sSTAT}, {TSTR}")
            a(f"s_add_u32 s{sN}, s{sN}, 1")
            a(f"s_cmp_lg_u32 s{sEXH}, 0")
            a(f"s_cbranch_scc1 L_nq{u}")
            a(f"s_cmp_lt_u32 s{sN}, {NS - G.P + 1}")
            a(f"s_cbranch_scc1 L_nq{u}")
            a(f"s_mov_b32 s{sTK+(ns+G.P)%4}, 1")
            a(f"s_atomic_add s{sTK+(ns+G.P)%4}, {sp(sWS)}, s{sCNTOFF} glc")
            lab(f"L_nq{u}")
        else:
            a(f"s_cmp_ge_u32 s{sSTAT}, s{sDYNB}")
            a(f"s_cselect_b32 s{sOFF+ns}, 0x{LIM:x}, s{sSTAT}")
            a(f"s_add_u32 s{sSTAT}, s{sSTAT}, {TSTR}")
        issue_tile(ns, f"s{sOFF+ns}", tag, track)

    a("s_cmp_ge_u32 s2, 256")
    a("s_cbranch_scc1 L_end")
    if G.stamps: a(f"s_memrealtime {sp(sTS0)}")
    a("s_load_dwordx16 s[16:31], s[0:1], 0")
    a("s_load_dwordx8 s[32:39], s[0:1], 64")
    a("s_load_dwordx2 s[40:41], s[0:1], 96")
    a(f"v_and_b32 {v(vLANE)}, 63, v0")
    a(f"v_lshrrev_b32 {v(vT)}, 6, v0")
    a(f"s_and_b32 s{sA}, s2, 7")
    a(f"v_readfirstlane_b32 s{sWV}, {v(vT)}")
    a(f"s_lshr_b32 s{sB}, s2, 3")
    a(f"v_lshlrev_b32 {v(vVOFF)}, 4, {v(vLANE)}")
    a(f"s_and_b32 s{sG}, s{sB}, 7")
    a(f"s_lshr_b32 s{sBH}, s{sB}, 3")
    a(f"s_lshl_b32 s{sT0}, s{sBH}, 3")
    a(f"s_add_u32 s{sI}, s{sT0}, s{sA}")
    a(f"s_mov_b32 s{sLOG2E}, 0x{f2u(LOG2E):08x}")
    a(f"s_mov_b32 s{sN}, 0")
    a(f"s_cmp_lg_u32 s{sWV}, 0")
    a("s_cbranch_scc1 L_stream")
    a(f"v_lshrrev_b32 {v(vT)}, 3, {v(vLANE)}")
    a(f"v_lshlrev_b32 {v(vT)}, 17, {v(vT)}")
    a(f"v_and_b32 {v(vT+1)}, 7, {v(vLANE)}")
    a(f"v_lshl_add_u32 {v(vT)}, {v(vT+1)}, 4, {v(vT)}")
    a(f"s_lshl_b32 s{sT1}, s{sA}, 3")
    a(f"s_add_u32 s{sT3}, s{sT1}, s{sG}")
    a(f"s_lshl_b32 s{sT1}, s{sT3}, 7")
    a(f"s_lshl_b32 s{sT2}, s{sBH}, 20")
    a(f"s_add_u32 s{sT1}, s{sT1}, s{sT2}")
    a(f"v_add_u32 {v(vT+16)}, s{sT1}, {v(vT)}")
    a(f"v_add_u32 {v(vT+17)}, 0x2000, {v(vT+16)}")
    a(f"s_lshl_b32 s{sT1}, s{sA}, 2")
    a(f"s_and_b32 s{sT2}, s{sG}, 3")
    a(f"s_add_u32 s{sT1}, s{sT1}, s{sT2}")
    a(f"s_mul_i32 s{sT1}, s{sT1}, {CNT_STRIDE}")
    a(f"s_add_u32 s{sT1}, s{sT1}, {WS_CNT}")
    a(f"v_mov_b32 {v(vT+9)}, s{sT1}")
    a(f"v_mov_b32 {v(vT+10)}, 0x{CNT_BIAS:x}")
    a(f"v_and_b32 {v(vT+27)}, 1, {v(vLANE)}")
    a(f"v_mul_u32_u24 {v(vT+27)}, {WS_EPH - WS_EP}, {v(vT+27)}")
    a(f"v_add_u32 {v(vT+27)}, {WS_EP}, {v(vT+27)}")
    a("s_waitcnt lgkmcnt(0)")
    vmem(f"global_load_dwordx4 {vr(vW,4)}, {v(vVOFF)}, {sp(sX)}", "x")
    vmem(f"global_load_dword {v(vT+27)}, {v(vT+27)}, {sp(sWS)} sc1", "ep")
    W0 = vW + 4
    for j in range(8):
        vmem(f"global_load_dwordx4 {vr(W0+8*j,4)}, {v(vT+16)}, {sp(sWQ)} nt", ("wq", j))
        vmem(f"global_load_dwordx4 {vr(W0+8*j+4,4)}, {v(vT+17)}, {sp(sWQ)} nt", ("wq", j))
        if j < 7:
            a(f"v_add_u32 {v(vT+16)}, 0x4000, {v(vT+16)}")
            a(f"v_add_u32 {v(vT+17)}, 0x4000, {v(vT+17)}")
        if G.hstart and j == G.hstart - 1: a("s_barrier")
        if j == 3:
            a("s_mov_b64 exec, 1")
            vmem(f"global_store_dword {v(vT+9)}, {v(vT+10)}, {sp(sWS)} sc1", "clr")
            a("s_mov_b64 exec, -1")
    a(f"s_lshl_b32 s{sT1}, s{sA}, 2")
    a(f"s_add_u32 s{sT1}, s{sT1}, s{sBH}")
    a(f"s_lshl_b32 s{sT1}, s{sT1}, 3")
    a(f"s_add_u32 s{sT1}, s{sT1}, s{sG}")
    a(f"s_lshl_b32 s{sT1}, s{sT1}, 9")
    a(f"s_add_u32 s{sT1}, s{sT1}, {WS_Q}")
    a(f"v_and_b32 {v(vT)}, 7, {v(vLANE)}")
    a(f"v_lshrrev_b32 {v(vT+1)}, 4, {v(vLANE)}")
    a(f"v_lshl_add_u32 {v(vT)}, {v(vT)}, 2, {v(vT+1)}")
    a(f"v_lshl_add_u32 {v(vT+21)}, {v(vT)}, 4, s{sT1}")
    a(f"s_lshl_b32 s{sT2}, s{sG}, 14")
    a(f"s_add_u32 s{sT2}, s{sT2}, {WS_Q}")
    a(f"v_add_u32 {v(vT+22)}, s{sT2}, {v(vVOFF)}")
    a(f"v_add_u32 {v(vT+23)}, 0x1000, {v(vT+22)}")
    a(f"v_add_u32 {v(vT+24)}, 0x2000, {v(vT+22)}")
    a(f"v_add_u32 {v(vT+25)}, 0x3000, {v(vT+22)}")
    a(f"v_and_b32 {v(vT)}, 31, {v(vLANE)}")
    a(f"v_lshl_add_u32 {v(vT+26)}, {v(vT)}, 9, s{sT2}")
    a(f"s_lshl_b32 s{sC0}, s{sA}, 6")
    a(f"s_lshl_b32 s{sT1}, s{sB}, 1")
    a(f"s_add_u32 s{sC0}, s{sC0}, s{sT1}")
    wait_vm("x")
    stamp(0)
    unpack8(F, vW)
    ln_stats(F)
    for j in range(4):
        ln_apply2(F+2*j, F+2*j+1, vT)
        a(f"v_cvt_pk_bf16_f32 {v(vW+j)}, {v(F+2*j)}, {v(F+2*j+1)}")
    a(f"ds_write_b128 {v(vVOFF)}, {vr(vW,4)} offset:{LDS_XN}")
    a(f"s_mov_b32 s{sT1}, 0x05040100")
    a(f"s_mov_b32 s{sT2}, 0x07060302")
    XN = vX
    a(f"v_lshrrev_b32 {v(vT+1)}, 3, {v(vLANE)}")
    a(f"s_lshl_b32 s{sT0}, s{sBH}, 8")
    a(f"v_lshl_add_u32 {v(vT+1)}, {v(vT+1)}, 5, s{sT0}")
    a(f"ds_read_b128 {vr(XN,4)}, {v(vT+1)} offset:{LDS_XN}")
    a(f"ds_read_b128 {vr(XN+4,4)}, {v(vT+1)} offset:{LDS_XN+16}")
    ACC = vQ; PT = vQ + 8
    for j in range(8):
        wait_vm(("wq", j))
        if j == 0: stamp(1)
        ra, rb = W0 + 8*j, W0 + 8*j + 4
        for d in range(4):
            a(f"v_perm_b32 {v(PT+2*d)}, {v(rb+d)}, {v(ra+d)}, s{sT1}")
            a(f"v_perm_b32 {v(PT+2*d+1)}, {v(rb+d)}, {v(ra+d)}, s{sT2}")
        if j == 0: a("s_waitcnt lgkmcnt(0)")
        for cidx in range(8):
            cc = "0" if j == 0 else v(ACC+cidx)
            a(f"v_dot2_f32_bf16 {v(ACC+cidx)}, {v(PT+cidx)}, {v(XN+j)}, {cc}")
    a(f"v_readlane_b32 s{sTAGL}, {v(vT+27)}, 0")
    a(f"v_readlane_b32 s{sTAGH}, {v(vT+27)}, 1")
    tags()
    for cidx in range(4):
        a(f"v_permlane32_swap_b32 {v(ACC+cidx)}, {v(ACC+cidx+4)}")
    nop(1)
    for cidx in range(4):
        a(f"v_add_f32 {v(ACC+cidx)}, {v(ACC+cidx)}, {v(ACC+cidx+4)}")
    nop(1)
    for cidx in range(2):
        a(f"v_permlane16_swap_b32 {v(ACC+cidx)}, {v(ACC+cidx+2)}")
    nop(1)
    for cidx in range(2):
        a(f"v_add_f32 {v(ACC+cidx)}, {v(ACC+cidx)}, {v(ACC+cidx+2)}")
    a(f"v_mov_b32 {v(ACC+2)}, s{sTAGL}")
    a(f"v_add_f32_dpp {v(ACC)}, {v(ACC)}, {v(ACC)} row_ror:8 {DPP}")
    a(f"v_add_f32_dpp {v(ACC+1)}, {v(ACC+1)}, {v(ACC+1)} row_ror:8 {DPP}")
    a(f"v_mov_b32 {v(ACC+3)}, s{sTAGH}")
    stamp(2)
    a("s_mov_b32 exec_lo, 0x00ff00ff")
    a("s_mov_b32 exec_hi, 0x00ff00ff")
    a(f"global_store_dwordx4 {v(vT+21)}, {vr(ACC,4)}, {sp(sWS)} sc1")
    a("s_mov_b64 exec, -1")
    a(f"v_mov_b32 {v(vT)}, 0")
    a(f"ds_write_b64 {v(vT)}, {vr(ACC+2,2)} offset:{LDS_TG}")
    stamp(3)
    unpack8(F, vW)
    ln_stats(F)
    a(f"s_lshl_b32 s{sT2}, s{sC0}, 1")
    a(f"v_mov_b32 {v(vT+1)}, s{sT2}")
    a(f"ds_read_b32 {v(vT+4)}, {v(vT+1)} offset:{LDS_XN}")
    a(f"s_load_dword s{sXD}, {sp(sX)}, s{sT2}")
    h0, h1 = vG, vG+1
    a("s_waitcnt lgkmcnt(0)")
    a(f"v_lshlrev_b32 {v(h0)}, 16, {v(vT+4)}")
    a(f"v_and_b32 {v(h1)}, 0xffff0000, {v(vT+4)}")
    ln_apply2(h0, h1, vT)
    rbf2(h0, h1)
    QB = vW + 8
    a(f"s_mov_b32 s{sT3}, 0")
    if G.nolight:
        if G.q_first: a(f"s_sleep {G.q_first}")
        for ks in range(4):
            for m in range(4):
                a(f"global_load_dwordx4 {vr(QB+16*ks+4*m,4)}, {v(vT+22+ks)}, {sp(sWS)} offset:{1024*m} sc1")
        lab("L_pollQ")
        a("s_mov_b32 s62, 0")
        a("s_waitcnt vmcnt(0)")
        for k in range(16):
            a(f"v_xor_b32 {v(vT+1)}, s{sTAGL}, {v(QB+4*k+2)}")
            a(f"v_xor_b32 {v(vT+2)}, s{sTAGH}, {v(QB+4*k+3)}")
            a(f"v_or_b32 {v(vT)}, {v(vT+1)}, {v(vT+2)}")
            a(f"v_cmp_ne_u32 vcc, 0, {v(vT)}")
            a(f"s_cbranch_vccz L_pq{k}")
            a("s_mov_b64 exec, vcc")
            a(f"global_load_dwordx4 {vr(QB+4*k,4)}, {v(vT+22+k//4)}, {sp(sWS)} offset:{1024*(k%4)} sc1")
            a("s_mov_b64 exec, -1")
            a("s_mov_b32 s62, 1")
            lab(f"L_pq{k}")
        a("s_cmp_eq_u32 s62, 0")
        a("s_cbranch_scc1 L_pollQ_done")
        poll_tail("L_pollQ", G.q_sleep)
    else:
        a("s_mov_b64 exec, 0xffffffff")
        lab("L_pollL")
        a(f"global_load_dwordx2 {vr(QB,2)}, {v(vT+26)}, {sp(sWS)} offset:504 sc1")
        a("s_waitcnt vmcnt(0)")
        a(f"v_cmp_ne_u32 vcc, s{sTAGH}, {v(QB+1)}")
        a("s_and_b64 exec, exec, vcc")
        a("s_cbranch_execz L_pollL_done")
        poll_tail("L_pollL", G.q_sleep)
        lab("L_pollL_done")
        a("s_mov_b64 exec, -1")
        a(f"s_mov_b32 s{sT3}, 0")
        lab("L_pollQ")
        for ks in range(4):
            for m in range(4):
                a(f"global_load_dwordx4 {vr(QB+16*ks+4*m,4)}, {v(vT+22+ks)}, {sp(sWS)} offset:{1024*m} sc1")
        a("s_waitcnt vmcnt(0)")
        a(f"v_mov_b32 {v(vT)}, 0")
        for k in range(16):
            a(f"v_xor_b32 {v(vT+1)}, s{sTAGL}, {v(QB+4*k+2)}")
            a(f"v_xor_b32 {v(vT+2)}, s{sTAGH}, {v(QB+4*k+3)}")
            a(f"v_or3_b32 {v(vT)}, {v(vT)}, {v(vT+1)}, {v(vT+2)}")
        a(f"v_cmp_ne_u32 vcc, 0, {v(vT)}")
        a("s_and_b64 exec, exec, vcc")
        a("s_cbranch_execz L_pollQ_done")
        poll_tail("L_pollQ", G.q_sleep)
    lab("L_pollQ_done")
    a("s_mov_b64 exec, -1")
    stamp(4)
    a(f"v_lshlrev_b32 {v(vT)}, 2, {v(vLANE)}")
    for m in range(4):
        for e in range(2):
            a(f"v_add_f32 {v(QB+4*m+e)}, {v(QB+4*m+e)}, {v(QB+16+4*m+e)}")
            a(f"v_add_f32 {v(QB+32+4*m+e)}, {v(QB+32+4*m+e)}, {v(QB+48+4*m+e)}")
            a(f"v_add_f32 {v(QB+4*m+e)}, {v(QB+4*m+e)}, {v(QB+32+4*m+e)}")
        a(f"v_cvt_pk_bf16_f32 {v(QB+4*m)}, {v(QB+4*m)}, {v(QB+4*m+1)}")
        a(f"ds_write_b32 {v(vT)}, {v(QB+4*m)} offset:{LDS_Q + 256*m}")
    a("s_waitcnt lgkmcnt(0)")
    a("s_barrier")
    stamp(5)
    if G.stamps: a(f"s_memrealtime {sp(sTS0+2)}")
    wo_issue()
    a(f"v_mov_b32 {v(vT+20)}, 0")
    a(f"global_load_ushort {v(vMASK)}, {v(vT+20)}, {sp(sB2)}")
    y0, y1 = vX+2, vX+3
    a(f"v_mov_b32 {v(y0)}, 0")
    a(f"v_mov_b32 {v(y1)}, 0")
    K1 = 2.0 * math.sqrt(2.0 / math.pi) * LOG2E
    a(f"s_mov_b32 s{sT1}, 0x{f2u(-K1*0.044715):08x}")
    a(f"v_mov_b32 {v(vT+5)}, 0x{f2u(-K1):08x}")
    a(f"v_lshlrev_b32 {v(vT+6)}, 3, {v(vLANE)}")
    a(f"s_mov_b32 s{sT2}, 0")
    BW = vW
    wv1, bv1, wv2 = vX+4, vX+5, vX+6
    u0, u1, e0, e1 = vT, vT+1, vT+2, vT+3
    lab("L_bloop")
    a(f"global_load_dwordx2 {vr(BW,2)}, {v(vT+6)}, {sp(sW1)}")
    a(f"global_load_dwordx2 {vr(BW+2,2)}, {v(vT+6)}, {sp(sB1)}")
    a(f"global_load_dwordx2 {vr(BW+4,2)}, {v(vT+6)}, {sp(sW2)}")
    a(f"v_add_u32 {v(vT+6)}, 512, {v(vT+6)}")
    a("s_waitcnt vmcnt(0)")
    for j in range(4):
        d, hi = j // 2, j % 2
        for (dst, src) in ((wv1, BW+d), (bv1, BW+2+d), (wv2, BW+4+d)):
            if hi: a(f"v_and_b32 {v(dst)}, 0xffff0000, {v(src)}")
            else:  a(f"v_lshlrev_b32 {v(dst)}, 16, {v(src)}")
        a(f"v_mul_f32 {v(u0)}, {v(h0)}, {v(wv1)}")
        a(f"v_mul_f32 {v(u1)}, {v(h1)}, {v(wv1)}")
        rbf2(u0, u1)
        a(f"v_add_f32 {v(u0)}, {v(u0)}, {v(bv1)}")
        a(f"v_add_f32 {v(u1)}, {v(u1)}, {v(bv1)}")
        rbf2(u0, u1)
        a(f"v_mul_f32 {v(e0)}, {v(u0)}, {v(u0)}")
        a(f"v_mul_f32 {v(e1)}, {v(u1)}, {v(u1)}")
        a(f"v_fma_f32 {v(e0)}, {v(e0)}, s{sT1}, {v(vT+5)}")
        a(f"v_fma_f32 {v(e1)}, {v(e1)}, s{sT1}, {v(vT+5)}")
        a(f"v_mul_f32 {v(e0)}, {v(e0)}, {v(u0)}")
        a(f"v_mul_f32 {v(e1)}, {v(e1)}, {v(u1)}")
        a(f"v_exp_f32 {v(e0)}, {v(e0)}")
        a(f"v_exp_f32 {v(e1)}, {v(e1)}")
        nop(1)
        a(f"v_add_f32 {v(e0)}, 1.0, {v(e0)}")
        a(f"v_add_f32 {v(e1)}, 1.0, {v(e1)}")
        a(f"v_rcp_f32 {v(e0)}, {v(e0)}")
        a(f"v_rcp_f32 {v(e1)}, {v(e1)}")
        nop(1)
        a(f"v_mul_f32 {v(e0)}, {v(e0)}, {v(u0)}")
        a(f"v_mul_f32 {v(e1)}, {v(e1)}, {v(u1)}")
        rbf2(e0, e1)
        a(f"v_fmac_f32 {v(y0)}, {v(e0)}, {v(wv2)}")
        a(f"v_fmac_f32 {v(y1)}, {v(e1)}, {v(wv2)}")
    a(f"s_add_u32 s{sT2}, s{sT2}, 1")
    a(f"s_cmp_lt_u32 s{sT2}, 7")
    a("s_cbranch_scc1 L_bloop")
    allred64("v_add_f32", y0, vT)
    allred64("v_add_f32", y1, vT)
    a(f"v_lshlrev_b32 {v(vT+2)}, 16, {v(vMASK)}")
    rbf2(y0, y1)
    a(f"v_add_f32 {v(y0)}, {v(y0)}, {v(vT+2)}")
    a(f"v_add_f32 {v(y1)}, {v(y1)}, {v(vT+2)}")
    rbf2(y0, y1)
    g0, g1 = vG, vG+1
    a(f"v_mul_f32 {v(e0)}, s{sLOG2E}, {v(y0)}")
    a(f"v_mul_f32 {v(e1)}, s{sLOG2E}, {v(y1)}")
    a(f"v_exp_f32 {v(e0)}, -{v(e0)}")
    a(f"v_exp_f32 {v(e1)}, -{v(e1)}")
    nop(1)
    a(f"v_add_f32 {v(e0)}, 1.0, {v(e0)}")
    a(f"v_add_f32 {v(e1)}, 1.0, {v(e1)}")
    a(f"v_rcp_f32 {v(e0)}, {v(e0)}")
    a(f"v_rcp_f32 {v(e1)}, {v(e1)}")
    nop(1)
    a(f"v_mul_f32 {v(g0)}, {v(y0)}, {v(e0)}")
    a(f"v_mul_f32 {v(g1)}, {v(y1)}, {v(e1)}")
    rbf2(g0, g1)
    tail_addr()
    a(f"s_lshl_b32 s{sT2}, s{sG}, 3")
    a(f"s_add_u32 s{sT2}, s{sT2}, s{sA}")
    a(f"s_lshl_b32 s{sT2}, s{sT2}, 12")
    a(f"s_lshl_b32 s{sT1}, s{sBH}, 10")
    a(f"s_add_u32 s{sT1}, s{sT1}, s{sT2}")
    a(f"s_add_u32 s{sT1}, s{sT1}, {WS_S2}")
    a(f"v_add_u32 {v(vA+9)}, s{sT1}, {v(vVOFF)}")
    a(f"s_lshl_b32 s{sT1}, s{sC0}, 3")
    a(f"s_add_u32 s{sT1}, s{sT1}, {WS_S2}")
    a(f"v_lshl_add_u32 {v(vPA)}, {v(vLANE)}, 12, s{sT1}")
    a(f"v_lshlrev_b32 {v(vPA+1)}, 3, {v(vLANE)}")
    a(f"s_lshl_b32 s{sT1}, s{sC0}, 1")
    a(f"v_mov_b32 {v(vA+10)}, s{sT1}")
    a(f"s_lshl_b32 s{sT1}, s{sXD}, 16")
    a(f"s_and_b32 s{sT2}, s{sXD}, 0xffff0000")
    a(f"v_mov_b32 {v(vA+11)}, s{sT1}")
    a(f"v_mov_b32 {v(vA+12)}, s{sT2}")
    a(f"s_mov_b32 s{sT0}, 0x05040100")
    if G.stamps: a(f"s_memrealtime s[100:101]")
    a("s_branch L_tail")

    lab("L_stream")
    G.vm = []
    a(f"v_and_b32 {v(vT)}, 3, {v(vLANE)}")
    a(f"v_lshlrev_b32 {v(vT)}, 2, {v(vT)}")
    a(f"v_bfe_u32 {v(vT+1)}, {v(vLANE)}, 2, 2")
    a(f"v_add_u32 {v(vT)}, {v(vT)}, {v(vT+1)}")
    a(f"v_lshlrev_b32 {v(vT)}, 8, {v(vT)}")
    a(f"v_lshrrev_b32 {v(vT+1)}, 4, {v(vLANE)}")
    a(f"v_lshl_add_u32 {v(vKOFF)}, {v(vT+1)}, 4, {v(vT)}")
    a(f"s_mul_i32 s{sSTAT}, s{sBH}, 3")
    a(f"s_add_u32 s{sSTAT}, s{sSTAT}, s{sWV}")
    a(f"s_sub_u32 s{sSTAT}, s{sSTAT}, 1")
    a(f"s_lshl_b32 s{sSTAT}, s{sSTAT}, 12")
    a(f"s_lshl_b32 s{sT1}, s{sG}, 24")
    a(f"s_lshl_b32 s{sT2}, s{sA}, 21")
    a(f"s_add_u32 s{sSTAT}, s{sSTAT}, s{sT2}")
    a("s_waitcnt lgkmcnt(0)")
    for srd, ptr in ((srdK, sK), (srdV, sV)):
        a(f"s_add_u32 s{srd}, s{ptr}, s{sT1}")
        a(f"s_addc_u32 s{srd+1}, s{ptr+1}, 0")
        a(f"s_and_b32 s{srd+1}, s{srd+1}, 0xffff")
        a(f"s_mov_b32 s{srd+2}, 0x{LIM:x}")
        a(f"s_mov_b32 s{srd+3}, 0x20000")
    if G.hstart: a("s_barrier")
    def setup_consts():
        Z = 0x0c0c0c0c
        lo_to_lo, lo_to_hi = 0x0c0c0100, 0x01000c0c
        hi_to_lo, hi_to_hi = 0x0c0c0302, 0x03020c0c
        a(f"v_and_b32 {v(vT+1)}, 3, {v(vLANE)}")
        for k in range(4): a(f"v_mov_b32 {v(vSEL+k)}, 0x{Z:08x}")
        for jp, (sr, val_lo, val_hi) in enumerate(((0, lo_to_lo, hi_to_lo), (0, lo_to_hi, hi_to_hi), (1, lo_to_lo, hi_to_lo), (1, lo_to_hi, hi_to_hi))):
            a(f"v_cmp_eq_u32 vcc, {jp}, {v(vT+1)}")
            a(f"v_mov_b32 {v(vT+2)}, 0x{val_lo:08x}")
            a(f"v_mov_b32 {v(vT+3)}, 0x{val_hi:08x}")
            a(f"v_cndmask_b32 {v(vSEL+sr)}, {v(vSEL+sr)}, {v(vT+2)}, vcc")
            a(f"v_cndmask_b32 {v(vSEL+2+sr)}, {v(vSEL+2+sr)}, {v(vT+3)}, vcc")
        for k in range(8): a(f"v_mov_b32 {v(vO+k)}, 0")
        a(f"v_mov_b32 {v(vNM)}, 0")
        a(f"v_mov_b32 {v(vL)}, 0")
        a(f"s_mov_b32 s{sTHR}, 0xff800000")
        a(f"s_mov_b32 s{sFLOOR}, 0xff7fffff")
        a(f"s_mov_b32 s{sSCALE}, 0x{f2u(SCALE):08x}")
        a(f"s_mov_b32 s{sEXH}, 0")
        a(f"s_mov_b32 s{sN}, {R}")
        a(f"s_add_u32 s{sT1}, s{sBH}, s{sA}")
        a(f"s_and_b32 s{sT1}, s{sT1}, 3")
        if G.dyn:
            a(f"s_lshl_b32 s{sDYNB}, s{sT1}, 22")
            a(f"s_add_u32 s{sDYNB}, s{sDYNB}, {NS*TSTR}")
        else:
            a(f"s_add_u32 s{sDYNB}, s{sA}, 1")
            a(f"s_lshl_b32 s{sDYNB}, s{sDYNB}, 21")
        a(f"s_lshl_b32 s{sT2}, s{sG}, 2")
        a(f"s_add_u32 s{sT2}, s{sT2}, s{sT1}")
        a(f"s_mul_i32 s{sCNTOFF}, s{sT2}, {CNT_STRIDE}")
        a(f"s_add_u32 s{sCNTOFF}, s{sCNTOFF}, {WS_CNT}")
        for k in range(4): a(f"s_mov_b32 s{sTK+k}, 0")
        a(f"v_bfe_u32 {v(vT+8)}, {v(vLANE)}, 2, 2")
        a(f"v_lshlrev_b32 {v(vT+8)}, 8, {v(vT+8)}")
        a(f"v_lshrrev_b32 {v(vT+1)}, 4, {v(vLANE)}")
        a(f"v_lshl_add_u32 {v(vT+8)}, {v(vT+1)}, 4, {v(vT+8)}")
    for n in range(R):
        if n >= A:
            wait_vm(("K", n - A))
        issue_tile(n, f"s{sSTAT}", n)
        a(f"s_add_u32 s{sSTAT}, s{sSTAT}, {TSTR}")
        if n == A - 1:
            setup_consts()
        if n == 3:
            tail_addr()
            wo_issue(track=True)
        if G.stamps and not G.tstamps and n in (1, 3, 5, 7, 9, 11): a(f"s_memrealtime s[{4+2*(n//2)}:{5+2*(n//2)}]")
    a("s_barrier")
    for t in range(4):
        a(f"ds_read_b128 {vr(vQ+4*t,4)}, {v(vT+8)} offset:{LDS_Q + 64*t}")
    a(f"v_mov_b32 {v(vT)}, 0")
    a(f"ds_read_b64 {vr(vT+2,2)}, {v(vT)} offset:{LDS_TG}")
    if G.stamps: a(f"s_memrealtime {sp(sTS0+2)}")
    a("s_waitcnt lgkmcnt(0)")
    a(f"v_readfirstlane_b32 s{sTAGL}, {v(vT+2)}")
    a(f"v_readfirstlane_b32 s{sTAGH}, {v(vT+3)}")
    a(f"s_and_b32 s{sTG16}, s{sTAGL}, 0xffff0000")

    rare_id = [0]
    def compute_qk(slot):
        for t in range(4):
            cc = "0" if t == 0 else vr(vS, 4)
            a(f"v_mfma_f32_16x16x32_bf16 {vr(vS,4)}, {slot_reg(slot,4*t,4)}, {vr(vQ+4*t,4)}, {cc}")
    def softmax():
        rid = rare_id[0]; rare_id[0] += 1
        p01, p23 = vT, vT+1
        b = vT + 2
        a(f"v_cvt_pk_bf16_f32 {v(p01)}, {v(vS)}, {v(vS+1)}")
        a(f"v_cvt_pk_bf16_f32 {v(p23)}, {v(vS+2)}, {v(vS+3)}")
        a(f"v_lshlrev_b32 {v(b)}, 16, {v(p01)}")
        a(f"v_and_b32 {v(b+1)}, 0xffff0000, {v(p01)}")
        a(f"v_lshlrev_b32 {v(b+2)}, 16, {v(p23)}")
        a(f"v_and_b32 {v(b+3)}, 0xffff0000, {v(p23)}")
        for k in range(4): a(f"v_mul_f32 {v(b+k)}, s{sSCALE}, {v(b+k)}")
        a(f"v_cvt_pk_bf16_f32 {v(p01)}, {v(b)}, {v(b+1)}")
        a(f"v_cvt_pk_bf16_f32 {v(p23)}, {v(b+2)}, {v(b+3)}")
        a(f"v_lshlrev_b32 {v(b)}, 16, {v(p01)}")
        a(f"v_and_b32 {v(b+1)}, 0xffff0000, {v(p01)}")
        a(f"v_lshlrev_b32 {v(b+2)}, 16, {v(p23)}")
        a(f"v_and_b32 {v(b+3)}, 0xffff0000, {v(p23)}")
        for k in range(4): a(f"v_fma_f32 {v(b+k)}, {v(b+k)}, s{sLOG2E}, {v(vNM)}")
        mx = vT + 6
        a(f"v_max3_f32 {v(mx)}, {v(b)}, {v(b+1)}, {v(b+2)}")
        a(f"v_max_f32 {v(mx)}, {v(mx)}, {v(b+3)}")
        a(f"v_cmp_lt_f32 vcc, s{sTHR}, {v(mx)}")
        a(f"s_cbranch_vccz L_back{rid}")
        a(f"s_call_b64 {sp(sPC)}, L_rare")
        lab(f"L_back{rid}")
        for k in range(4): a(f"v_exp_f32 {v(b+k)}, {v(b+k)}")
        nop(1)
        a(f"v_cvt_pk_bf16_f32 {v(p01)}, {v(b)}, {v(b+1)}")
        a(f"v_cvt_pk_bf16_f32 {v(p23)}, {v(b+2)}, {v(b+3)}")
        a(f"v_add_f32 {v(b)}, {v(b)}, {v(b+1)}")
        a(f"v_add_f32 {v(b+2)}, {v(b+2)}, {v(b+3)}")
        for k in range(4): a(f"v_perm_b32 {v(vX+k)}, {v(p01)}, {v(p01)}, {v(vSEL+k)}")
        for k in range(4): a(f"v_perm_b32 {v(vX+4+k)}, {v(p23)}, {v(p23)}, {v(vSEL+k)}")
        a(f"v_add_f32 {v(b)}, {v(b)}, {v(b+2)}")
        a(f"v_add_f32 {v(vL)}, {v(vL)}, {v(b)}")
    def compute_pv(slot):
        for u in range(4):
            a(f"v_mfma_f32_16x16x16_bf16 {vr(vO,4)}, {vr(vX+2*u,2)}, {slot_reg(slot,16+4*u,2)}, {vr(vO,4)}")
            a(f"v_mfma_f32_16x16x16_bf16 {vr(vO+4,4)}, {vr(vX+2*u,2)}, {slot_reg(slot,16+4*u+2,2)}, {vr(vO+4,4)}")

    k_iss = 0
    for n in range(R + E - A):
        slot = n if n < R else n - R
        c(f"catch-up step {n}")
        wait_vm(("K", n))
        compute_qk(slot)
        nop(8)
        softmax()
        wait_vm(("V", n))
        compute_pv(slot)
        if n in G.cu_issue:
            assert k_iss <= n
            next_tile(k_iss, R + k_iss, track=True)
            k_iss += 1
    assert k_iss == E
    lab("L_loop")
    for k in range(4):
        s = (E - A + k) % 4
        c(f"steady step slot {s}")
        ns = (s + A) % 4
        a(f"s_cmp_ge_u32 s{sOFF+s}, 0x{LIM:x}")
        a("s_cbranch_scc1 L_done")
        a(f"s_waitcnt vmcnt({8*A-4})")
        compute_qk(s)
        next_tile(ns)
        softmax()
        a(f"s_waitcnt vmcnt({8*A})")
        compute_pv(s)
    a("s_branch L_loop")

    lab("L_rare")
    b = vT + 2; mx = vT + 6; t = vT + 7; f = vT + 8
    allred_rows("v_max_f32", mx, t)
    a(f"v_max_f32 {v(mx)}, s{sFLOOR}, {v(mx)}")
    for k in range(4): a(f"v_sub_f32 {v(b+k)}, {v(b+k)}, {v(mx)}")
    a(f"v_sub_f32 {v(vNM)}, {v(vNM)}, {v(mx)}")
    a(f"v_max_f32 {v(t)}, 0, {v(mx)}")
    a(f"v_exp_f32 {v(t)}, -{v(t)}")
    nop(1)
    a(f"v_mul_f32 {v(vL)}, {v(vL)}, {v(t)}")
    nop(1)
    for h in range(4):
        a(f"v_mov_b32_dpp {v(f)}, {v(t)} row_newbcast:{4*h} row_mask:0x{1<<h:x} bank_mask:0xf")
    for k in range(8): a(f"v_mul_f32 {v(vO+k)}, {v(vO+k)}, {v(f)}")
    a(f"s_mov_b32 s{sTHR}, 0x{f2u(G.T):08x}")
    a(f"s_mov_b32 s{sFLOOR}, 0")
    a(f"s_setpc_b64 {sp(sPC)}")

    def stageA():
        a(f"v_cmp_ne_u32 vcc, 0, {v(vA+6)}")
        a("s_waitcnt lgkmcnt(0)")
        tstamp(0)
        a("s_barrier")
        if G.tstamps:
            tstamp(1); a("s_waitcnt lgkmcnt(0)")
        a(f"ds_read_b64 {vr(vQ+2,2)}, {v(vA+3)} offset:{LDS_ML+8}")
        a(f"ds_read_b128 {vr(vQ+4,4)}, {v(vA+3)} offset:{LDS_ML+16}")
        OO = vT + 4
        for w in range(1, 4):
            a(f"ds_read_b64 {vr(OO+2*w,2)}, {v(vA+4)} offset:{LDS_O + 2048*w}")
        RES = vQ + 12
        a(f"v_mov_b32 {v(RES+3)}, s{sTAGH}")
        a("s_waitcnt lgkmcnt(3)")
        nmM = vQ + 8
        a(f"v_min3_f32 {v(nmM)}, {v(vQ+2)}, {v(vQ+4)}, {v(vQ+6)}")
        for k in range(1, 4): a(f"v_sub_f32 {v(vQ+2*k)}, {v(nmM)}, {v(vQ+2*k)}")
        for k in range(1, 4): a(f"v_exp_f32 {v(vQ+2*k)}, {v(vQ+2*k)}")
        nop(1)
        a(f"v_mul_f32 {v(nmM+1)}, {v(vQ+2)}, {v(vQ+3)}")
        for k in range(2, 4): a(f"v_fmac_f32 {v(nmM+1)}, {v(vQ+2*k)}, {v(vQ+2*k+1)}")
        a(f"v_cndmask_b32 {v(nmM)}, {v(nmM)}, {v(nmM+1)}, vcc")
        a(f"v_bfe_u32 {v(nmM)}, {v(nmM)}, {v(vA+5)}, 16")
        a(f"v_or_b32 {v(RES+2)}, s{sTG16}, {v(nmM)}")
        a("s_waitcnt lgkmcnt(0)")
        for e in range(2): a(f"v_mul_f32 {v(RES+e)}, {v(vQ+2)}, {v(OO+2+e)}")
        for k in range(2, 4):
            for e in range(2): a(f"v_fmac_f32 {v(RES+e)}, {v(vQ+2*k)}, {v(OO+2*k+e)}")
        a(f"global_store_dwordx4 {v(vA)}, {vr(RES,4)}, {sp(sWS)} {G.stf}")
        tstamp(2)
    def stageB(sfx):
        a(f"s_mov_b32 s{sT0}, 0x05040100")
        PB = vW
        a(f"s_mov_b32 s{sT3}, 0")
        if G.apoll & 1:
            a(f"s_xor_b32 s{sT1}, s{sTAGH}, 1")
            for k in range(4): a(f"v_mov_b32 {v(PB+4*k+3)}, s{sT1}")
        if G.pb_first: a(f"s_sleep {G.pb_first}")
        lab(f"L_pollB{sfx}")
        for k in range(4):
            a(f"global_load_dwordx4 {vr(PB+4*k,4)}, {v(vA+8)}, {sp(sWS)} offset:{1024*k} {G.ldf}")
        if G.apoll & 1:
            a(f"s_sleep {G.ap_sleep}")
            a("s_waitcnt vmcnt(32)")
        else:
            a("s_waitcnt vmcnt(0)")
        a(f"v_xor_b32 {v(vT)}, s{sTG16}, {v(PB+2)}")
        a(f"v_xor_b32 {v(vT+1)}, s{sTG16}, {v(PB+6)}")
        a(f"v_xor_b32 {v(vT+2)}, s{sTG16}, {v(PB+10)}")
        a(f"v_xor_b32 {v(vT+3)}, s{sTG16}, {v(PB+14)}")
        a(f"v_or3_b32 {v(vT)}, {v(vT)}, {v(vT+1)}, {v(vT+2)}")
        a(f"v_or_b32 {v(vT)}, {v(vT)}, {v(vT+3)}")
        a(f"v_lshrrev_b32 {v(vT)}, 16, {v(vT)}")
        a(f"v_xor_b32 {v(vT+1)}, s{sTAGH}, {v(PB+3)}")
        a(f"v_xor_b32 {v(vT+2)}, s{sTAGH}, {v(PB+7)}")
        a(f"v_or3_b32 {v(vT)}, {v(vT)}, {v(vT+1)}, {v(vT+2)}")
        a(f"v_xor_b32 {v(vT+1)}, s{sTAGH}, {v(PB+11)}")
        a(f"v_xor_b32 {v(vT+2)}, s{sTAGH}, {v(PB+15)}")
        a(f"v_or3_b32 {v(vT)}, {v(vT)}, {v(vT+1)}, {v(vT+2)}")
        a(f"v_cmp_ne_u32 vcc, 0, {v(vT)}")
        a("s_and_b64 exec, exec, vcc")
        a(f"s_cbranch_execz L_pollB_done{sfx}")
        poll_tail(f"L_pollB{sfx}", G.pb_sleep)
        lab(f"L_pollB_done{sfx}")
        if G.apoll & 1: a("s_waitcnt vmcnt(0)")
        tstamp(3)
        a("s_mov_b64 exec, -1")
        NMr, Lr = vT + 4, vT + 8
        TA, TB = vT + 12, vT + 16
        for k in range(4):
            a(f"v_mov_b32_dpp {v(TA+k)}, {v(PB+4*k+2)} quad_perm:[0,0,0,0] {DPP}")
            a(f"v_mov_b32_dpp {v(TB+k)}, {v(PB+4*k+2)} quad_perm:[1,1,1,1] {DPP}")
        for k in range(4):
            a(f"v_perm_b32 {v(NMr+k)}, {v(TB+k)}, {v(TA+k)}, s{sT0}")
        M = vT
        a(f"v_min3_f32 {v(M)}, {v(NMr)}, {v(NMr+1)}, {v(NMr+2)}")
        a(f"v_min_f32 {v(M)}, {v(M)}, {v(NMr+3)}")
        a(f"v_mov_b32_dpp {v(TA)}, {v(PB+2)} quad_perm:[2,2,2,2] {DPP}")
        a(f"v_mov_b32_dpp {v(TB)}, {v(PB+2)} quad_perm:[3,3,3,3] {DPP}")
        a(f"v_min_f32_dpp {v(M)}, {v(M)}, {v(M)} row_ror:8 {DPP}")
        a(f"v_mov_b32 {v(vT+1)}, {v(M)}")
        a(f"v_mov_b32_dpp {v(TA+1)}, {v(PB+6)} quad_perm:[2,2,2,2] {DPP}")
        a(f"v_mov_b32_dpp {v(TB+1)}, {v(PB+6)} quad_perm:[3,3,3,3] {DPP}")
        a(f"v_permlane16_swap_b32 {v(M)}, {v(vT+1)}")
        a(f"v_mov_b32_dpp {v(TA+2)}, {v(PB+10)} quad_perm:[2,2,2,2] {DPP}")
        a(f"v_min_f32 {v(M)}, {v(M)}, {v(vT+1)}")
        a(f"v_mov_b32 {v(vT+1)}, {v(M)}")
        a(f"v_mov_b32_dpp {v(TB+2)}, {v(PB+10)} quad_perm:[3,3,3,3] {DPP}")
        a(f"v_mov_b32_dpp {v(TA+3)}, {v(PB+14)} quad_perm:[2,2,2,2] {DPP}")
        a(f"v_permlane32_swap_b32 {v(M)}, {v(vT+1)}")
        a(f"v_mov_b32_dpp {v(TB+3)}, {v(PB+14)} quad_perm:[3,3,3,3] {DPP}")
        a(f"v_min_f32 {v(M)}, {v(M)}, {v(vT+1)}")
        for k in range(4): a(f"v_sub_f32 {v(NMr+k)}, {v(M)}, {v(NMr+k)}")
        for k in range(4): a(f"v_exp_f32 {v(NMr+k)}, {v(NMr+k)}")
        for k in range(4): a(f"v_perm_b32 {v(Lr+k)}, {v(TB+k)}, {v(TA+k)}, s{sT0}")
        o0, o1, la, lb = vT, vT+1, vT+2, vT+3
        a(f"v_mul_f32 {v(o0)}, {v(NMr)}, {v(PB)}")
        a(f"v_mul_f32 {v(o1)}, {v(NMr)}, {v(PB+1)}")
        a(f"v_mul_f32 {v(la)}, {v(NMr)}, {v(Lr)}")
        for k in range(1, 4):
            a(f"v_fmac_f32 {v(o0)}, {v(NMr+k)}, {v(PB+4*k)}")
            a(f"v_fmac_f32 {v(o1)}, {v(NMr+k)}, {v(PB+4*k+1)}")
            a(f"v_fmac_f32 {v(la)}, {v(NMr+k)}, {v(Lr+k)}")
        a(f"v_mov_b32 {v(lb)}, {v(la)}")
        a(f"v_permlane32_swap_b32 {v(o0)}, {v(o1)}")
        nop(1)
        a(f"v_permlane32_swap_b32 {v(la)}, {v(lb)}")
        a(f"v_add_f32 {v(o0)}, {v(o0)}, {v(o1)}")
        a(f"v_add_f32 {v(la)}, {v(la)}, {v(lb)}")
        a(f"v_mov_b32 {v(o1)}, {v(o0)}")
        a(f"v_mov_b32 {v(lb)}, {v(la)}")
        nop(1)
        a(f"v_permlane16_swap_b32 {v(o0)}, {v(o1)}")
        a(f"v_permlane16_swap_b32 {v(la)}, {v(lb)}")
        a(f"v_add_f32 {v(o0)}, {v(o0)}, {v(o1)}")
        a(f"v_add_f32 {v(la)}, {v(la)}, {v(lb)}")
        nop(1)
        a(f"v_add_f32_dpp {v(o0)}, {v(o0)}, {v(o0)} row_ror:8 {DPP}")
        a(f"v_add_f32_dpp {v(la)}, {v(la)}, {v(la)} row_ror:8 {DPP}")
        a(f"v_rcp_f32 {v(lb)}, {v(la)}")
        a(f"v_mov_b32_dpp {v(o0)}, {v(o0)} row_shl:1 row_mask:0xa bank_mask:0xf")
        a(f"v_fma_f32 {v(o1)}, -{v(la)}, {v(lb)}, 1.0")
        a(f"v_fma_f32 {v(lb)}, {v(o1)}, {v(lb)}, {v(lb)}")
        a(f"v_mul_f32 {v(o0)}, {v(o0)}, {v(lb)}")
        a(f"v_cvt_pk_bf16_f32 {v(o0)}, {v(o0)}, {v(o0)}")
        nop(2)
        AO = vQ
        DD = vW + 16
        for u in range(4):
            for r in range(4):
                a(f"v_and_b32_dpp {v(AO+4*u+r)}, {v(o0)}, {v(vMSK+r)} row_newbcast:{2*u} {DPP}")
            if u > 0:
                cc = "0" if u == 1 else vr(DD, 4)
                a(f"v_mfma_f32_16x16x32_bf16 {vr(DD,4)}, {vr(AO+4*(u-1),4)}, {vr(vWO+4*(u-1),4)}, {cc}")
        nop(1)
        a(f"v_mfma_f32_16x16x32_bf16 {vr(DD,4)}, {vr(AO+12,4)}, {vr(vWO+12,4)}, {vr(DD,4)}")
        a("s_mov_b64 exec, 0xffffffff")
        nop(7)
        a(f"ds_write_b128 {v(vA+7)}, {vr(DD,4)} offset:{LDS_S}")
        a("s_mov_b64 exec, -1")
        a("s_waitcnt lgkmcnt(0)")
        a("s_barrier")
    lab("L_done")
    if G.stamps: a(f"s_memrealtime s[100:101]")
    allred_rows("v_add_f32", vL, vT)
    a(f"ds_write_b128 {v(vA+1)}, {vr(vO,4)} offset:{LDS_O}")
    a(f"ds_write_b128 {v(vA+1)}, {vr(vO+4,4)} offset:{LDS_O+16}")
    a(f"ds_write_b64 {v(vA+2)}, {vr(vNM,2)} offset:{LDS_ML}")
    stageA()
    stageB('w')
    a("s_branch L_fin")
    lab("L_tail")
    stageA()
    stageB('s')
    PC = vW
    for w in range(4):
        a(f"ds_read_b64 {vr(PC+4+2*w,2)}, {v(vPA+1)} offset:{LDS_S + 512*w}")
    a(f"v_mov_b32 {v(PC+2)}, s{sTAGL}")
    a(f"v_mov_b32 {v(PC+3)}, s{sTAGH}")
    a("s_waitcnt lgkmcnt(0)")
    for e in range(2): a(f"v_add_f32 {v(PC+4+e)}, {v(PC+4+e)}, {v(PC+6+e)}")
    for e in range(2): a(f"v_add_f32 {v(PC+8+e)}, {v(PC+8+e)}, {v(PC+10+e)}")
    for e in range(2): a(f"v_add_f32 {v(PC+e)}, {v(PC+4+e)}, {v(PC+8+e)}")
    a(f"global_store_dwordx4 {v(vA+9)}, {vr(PC,4)}, {sp(sWS)} {G.stf}")
    tstamp(4)
    PC = vW + 4
    a(f"s_mov_b32 s{sT3}, 0")
    if G.pc_first: a(f"s_sleep {G.pc_first}")
    lab("L_pollC")
    a(f"global_load_dwordx4 {vr(PC,4)}, {v(vPA)}, {sp(sWS)} {G.ldf}")
    a("s_waitcnt vmcnt(0)")
    a(f"v_xor_b32 {v(vT)}, s{sTAGL}, {v(PC+2)}")
    a(f"v_xor_b32 {v(vT+1)}, s{sTAGH}, {v(PC+3)}")
    a(f"v_or_b32 {v(vT)}, {v(vT)}, {v(vT+1)}")
    a(f"v_cmp_ne_u32 vcc, 0, {v(vT)}")
    a("s_and_b64 exec, exec, vcc")
    a("s_cbranch_execz L_pollC_done")
    poll_tail("L_pollC", G.pc_sleep)
    lab("L_pollC_done")
    tstamp(5)
    a("s_mov_b64 exec, -1")
    nop(2)
    a(f"v_permlane32_swap_b32 {v(PC)}, {v(PC+1)}")
    nop(1)
    a(f"v_add_f32 {v(PC)}, {v(PC)}, {v(PC+1)}")
    allred16("v_add_f32", PC)
    a(f"v_mov_b32 {v(vT)}, {v(PC)}")
    nop(2)
    a(f"v_permlane16_swap_b32 {v(PC)}, {v(vT)}")
    nop(1)
    a(f"v_add_f32 {v(PC)}, {v(PC)}, {v(vT)}")
    a(f"v_mov_b32 {v(PC+1)}, {v(PC)}")
    nop(2)
    a(f"v_permlane32_swap_b32 {v(PC)}, {v(PC+1)}")
    nop(1)
    rbf2(PC, PC+1)
    a(f"v_mul_f32 {v(PC)}, {v(PC)}, {v(g0)}")
    a(f"v_mul_f32 {v(PC+1)}, {v(PC+1)}, {v(g1)}")
    rbf2(PC, PC+1)
    a(f"v_add_f32 {v(PC)}, {v(PC)}, {v(vA+11)}")
    a(f"v_add_f32 {v(PC+1)}, {v(PC+1)}, {v(vA+12)}")
    a(f"v_cvt_pk_bf16_f32 {v(PC)}, {v(PC)}, {v(PC+1)}")
    a("s_mov_b64 exec, 1")
    a(f"global_store_dword {v(vA+10)}, {v(PC)}, {sp(sOUT)}")
    a("s_cmp_lg_u32 s2, 0")
    a("s_cbranch_scc1 L_noep")
    a(f"v_mov_b32 {v(vT)}, {WS_EP}")
    a(f"v_mov_b32 {v(vT+1)}, {WS_EPH}")
    a(f"v_mov_b32 {v(vT+2)}, s{sTAGL}")
    a(f"v_mov_b32 {v(vT+3)}, s{sTAGH}")
    a(f"global_store_dword {v(vT)}, {v(vT+2)}, {sp(sWS)} sc1")
    a(f"global_store_dword {v(vT+1)}, {v(vT+3)}, {sp(sWS)} sc1")
    lab("L_noep")
    a("s_mov_b64 exec, -1")
    lab("L_fin")
    if G.stamps:
        a(f"s_memrealtime s[82:83]")
        a("s_waitcnt lgkmcnt(0)")
        a(f"s_lshl_b32 s{sT2}, s2, 2")
        a(f"s_add_u32 s{sT2}, s{sT2}, s{sWV}")
        a(f"s_lshl_b32 s{sT2}, s{sT2}, 6")
        a(f"s_add_u32 s{sT2}, s{sT2}, {WS_TS}")
        a(f"v_mov_b32 v2, s{sT2}")
        a(f"v_mov_b32 v4, s{sTS0}")
        a(f"v_mov_b32 v5, s{sTS0+2}")
        a(f"v_mov_b32 v6, s100")
        a(f"v_mov_b32 v7, s82")
        a(f"v_mov_b32 v8, s{sN}")
        a(f"s_getreg_b32 s{sT2}, hwreg(HW_REG_XCC_ID)")
        a(f"v_mov_b32 v9, s{sT2}")
        a("s_mov_b64 exec, 1")
        a(f"global_store_dwordx4 v2, v[4:7], {sp(sWS)}")
        a(f"global_store_dwordx2 v2, v[8:9], {sp(sWS)} offset:16")
        for k in range(6): a(f"v_mov_b32 v{10+k}, s{4+2*k}")
        a(f"global_store_dwordx4 v2, v[10:13], {sp(sWS)} offset:32")
        a(f"global_store_dwordx2 v2, v[14:15], {sp(sWS)} offset:48")
    if G.dbgt:
        a("s_cmp_ge_u32 s2, 1")
        a("s_cbranch_scc1 L_end")
        a(f"s_memrealtime s[82:83]")
        a("s_waitcnt lgkmcnt(0)")
        a(f"s_sub_u32 s82, s82, s{sTS0}")
        a(f"s_sub_u32 s83, s{sTS0+2}, s{sTS0}")
        a(f"s_sub_u32 s84, s100, s{sTS0}")
        a(f"s_sub_u32 s85, s4, s{sTS0}")
        a(f"s_lshl_b32 s86, s{sWV}, 4")
        a("v_mov_b32 v2, s86")
        a("v_mov_b32 v4, s82"); a("v_mov_b32 v5, s83"); a("v_mov_b32 v6, s84"); a("v_mov_b32 v7, s85")
        a("s_mov_b64 exec, 1")
        a(f"global_store_dwordx4 v2, v[4:7], {sp(sDBG)}")
    lab("L_end")
    a("s_endpgm")
    tail = ['.section .rodata,"a"', ".p2align 6", f".amdhsa_kernel {KN}",
            f"  .amdhsa_next_free_vgpr {NV+256}", "  .amdhsa_next_free_sgpr 102", f"  .amdhsa_accum_offset {NV}",
            "  .amdhsa_group_segment_fixed_size 0", "  .amdhsa_kernarg_size 104", "  .amdhsa_user_sgpr_count 2",
            "  .amdhsa_user_sgpr_kernarg_segment_ptr 1", "  .amdhsa_system_sgpr_workgroup_id_x 1",
            "  .amdhsa_float_denorm_mode_32 3",
            ".end_amdhsa_kernel"]
    return "\n".join(hdr + G.L + tail) + "\n"

if __name__ == "__main__":
    import argparse, json
    ap = argparse.ArgumentParser()
    ap.add_argument("-o", default="k.s")
    ap.add_argument("kv", nargs="*")
    args = ap.parse_args()
    kw = {}
    for x in args.kv:
        k, val = x.split("=")
        kw[k] = json.loads(val)
    open(args.o, "w").write(build(**kw))
```

```python
import sys, struct, math

KN = "recurrent_scan__gqa_block_cached__mixer_token_mlp__decode_kernel"

def f2u(x):
    return struct.unpack("<I", struct.pack("<f", x))[0]

class Gen:
    def __init__(self, **kw):
        self.L = []
        self.vm = []
        self.__dict__.update(kw)
    def a(self, s): self.L.append("  " + s)
    def lab(self, s): self.L.append(s + ":")
    def c(self, s): self.L.append("  ; " + s)
    def vmem(self, s, tag=None):
        self.a(s); self.vm.append(tag)
    def wait_vm(self, tag):
        if tag not in self.vm: return
        idx = max(i for i, t in enumerate(self.vm) if t == tag)
        n = len(self.vm) - 1 - idx
        n = min(n, 63)
        self.a(f"s_waitcnt vmcnt({n})")
        self.vm = self.vm[len(self.vm)-n:] if n else []
    def nop(self, n):
        if n > 0: self.a(f"s_nop {n-1}")

WS_Q   = 0x40000
WS_EP  = 0x8000
WS_EPH = 0x300000
WS_CNT = 0x10000
CNT_STRIDE = 1280
CNT_BIAS = 0x10000
WS_P2  = 0x100000
WS_S2  = 0x200000
WS_TS  = 0x1000000
LDS_XN   = 0
LDS_Q    = 1024
LDS_ML   = 2048
LDS_O    = 2304
LDS_TG   = 2176
LDS_S    = 2304 + 8192
LDS_TOTAL = 2304 + 8192 + 2048
LOG2E = 1.4426950408889634
SCALE = 128 ** -0.5
LCG_A, LCG_C, LCG_C2 = 1664525, 1013904223, 2891336453
REG = 0x200000
LIM = 0x1000000

DEFAULTS = dict(A=2, R=8, NS=39, P=2, T=20.0, dyn=True, stamps=False, tstamps=False, poll_max=4000000,
                cu_issue=(0, 1, 5, 8), q_sleep=12, q_first=16, pretouch=0, stf='sc1', ldf='sc1', dbgt=False, hstart=8, nolight=True, apoll=0, ap_sleep=2, pb_first=10, pb_sleep=0, pc_first=24, pc_sleep=0, ack=7, ctop=0, btop=0)

def build(**kw):
    p = dict(DEFAULTS); p.update(kw)
    G = Gen(**p)
    a, lab, c, vmem, wait_vm, nop = G.a, G.lab, G.c, G.vmem, G.wait_vm, G.nop
    A, R, NS = G.A, G.R, G.NS
    E = len(G.cu_issue)
    assert A <= E <= 4 and R <= 8
    POLL_MAX = G.poll_max
    hdr = [f"; @launch grid=(256,1,1) block=(256,1,1) lds={LDS_TOTAL}",
           '.amdgcn_target "amdgcn-amd-amdhsa--gfx950"', ".text", f".globl {KN}", ".p2align 8",
           f".type {KN},@function", f"{KN}:"]
    sX, sK, sV, sWQ, sWO, sBX, sW1, sB1 = 16, 18, 20, 22, 24, 26, 28, 30
    sW2, sB2, sOUT, sDBG, sWS = 32, 34, 36, 38, 40
    sTAGL, sTAGH = 42, 43
    srdK, srdV = 44, 48
    sOFF = 52; sTK = 56; sDYNB = 60; sTG16 = 61
    sWV, sA, sB, sG, sI = 72, 73, 74, 75, 76
    sN, sSTAT, sEXH, sCNTOFF, sBH = 77, 78, 79, 80, 81
    sT0, sT1, sT2, sT3 = 82, 83, 84, 85
    sTHR, sFLOOR = 86, 87
    sXD = 88
    sC0 = 90
    sPC = 92
    sTS0 = 94
    sLOG2E, sSCALE = 98, 99
    def sp(r): return f"s[{r}:{r+1}]"
    def sq(r): return f"s[{r}:{r+3}]"
    vLANE = 1; vKOFF = 2; vVOFF = 3
    vQ = 4; vO = 20; vNM = 28; vL = 29; vSEL = 30; vS = 34; vX = 38
    vT = 46
    vA = 80
    vPA = 96
    vMASK = 100
    vW = 104
    vWO = 200
    vMSK = 216
    vG = 232
    NV = 236
    def v(r): return f"v{r}"
    def vr(r, n): return f"v[{r}:{r+n-1}]"
    def slot_reg(slot, off, n):
        if slot < 8:
            r = 32*slot + off
            return f"a[{r}:{r+n-1}]"
        r = vW + 32*(slot-8) + off
        return f"v[{r}:{r+n-1}]"
    def stamp(k):
        if G.stamps and not G.tstamps: a(f"s_memrealtime s[{4+2*k}:{5+2*k}]")
    def tstamp(k):
        if G.tstamps: a(f"s_memrealtime s[{4+2*k}:{5+2*k}]")
    DPP = "row_mask:0xf bank_mask:0xf"
    def allred16(op, r, steps=("quad_perm:[1,0,3,2]", "quad_perm:[2,3,0,1]", "row_half_mirror", "row_mirror")):
        for s in steps:
            nop(2)
            a(f"{op}_dpp {v(r)}, {v(r)}, {v(r)} {s} {DPP}")
    def allred_rows(op, r, t):
        a(f"v_mov_b32 {v(t)}, {v(r)}")
        nop(2)
        a(f"v_permlane16_swap_b32 {v(r)}, {v(t)}")
        nop(1)
        a(f"{op} {v(r)}, {v(r)}, {v(t)}")
        a(f"v_mov_b32 {v(t)}, {v(r)}")
        nop(2)
        a(f"v_permlane32_swap_b32 {v(r)}, {v(t)}")
        nop(1)
        a(f"{op} {v(r)}, {v(r)}, {v(t)}")
    def allred64(op, r, t):
        allred16(op, r); allred_rows(op, r, t)
    def rbf(r):
        a(f"v_cvt_pk_bf16_f32 {v(r)}, {v(r)}, {v(r)}")
        a(f"v_and_b32 {v(r)}, 0xffff0000, {v(r)}")
    def rbf2(r0, r1):
        a(f"v_cvt_pk_bf16_f32 {v(r1)}, {v(r0)}, {v(r1)}")
        a(f"v_lshlrev_b32 {v(r0)}, 16, {v(r1)}")
        a(f"v_and_b32 {v(r1)}, 0xffff0000, {v(r1)}")
    def poll_tail(label, sleep=0):
        if sleep: a(f"s_sleep {sleep}")
        a(f"s_add_u32 s{sT3}, s{sT3}, 1")
        a(f"s_cmp_lt_u32 s{sT3}, {POLL_MAX}")
        a(f"s_cbranch_scc1 {label}")
    def tags():
        a(f"s_mul_i32 s{sTAGL}, s{sTAGL}, {LCG_A}")
        a(f"s_add_u32 s{sTAGL}, s{sTAGL}, {LCG_C}")
        a(f"s_mul_i32 s{sTAGH}, s{sTAGH}, {LCG_A}")
        a(f"s_add_u32 s{sTAGH}, s{sTAGH}, {LCG_C2}")
        a(f"s_and_b32 s{sTG16}, s{sTAGL}, 0xffff0000")

    t0, t1, t2, t3 = vS, vS+1, vS+2, vS+3
    F = vX
    def unpack8(dst, src):
        for j in range(4):
            a(f"v_lshlrev_b32 {v(dst+2*j)}, 16, {v(src+j)}")
            a(f"v_and_b32 {v(dst+2*j+1)}, 0xffff0000, {v(src+j)}")
    def ln_stats(F):
        a(f"v_add_f32 {v(t0)}, {v(F)}, {v(F+1)}")
        a(f"v_add_f32 {v(t1)}, {v(F+2)}, {v(F+3)}")
        a(f"v_add_f32 {v(t2)}, {v(F+4)}, {v(F+5)}")
        a(f"v_add_f32 {v(t3)}, {v(F+6)}, {v(F+7)}")
        a(f"v_add_f32 {v(t0)}, {v(t0)}, {v(t1)}")
        a(f"v_add_f32 {v(t2)}, {v(t2)}, {v(t3)}")
        a(f"v_add_f32 {v(t0)}, {v(t0)}, {v(t2)}")
        allred64("v_add_f32", t0, t3)
        a(f"v_mul_f32 {v(t0)}, 0x3b000000, {v(t0)}")
        a(f"v_sub_f32 {v(t2)}, {v(F)}, {v(t0)}")
        a(f"v_mul_f32 {v(t1)}, {v(t2)}, {v(t2)}")
        for j in range(1, 8):
            a(f"v_sub_f32 {v(t2)}, {v(F+j)}, {v(t0)}")
            a(f"v_fmac_f32 {v(t1)}, {v(t2)}, {v(t2)}")
        allred64("v_add_f32", t1, t3)
        a(f"v_mul_f32 {v(t1)}, 0x3b000000, {v(t1)}")
        rbf2(t0, t1)
        a(f"v_add_f32 {v(t1)}, 0x{f2u(1e-5):08x}, {v(t1)}")
        rbf(t1)
        a(f"v_sqrt_f32 {v(t2)}, {v(t1)}")
        nop(1)
        a(f"v_rcp_f32 {v(t3)}, {v(t2)}")
        a(f"v_fma_f32 {v(vT)}, -{v(t2)}, {v(t2)}, {v(t1)}")
        a(f"v_mul_f32 {v(t3)}, 0.5, {v(t3)}")
        a(f"v_fma_f32 {v(t1)}, {v(vT)}, {v(t3)}, {v(t2)}")
        rbf(t1)
        a(f"v_rcp_f32 {v(t2)}, {v(t1)}")
        nop(1)
        a(f"v_fma_f32 {v(t3)}, -{v(t1)}, {v(t2)}, 1.0")
        a(f"v_fma_f32 {v(t2)}, {v(t3)}, {v(t2)}, {v(t2)}")
    def ln_apply2(r0, r1, tmp):
        a(f"v_sub_f32 {v(r0)}, {v(r0)}, {v(t0)}")
        a(f"v_sub_f32 {v(r1)}, {v(r1)}, {v(t0)}")
        rbf2(r0, r1)
        for r in (r0, r1):
            a(f"v_mul_f32 {v(tmp)}, {v(r)}, {v(t2)}")
            a(f"v_fma_f32 {v(r)}, -{v(tmp)}, {v(t1)}, {v(r)}")
            a(f"v_fma_f32 {v(r)}, {v(r)}, {v(t2)}, {v(tmp)}")
    def wo_issue(track=False):
        a(f"v_lshrrev_b32 {v(vT)}, 4, {v(vLANE)}")
        a(f"v_and_b32 {v(vT+1)}, 1, {v(vT)}")
        a(f"v_lshlrev_b32 {v(vT+1)}, 1, {v(vT+1)}")
        a(f"v_lshrrev_b32 {v(vT)}, 1, {v(vT)}")
        a(f"v_add_u32 {v(vT)}, {v(vT)}, {v(vT+1)}")
        a(f"v_lshlrev_b32 {v(vT)}, 10, {v(vT)}")
        a(f"v_and_b32 {v(vT+1)}, 15, {v(vLANE)}")
        a(f"v_lshl_add_u32 {v(vT)}, {v(vT+1)}, 4, {v(vT)}")
        a(f"s_lshl_b32 s{sT1}, s{sG}, 3")
        a(f"s_add_u32 s{sT1}, s{sT1}, s{sA}")
        a(f"s_lshl_b32 s{sT1}, s{sT1}, 2")
        a(f"s_add_u32 s{sT1}, s{sT1}, s{sWV}")
        a(f"s_lshl_b32 s{sT2}, s{sT1}, 12")
        a(f"s_add_u32 s{sT2}, s{sT2}, {WS_P2}")
        a(f"v_add_u32 {v(vA+8)}, s{sT2}, {v(vVOFF)}")
        a(f"s_lshl_b32 s{sT1}, s{sT1}, 14")
        a(f"s_lshl_b32 s{sT2}, s{sBH}, 8")
        a(f"s_add_u32 s{sT1}, s{sT1}, s{sT2}")
        a(f"v_add_u32 {v(vT+11)}, s{sT1}, {v(vT)}")
        a(f"v_add_u32 {v(vT+12)}, 0x1000, {v(vT+11)}")
        a(f"v_add_u32 {v(vT+13)}, 0x2000, {v(vT+11)}")
        a(f"v_add_u32 {v(vT+14)}, 0x3000, {v(vT+11)}")
        for u, r in enumerate((vT+11, vT+12, vT+13, vT+14)):
            ss = f"global_load_dwordx4 {vr(vWO+4*u,4)}, {v(r)}, {sp(sWO)} nt"
            vmem(ss, "wo") if track else a(ss)
        a(f"v_and_b32 {v(vT)}, 15, {v(vLANE)}")
        a(f"v_and_b32 {v(vT+1)}, 1, {v(vLANE)}")
        a(f"v_cmp_eq_u32 vcc, 1, {v(vT+1)}")
        a(f"v_mov_b32 {v(vT+2)}, 0xffff")
        a(f"v_mov_b32 {v(vT+3)}, 0xffff0000")
        a(f"v_cndmask_b32 {v(vT+2)}, {v(vT+2)}, {v(vT+3)}, vcc")
        a(f"v_lshrrev_b32 {v(vT+1)}, 1, {v(vT)}")
        for r in range(4):
            a(f"v_cmp_eq_u32 vcc, {r}, {v(vT+1)}")
            nop(2)
            a(f"v_cndmask_b32 {v(vMSK+r)}, 0, {v(vT+2)}, vcc")
        a(f"s_lshl_b32 s{sT1}, s{sWV}, 9")
        a(f"v_lshl_add_u32 {v(vT)}, {v(vT)}, 5, s{sT1}")
        a(f"v_bfe_u32 {v(vT+1)}, {v(vLANE)}, 4, 1")
        a(f"v_lshl_add_u32 {v(vA+7)}, {v(vT+1)}, 4, {v(vT)}")
    def tail_addr():
        a(f"s_lshl_b32 s{sT0}, s{sG}, 2")
        a(f"s_add_u32 s{sT0}, s{sT0}, s{sWV}")
        a(f"s_lshl_b32 s{sT1}, s{sT0}, 15")
        a(f"s_lshl_b32 s{sT2}, s{sI}, 7")
        a(f"s_add_u32 s{sT1}, s{sT1}, s{sT2}")
        a(f"s_add_u32 s{sT1}, s{sT1}, {WS_P2}")
        a(f"v_lshrrev_b32 {v(vT)}, 3, {v(vLANE)}")
        a(f"v_lshlrev_b32 {v(vT)}, 12, {v(vT)}")
        a(f"v_and_b32 {v(vT+1)}, 7, {v(vLANE)}")
        a(f"v_lshl_add_u32 {v(vT)}, {v(vT+1)}, 4, {v(vT)}")
        a(f"v_add_u32 {v(vA)}, s{sT1}, {v(vT)}")
        a(f"s_lshl_b32 s{sT1}, s{sWV}, 11")
        a(f"v_lshl_add_u32 {v(vA+1)}, {v(vLANE)}, 5, s{sT1}")
        a(f"v_bfe_u32 {v(vT+1)}, {v(vLANE)}, 2, 2")
        a(f"s_lshl_b32 s{sT1}, s{sWV}, 3")
        a(f"v_lshl_add_u32 {v(vA+2)}, {v(vT+1)}, 5, s{sT1}")
        a(f"s_lshl_b32 s{sT1}, s{sWV}, 5")
        a(f"v_mov_b32 {v(vA+3)}, s{sT1}")
        a(f"s_lshl_b32 s{sT1}, s{sWV}, 9")
        a(f"v_lshl_add_u32 {v(vA+4)}, {v(vLANE)}, 3, s{sT1}")
        a(f"v_and_b32 {v(vT)}, 1, {v(vLANE)}")
        a(f"v_lshlrev_b32 {v(vA+5)}, 4, {v(vT)}")
        a(f"v_and_b32 {v(vA+6)}, 2, {v(vLANE)}")
    def issue_tile(slot, soff, tag=None, track=True):
        for t in range(4):
            s = f"buffer_load_dwordx4 {slot_reg(slot,4*t,4)}, {v(vKOFF)}, {sq(srdK)}, {soff} offen offset:{64*t} nt"
            vmem(s, ("K", tag)) if track else a(s)
        for u in range(4):
            s = f"buffer_load_dwordx4 {slot_reg(slot,16+4*u,4)}, {v(vVOFF)}, {sq(srdV)}, {soff} offen offset:{1024*u} nt"
            vmem(s, ("V", tag)) if track else a(s)
    TSTR = 12 * 4096
    NDYN = 2 * (512 - NS * 12)
    uid = [0]
    def next_tile(ns, tag=None, track=False):
        u = uid[0]; uid[0] += 1
        if G.dyn:
            a(f"s_cmp_lt_u32 s{sN}, {NS}")
            a(f"s_cbranch_scc1 L_st{u}")
            a(f"s_waitcnt lgkmcnt({G.P-1})")
            a(f"s_cmp_lg_u32 s{sTK+ns}, 1")
            a(f"s_cbranch_scc1 L_tk{u}")
            a("s_waitcnt lgkmcnt(0)")
            lab(f"L_tk{u}")
            a(f"s_and_b32 s{sT1}, s{sTK+ns}, 1")
            a(f"s_lshl_b32 s{sT1}, s{sT1}, 21")
            a(f"s_and_b32 s{sSTAT}, s{sTK+ns}, 0xfffe")
            a(f"s_lshl_b32 s{sSTAT}, s{sSTAT}, 11")
            a(f"s_add_u32 s{sSTAT}, s{sSTAT}, s{sT1}")
            a(f"s_add_u32 s{sSTAT}, s{sSTAT}, s{sDYNB}")
            a(f"s_cmp_ge_u32 s{sTK+ns}, {CNT_BIAS + NDYN}")
            a(f"s_cselect_b32 s{sEXH}, 0x{LIM:x}, s{sEXH}")
            a(f"s_max_u32 s{sSTAT}, s{sSTAT}, s{sEXH}")
            lab(f"L_st{u}")
            a(f"s_mov_b32 s{sOFF+ns}, s{sSTAT}")
            a(f"s_add_u32 s{sSTAT}, s{sSTAT}, {TSTR}")
            a(f"s_add_u32 s{sN}, s{sN}, 1")
            a(f"s_cmp_lg_u32 s{sEXH}, 0")
            a(f"s_cbranch_scc1 L_nq{u}")
            a(f"s_cmp_lt_u32 s{sN}, {NS - G.P + 1}")
            a(f"s_cbranch_scc1 L_nq{u}")
            a(f"s_mov_b32 s{sTK+(ns+G.P)%4}, 1")
            a(f"s_atomic_add s{sTK+(ns+G.P)%4}, {sp(sWS)}, s{sCNTOFF} glc")
            lab(f"L_nq{u}")
        else:
            a(f"s_cmp_ge_u32 s{sSTAT}, s{sDYNB}")
            a(f"s_cselect_b32 s{sOFF+ns}, 0x{LIM:x}, s{sSTAT}")
            a(f"s_add_u32 s{sSTAT}, s{sSTAT}, {TSTR}")
        issue_tile(ns, f"s{sOFF+ns}", tag, track)

    a("s_cmp_ge_u32 s2, 256")
    a("s_cbranch_scc1 L_end")
    if G.stamps: a(f"s_memrealtime {sp(sTS0)}")
    a("s_load_dwordx16 s[16:31], s[0:1], 0")
    a("s_load_dwordx8 s[32:39], s[0:1], 64")
    a("s_load_dwordx2 s[40:41], s[0:1], 96")
    a(f"v_and_b32 {v(vLANE)}, 63, v0")
    a(f"v_lshrrev_b32 {v(vT)}, 6, v0")
    a(f"s_and_b32 s{sA}, s2, 7")
    a(f"v_readfirstlane_b32 s{sWV}, {v(vT)}")
    a(f"s_lshr_b32 s{sB}, s2, 3")
    a(f"v_lshlrev_b32 {v(vVOFF)}, 4, {v(vLANE)}")
    a(f"s_and_b32 s{sG}, s{sB}, 7")
    a(f"s_lshr_b32 s{sBH}, s{sB}, 3")
    a(f"s_lshl_b32 s{sT0}, s{sBH}, 3")
    a(f"s_add_u32 s{sI}, s{sT0}, s{sA}")
    a(f"s_mov_b32 s{sLOG2E}, 0x{f2u(LOG2E):08x}")
    a(f"s_mov_b32 s{sN}, 0")
    a(f"s_cmp_lg_u32 s{sWV}, 0")
    a("s_cbranch_scc1 L_stream")
    a(f"v_lshrrev_b32 {v(vT)}, 3, {v(vLANE)}")
    a(f"v_lshlrev_b32 {v(vT)}, 17, {v(vT)}")
    a(f"v_and_b32 {v(vT+1)}, 7, {v(vLANE)}")
    a(f"v_lshl_add_u32 {v(vT)}, {v(vT+1)}, 4, {v(vT)}")
    a(f"s_lshl_b32 s{sT1}, s{sA}, 3")
    a(f"s_add_u32 s{sT3}, s{sT1}, s{sG}")
    a(f"s_lshl_b32 s{sT1}, s{sT3}, 7")
    a(f"s_lshl_b32 s{sT2}, s{sBH}, 20")
    a(f"s_add_u32 s{sT1}, s{sT1}, s{sT2}")
    a(f"v_add_u32 {v(vT+16)}, s{sT1}, {v(vT)}")
    a(f"v_add_u32 {v(vT+17)}, 0x2000, {v(vT+16)}")
    a(f"s_lshl_b32 s{sT1}, s{sA}, 2")
    a(f"s_and_b32 s{sT2}, s{sG}, 3")
    a(f"s_add_u32 s{sT1}, s{sT1}, s{sT2}")
    a(f"s_mul_i32 s{sT1}, s{sT1}, {CNT_STRIDE}")
    a(f"s_add_u32 s{sT1}, s{sT1}, {WS_CNT}")
    a(f"v_mov_b32 {v(vT+9)}, s{sT1}")
    a(f"v_mov_b32 {v(vT+10)}, 0x{CNT_BIAS:x}")
    a(f"v_and_b32 {v(vT+27)}, 1, {v(vLANE)}")
    a(f"v_mul_u32_u24 {v(vT+27)}, {WS_EPH - WS_EP}, {v(vT+27)}")
    a(f"v_add_u32 {v(vT+27)}, {WS_EP}, {v(vT+27)}")
    a("s_waitcnt lgkmcnt(0)")
    vmem(f"global_load_dwordx4 {vr(vW,4)}, {v(vVOFF)}, {sp(sX)}", "x")
    vmem(f"global_load_dword {v(vT+27)}, {v(vT+27)}, {sp(sWS)} sc1", "ep")
    W0 = vW + 4
    for j in range(8):
        vmem(f"global_load_dwordx4 {vr(W0+8*j,4)}, {v(vT+16)}, {sp(sWQ)} nt", ("wq", j))
        vmem(f"global_load_dwordx4 {vr(W0+8*j+4,4)}, {v(vT+17)}, {sp(sWQ)} nt", ("wq", j))
        if j < 7:
            a(f"v_add_u32 {v(vT+16)}, 0x4000, {v(vT+16)}")
            a(f"v_add_u32 {v(vT+17)}, 0x4000, {v(vT+17)}")
        if G.hstart and j == G.hstart - 1: a("s_barrier")
        if j == 3:
            a("s_mov_b64 exec, 1")
            vmem(f"global_store_dword {v(vT+9)}, {v(vT+10)}, {sp(sWS)} sc1", "clr")
            a("s_mov_b64 exec, -1")
    a(f"s_lshl_b32 s{sT1}, s{sA}, 2")
    a(f"s_add_u32 s{sT1}, s{sT1}, s{sBH}")
    a(f"s_lshl_b32 s{sT1}, s{sT1}, 3")
    a(f"s_add_u32 s{sT1}, s{sT1}, s{sG}")
    a(f"s_lshl_b32 s{sT1}, s{sT1}, 9")
    a(f"s_add_u32 s{sT1}, s{sT1}, {WS_Q}")
    a(f"v_and_b32 {v(vT)}, 7, {v(vLANE)}")
    a(f"v_lshrrev_b32 {v(vT+1)}, 4, {v(vLANE)}")
    a(f"v_lshl_add_u32 {v(vT)}, {v(vT)}, 2, {v(vT+1)}")
    a(f"v_lshl_add_u32 {v(vT+21)}, {v(vT)}, 4, s{sT1}")
    a(f"s_lshl_b32 s{sT2}, s{sG}, 14")
    a(f"s_add_u32 s{sT2}, s{sT2}, {WS_Q}")
    a(f"v_add_u32 {v(vT+22)}, s{sT2}, {v(vVOFF)}")
    a(f"v_add_u32 {v(vT+23)}, 0x1000, {v(vT+22)}")
    a(f"v_add_u32 {v(vT+24)}, 0x2000, {v(vT+22)}")
    a(f"v_add_u32 {v(vT+25)}, 0x3000, {v(vT+22)}")
    a(f"v_and_b32 {v(vT)}, 31, {v(vLANE)}")
    a(f"v_lshl_add_u32 {v(vT+26)}, {v(vT)}, 9, s{sT2}")
    a(f"s_lshl_b32 s{sC0}, s{sA}, 6")
    a(f"s_lshl_b32 s{sT1}, s{sB}, 1")
    a(f"s_add_u32 s{sC0}, s{sC0}, s{sT1}")
    wait_vm("x")
    stamp(0)
    unpack8(F, vW)
    ln_stats(F)
    for j in range(4):
        ln_apply2(F+2*j, F+2*j+1, vT)
        a(f"v_cvt_pk_bf16_f32 {v(vW+j)}, {v(F+2*j)}, {v(F+2*j+1)}")
    a(f"ds_write_b128 {v(vVOFF)}, {vr(vW,4)} offset:{LDS_XN}")
    a(f"s_mov_b32 s{sT1}, 0x05040100")
    a(f"s_mov_b32 s{sT2}, 0x07060302")
    XN = vX
    a(f"v_lshrrev_b32 {v(vT+1)}, 3, {v(vLANE)}")
    a(f"s_lshl_b32 s{sT0}, s{sBH}, 8")
    a(f"v_lshl_add_u32 {v(vT+1)}, {v(vT+1)}, 5, s{sT0}")
    a(f"ds_read_b128 {vr(XN,4)}, {v(vT+1)} offset:{LDS_XN}")
    a(f"ds_read_b128 {vr(XN+4,4)}, {v(vT+1)} offset:{LDS_XN+16}")
    ACC = vQ; PT = vQ + 8
    for j in range(8):
        wait_vm(("wq", j))
        if j == 0: stamp(1)
        ra, rb = W0 + 8*j, W0 + 8*j + 4
        for d in range(4):
            a(f"v_perm_b32 {v(PT+2*d)}, {v(rb+d)}, {v(ra+d)}, s{sT1}")
            a(f"v_perm_b32 {v(PT+2*d+1)}, {v(rb+d)}, {v(ra+d)}, s{sT2}")
        if j == 0: a("s_waitcnt lgkmcnt(0)")
        for cidx in range(8):
            cc = "0" if j == 0 else v(ACC+cidx)
            a(f"v_dot2_f32_bf16 {v(ACC+cidx)}, {v(PT+cidx)}, {v(XN+j)}, {cc}")
    a(f"v_readlane_b32 s{sTAGL}, {v(vT+27)}, 0")
    a(f"v_readlane_b32 s{sTAGH}, {v(vT+27)}, 1")
    tags()
    for cidx in range(4):
        a(f"v_permlane32_swap_b32 {v(ACC+cidx)}, {v(ACC+cidx+4)}")
    nop(1)
    for cidx in range(4):
        a(f"v_add_f32 {v(ACC+cidx)}, {v(ACC+cidx)}, {v(ACC+cidx+4)}")
    nop(1)
    for cidx in range(2):
        a(f"v_permlane16_swap_b32 {v(ACC+cidx)}, {v(ACC+cidx+2)}")
    nop(1)
    for cidx in range(2):
        a(f"v_add_f32 {v(ACC+cidx)}, {v(ACC+cidx)}, {v(ACC+cidx+2)}")
    a(f"v_mov_b32 {v(ACC+2)}, s{sTAGL}")
    a(f"v_add_f32_dpp {v(ACC)}, {v(ACC)}, {v(ACC)} row_ror:8 {DPP}")
    a(f"v_add_f32_dpp {v(ACC+1)}, {v(ACC+1)}, {v(ACC+1)} row_ror:8 {DPP}")
    a(f"v_mov_b32 {v(ACC+3)}, s{sTAGH}")
    stamp(2)
    a("s_mov_b32 exec_lo, 0x00ff00ff")
    a("s_mov_b32 exec_hi, 0x00ff00ff")
    a(f"global_store_dwordx4 {v(vT+21)}, {vr(ACC,4)}, {sp(sWS)} sc1")
    a("s_mov_b64 exec, -1")
    a(f"v_mov_b32 {v(vT)}, 0")
    a(f"ds_write_b64 {v(vT)}, {vr(ACC+2,2)} offset:{LDS_TG}")
    stamp(3)
    unpack8(F, vW)
    ln_stats(F)
    a(f"s_lshl_b32 s{sT2}, s{sC0}, 1")
    a(f"v_mov_b32 {v(vT+1)}, s{sT2}")
    a(f"ds_read_b32 {v(vT+4)}, {v(vT+1)} offset:{LDS_XN}")
    a(f"s_load_dword s{sXD}, {sp(sX)}, s{sT2}")
    h0, h1 = vG, vG+1
    a("s_waitcnt lgkmcnt(0)")
    a(f"v_lshlrev_b32 {v(h0)}, 16, {v(vT+4)}")
    a(f"v_and_b32 {v(h1)}, 0xffff0000, {v(vT+4)}")
    ln_apply2(h0, h1, vT)
    rbf2(h0, h1)
    QB = vW + 8
    a(f"s_mov_b32 s{sT3}, 0")
    if G.nolight:
        if G.ack & 1: a("s_waitcnt vmcnt(0)")
        elif G.q_first: a(f"s_sleep {G.q_first}")
        for ks in range(4):
            for m in range(4):
                a(f"global_load_dwordx4 {vr(QB+16*ks+4*m,4)}, {v(vT+22+ks)}, {sp(sWS)} offset:{1024*m} sc1")
        lab("L_pollQ")
        a("s_mov_b32 s62, 0")
        a("s_waitcnt vmcnt(0)")
        for k in range(16):
            a(f"v_xor_b32 {v(vT+1)}, s{sTAGL}, {v(QB+4*k+2)}")
            a(f"v_xor_b32 {v(vT+2)}, s{sTAGH}, {v(QB+4*k+3)}")
            a(f"v_or_b32 {v(vT)}, {v(vT+1)}, {v(vT+2)}")
            a(f"v_cmp_ne_u32 vcc, 0, {v(vT)}")
            a(f"s_cbranch_vccz L_pq{k}")
            a("s_mov_b64 exec, vcc")
            a(f"global_load_dwordx4 {vr(QB+4*k,4)}, {v(vT+22+k//4)}, {sp(sWS)} offset:{1024*(k%4)} sc1")
            a("s_mov_b64 exec, -1")
            a("s_mov_b32 s62, 1")
            lab(f"L_pq{k}")
        a("s_cmp_eq_u32 s62, 0")
        a("s_cbranch_scc1 L_pollQ_done")
        poll_tail("L_pollQ", G.q_sleep)
    else:
        a("s_mov_b64 exec, 0xffffffff")
        lab("L_pollL")
        a(f"global_load_dwordx2 {vr(QB,2)}, {v(vT+26)}, {sp(sWS)} offset:504 sc1")
        a("s_waitcnt vmcnt(0)")
        a(f"v_cmp_ne_u32 vcc, s{sTAGH}, {v(QB+1)}")
        a("s_and_b64 exec, exec, vcc")
        a("s_cbranch_execz L_pollL_done")
        poll_tail("L_pollL", G.q_sleep)
        lab("L_pollL_done")
        a("s_mov_b64 exec, -1")
        a(f"s_mov_b32 s{sT3}, 0")
        lab("L_pollQ")
        for ks in range(4):
            for m in range(4):
                a(f"global_load_dwordx4 {vr(QB+16*ks+4*m,4)}, {v(vT+22+ks)}, {sp(sWS)} offset:{1024*m} sc1")
        a("s_waitcnt vmcnt(0)")
        a(f"v_mov_b32 {v(vT)}, 0")
        for k in range(16):
            a(f"v_xor_b32 {v(vT+1)}, s{sTAGL}, {v(QB+4*k+2)}")
            a(f"v_xor_b32 {v(vT+2)}, s{sTAGH}, {v(QB+4*k+3)}")
            a(f"v_or3_b32 {v(vT)}, {v(vT)}, {v(vT+1)}, {v(vT+2)}")
        a(f"v_cmp_ne_u32 vcc, 0, {v(vT)}")
        a("s_and_b64 exec, exec, vcc")
        a("s_cbranch_execz L_pollQ_done")
        poll_tail("L_pollQ", G.q_sleep)
    lab("L_pollQ_done")
    a("s_mov_b64 exec, -1")
    stamp(4)
    a(f"v_lshlrev_b32 {v(vT)}, 2, {v(vLANE)}")
    for m in range(4):
        for e in range(2):
            a(f"v_add_f32 {v(QB+4*m+e)}, {v(QB+4*m+e)}, {v(QB+16+4*m+e)}")
            a(f"v_add_f32 {v(QB+32+4*m+e)}, {v(QB+32+4*m+e)}, {v(QB+48+4*m+e)}")
            a(f"v_add_f32 {v(QB+4*m+e)}, {v(QB+4*m+e)}, {v(QB+32+4*m+e)}")
        a(f"v_cvt_pk_bf16_f32 {v(QB+4*m)}, {v(QB+4*m)}, {v(QB+4*m+1)}")
        a(f"ds_write_b32 {v(vT)}, {v(QB+4*m)} offset:{LDS_Q + 256*m}")
    a("s_waitcnt lgkmcnt(0)")
    a("s_barrier")
    stamp(5)
    if G.stamps: a(f"s_memrealtime {sp(sTS0+2)}")
    wo_issue()
    a(f"v_mov_b32 {v(vT+20)}, 0")
    a(f"global_load_ushort {v(vMASK)}, {v(vT+20)}, {sp(sB2)}")
    y0, y1 = vX+2, vX+3
    a(f"v_mov_b32 {v(y0)}, 0")
    a(f"v_mov_b32 {v(y1)}, 0")
    K1 = 2.0 * math.sqrt(2.0 / math.pi) * LOG2E
    a(f"s_mov_b32 s{sT1}, 0x{f2u(-K1*0.044715):08x}")
    a(f"v_mov_b32 {v(vT+5)}, 0x{f2u(-K1):08x}")
    a(f"v_lshlrev_b32 {v(vT+6)}, 3, {v(vLANE)}")
    a(f"s_mov_b32 s{sT2}, 0")
    BW = vW
    wv1, bv1, wv2 = vX+4, vX+5, vX+6
    u0, u1, e0, e1 = vT, vT+1, vT+2, vT+3
    lab("L_bloop")
    a(f"global_load_dwordx2 {vr(BW,2)}, {v(vT+6)}, {sp(sW1)}")
    a(f"global_load_dwordx2 {vr(BW+2,2)}, {v(vT+6)}, {sp(sB1)}")
    a(f"global_load_dwordx2 {vr(BW+4,2)}, {v(vT+6)}, {sp(sW2)}")
    a(f"v_add_u32 {v(vT+6)}, 512, {v(vT+6)}")
    a("s_waitcnt vmcnt(0)")
    for j in range(4):
        d, hi = j // 2, j % 2
        for (dst, src) in ((wv1, BW+d), (bv1, BW+2+d), (wv2, BW+4+d)):
            if hi: a(f"v_and_b32 {v(dst)}, 0xffff0000, {v(src)}")
            else:  a(f"v_lshlrev_b32 {v(dst)}, 16, {v(src)}")
        a(f"v_mul_f32 {v(u0)}, {v(h0)}, {v(wv1)}")
        a(f"v_mul_f32 {v(u1)}, {v(h1)}, {v(wv1)}")
        rbf2(u0, u1)
        a(f"v_add_f32 {v(u0)}, {v(u0)}, {v(bv1)}")
        a(f"v_add_f32 {v(u1)}, {v(u1)}, {v(bv1)}")
        rbf2(u0, u1)
        a(f"v_mul_f32 {v(e0)}, {v(u0)}, {v(u0)}")
        a(f"v_mul_f32 {v(e1)}, {v(u1)}, {v(u1)}")
        a(f"v_fma_f32 {v(e0)}, {v(e0)}, s{sT1}, {v(vT+5)}")
        a(f"v_fma_f32 {v(e1)}, {v(e1)}, s{sT1}, {v(vT+5)}")
        a(f"v_mul_f32 {v(e0)}, {v(e0)}, {v(u0)}")
        a(f"v_mul_f32 {v(e1)}, {v(e1)}, {v(u1)}")
        a(f"v_exp_f32 {v(e0)}, {v(e0)}")
        a(f"v_exp_f32 {v(e1)}, {v(e1)}")
        nop(1)
        a(f"v_add_f32 {v(e0)}, 1.0, {v(e0)}")
        a(f"v_add_f32 {v(e1)}, 1.0, {v(e1)}")
        a(f"v_rcp_f32 {v(e0)}, {v(e0)}")
        a(f"v_rcp_f32 {v(e1)}, {v(e1)}")
        nop(1)
        a(f"v_mul_f32 {v(e0)}, {v(e0)}, {v(u0)}")
        a(f"v_mul_f32 {v(e1)}, {v(e1)}, {v(u1)}")
        rbf2(e0, e1)
        a(f"v_fmac_f32 {v(y0)}, {v(e0)}, {v(wv2)}")
        a(f"v_fmac_f32 {v(y1)}, {v(e1)}, {v(wv2)}")
    a(f"s_add_u32 s{sT2}, s{sT2}, 1")
    a(f"s_cmp_lt_u32 s{sT2}, 7")
    a("s_cbranch_scc1 L_bloop")
    allred64("v_add_f32", y0, vT)
    allred64("v_add_f32", y1, vT)
    a(f"v_lshlrev_b32 {v(vT+2)}, 16, {v(vMASK)}")
    rbf2(y0, y1)
    a(f"v_add_f32 {v(y0)}, {v(y0)}, {v(vT+2)}")
    a(f"v_add_f32 {v(y1)}, {v(y1)}, {v(vT+2)}")
    rbf2(y0, y1)
    g0, g1 = vG, vG+1
    a(f"v_mul_f32 {v(e0)}, s{sLOG2E}, {v(y0)}")
    a(f"v_mul_f32 {v(e1)}, s{sLOG2E}, {v(y1)}")
    a(f"v_exp_f32 {v(e0)}, -{v(e0)}")
    a(f"v_exp_f32 {v(e1)}, -{v(e1)}")
    nop(1)
    a(f"v_add_f32 {v(e0)}, 1.0, {v(e0)}")
    a(f"v_add_f32 {v(e1)}, 1.0, {v(e1)}")
    a(f"v_rcp_f32 {v(e0)}, {v(e0)}")
    a(f"v_rcp_f32 {v(e1)}, {v(e1)}")
    nop(1)
    a(f"v_mul_f32 {v(g0)}, {v(y0)}, {v(e0)}")
    a(f"v_mul_f32 {v(g1)}, {v(y1)}, {v(e1)}")
    rbf2(g0, g1)
    tail_addr()
    a(f"s_lshl_b32 s{sT2}, s{sG}, 3")
    a(f"s_add_u32 s{sT2}, s{sT2}, s{sA}")
    a(f"s_lshl_b32 s{sT2}, s{sT2}, 12")
    a(f"s_lshl_b32 s{sT1}, s{sBH}, 10")
    a(f"s_add_u32 s{sT1}, s{sT1}, s{sT2}")
    a(f"s_add_u32 s{sT1}, s{sT1}, {WS_S2}")
    a(f"v_add_u32 {v(vA+9)}, s{sT1}, {v(vVOFF)}")
    a(f"s_lshl_b32 s{sT1}, s{sC0}, 3")
    a(f"s_add_u32 s{sT1}, s{sT1}, {WS_S2}")
    a(f"v_lshl_add_u32 {v(vPA)}, {v(vLANE)}, 12, s{sT1}")
    a(f"v_lshlrev_b32 {v(vPA+1)}, 3, {v(vLANE)}")
    a(f"s_lshl_b32 s{sT1}, s{sC0}, 1")
    a(f"v_mov_b32 {v(vA+10)}, s{sT1}")
    a(f"s_lshl_b32 s{sT1}, s{sXD}, 16")
    a(f"s_and_b32 s{sT2}, s{sXD}, 0xffff0000")
    a(f"v_mov_b32 {v(vA+11)}, s{sT1}")
    a(f"v_mov_b32 {v(vA+12)}, s{sT2}")
    a(f"s_mov_b32 s{sT0}, 0x05040100")
    if G.stamps: a(f"s_memrealtime s[100:101]")
    a("s_branch L_tail")

    lab("L_stream")
    G.vm = []
    a(f"v_and_b32 {v(vT)}, 3, {v(vLANE)}")
    a(f"v_lshlrev_b32 {v(vT)}, 2, {v(vT)}")
    a(f"v_bfe_u32 {v(vT+1)}, {v(vLANE)}, 2, 2")
    a(f"v_add_u32 {v(vT)}, {v(vT)}, {v(vT+1)}")
    a(f"v_lshlrev_b32 {v(vT)}, 8, {v(vT)}")
    a(f"v_lshrrev_b32 {v(vT+1)}, 4, {v(vLANE)}")
    a(f"v_lshl_add_u32 {v(vKOFF)}, {v(vT+1)}, 4, {v(vT)}")
    a(f"s_mul_i32 s{sSTAT}, s{sBH}, 3")
    a(f"s_add_u32 s{sSTAT}, s{sSTAT}, s{sWV}")
    a(f"s_sub_u32 s{sSTAT}, s{sSTAT}, 1")
    a(f"s_lshl_b32 s{sSTAT}, s{sSTAT}, 12")
    a(f"s_lshl_b32 s{sT1}, s{sG}, 24")
    a(f"s_lshl_b32 s{sT2}, s{sA}, 21")
    a(f"s_add_u32 s{sSTAT}, s{sSTAT}, s{sT2}")
    a("s_waitcnt lgkmcnt(0)")
    for srd, ptr in ((srdK, sK), (srdV, sV)):
        a(f"s_add_u32 s{srd}, s{ptr}, s{sT1}")
        a(f"s_addc_u32 s{srd+1}, s{ptr+1}, 0")
        a(f"s_and_b32 s{srd+1}, s{srd+1}, 0xffff")
        a(f"s_mov_b32 s{srd+2}, 0x{LIM:x}")
        a(f"s_mov_b32 s{srd+3}, 0x20000")
    if G.hstart: a("s_barrier")
    def setup_consts():
        Z = 0x0c0c0c0c
        lo_to_lo, lo_to_hi = 0x0c0c0100, 0x01000c0c
        hi_to_lo, hi_to_hi = 0x0c0c0302, 0x03020c0c
        a(f"v_and_b32 {v(vT+1)}, 3, {v(vLANE)}")
        for k in range(4): a(f"v_mov_b32 {v(vSEL+k)}, 0x{Z:08x}")
        for jp, (sr, val_lo, val_hi) in enumerate(((0, lo_to_lo, hi_to_lo), (0, lo_to_hi, hi_to_hi), (1, lo_to_lo, hi_to_lo), (1, lo_to_hi, hi_to_hi))):
            a(f"v_cmp_eq_u32 vcc, {jp}, {v(vT+1)}")
            a(f"v_mov_b32 {v(vT+2)}, 0x{val_lo:08x}")
            a(f"v_mov_b32 {v(vT+3)}, 0x{val_hi:08x}")
            a(f"v_cndmask_b32 {v(vSEL+sr)}, {v(vSEL+sr)}, {v(vT+2)}, vcc")
            a(f"v_cndmask_b32 {v(vSEL+2+sr)}, {v(vSEL+2+sr)}, {v(vT+3)}, vcc")
        for k in range(8): a(f"v_mov_b32 {v(vO+k)}, 0")
        a(f"v_mov_b32 {v(vNM)}, 0")
        a(f"v_mov_b32 {v(vL)}, 0")
        a(f"s_mov_b32 s{sTHR}, 0xff800000")
        a(f"s_mov_b32 s{sFLOOR}, 0xff7fffff")
        a(f"s_mov_b32 s{sSCALE}, 0x{f2u(SCALE):08x}")
        a(f"s_mov_b32 s{sEXH}, 0")
        a(f"s_mov_b32 s{sN}, {R}")
        a(f"s_add_u32 s{sT1}, s{sBH}, s{sA}")
        a(f"s_and_b32 s{sT1}, s{sT1}, 3")
        if G.dyn:
            a(f"s_lshl_b32 s{sDYNB}, s{sT1}, 22")
            a(f"s_add_u32 s{sDYNB}, s{sDYNB}, {NS*TSTR}")
        else:
            a(f"s_add_u32 s{sDYNB}, s{sA}, 1")
            a(f"s_lshl_b32 s{sDYNB}, s{sDYNB}, 21")
        a(f"s_lshl_b32 s{sT2}, s{sG}, 2")
        a(f"s_add_u32 s{sT2}, s{sT2}, s{sT1}")
        a(f"s_mul_i32 s{sCNTOFF}, s{sT2}, {CNT_STRIDE}")
        a(f"s_add_u32 s{sCNTOFF}, s{sCNTOFF}, {WS_CNT}")
        for k in range(4): a(f"s_mov_b32 s{sTK+k}, 0")
        a(f"v_bfe_u32 {v(vT+8)}, {v(vLANE)}, 2, 2")
        a(f"v_lshlrev_b32 {v(vT+8)}, 8, {v(vT+8)}")
        a(f"v_lshrrev_b32 {v(vT+1)}, 4, {v(vLANE)}")
        a(f"v_lshl_add_u32 {v(vT+8)}, {v(vT+1)}, 4, {v(vT+8)}")
    for n in range(R):
        if n >= A:
            wait_vm(("K", n - A))
        issue_tile(n, f"s{sSTAT}", n)
        a(f"s_add_u32 s{sSTAT}, s{sSTAT}, {TSTR}")
        if n == A - 1:
            setup_consts()
        if n == 3:
            tail_addr()
            wo_issue(track=True)
        if G.stamps and not G.tstamps and n in (1, 3, 5, 7, 9, 11): a(f"s_memrealtime s[{4+2*(n//2)}:{5+2*(n//2)}]")
    a("s_barrier")
    for t in range(4):
        a(f"ds_read_b128 {vr(vQ+4*t,4)}, {v(vT+8)} offset:{LDS_Q + 64*t}")
    a(f"v_mov_b32 {v(vT)}, 0")
    a(f"ds_read_b64 {vr(vT+2,2)}, {v(vT)} offset:{LDS_TG}")
    if G.stamps: a(f"s_memrealtime {sp(sTS0+2)}")
    a("s_waitcnt lgkmcnt(0)")
    a(f"v_readfirstlane_b32 s{sTAGL}, {v(vT+2)}")
    a(f"v_readfirstlane_b32 s{sTAGH}, {v(vT+3)}")
    a(f"s_and_b32 s{sTG16}, s{sTAGL}, 0xffff0000")

    rare_id = [0]
    def compute_qk(slot):
        for t in range(4):
            cc = "0" if t == 0 else vr(vS, 4)
            a(f"v_mfma_f32_16x16x32_bf16 {vr(vS,4)}, {slot_reg(slot,4*t,4)}, {vr(vQ+4*t,4)}, {cc}")
    def softmax():
        rid = rare_id[0]; rare_id[0] += 1
        p01, p23 = vT, vT+1
        b = vT + 2
        a(f"v_cvt_pk_bf16_f32 {v(p01)}, {v(vS)}, {v(vS+1)}")
        a(f"v_cvt_pk_bf16_f32 {v(p23)}, {v(vS+2)}, {v(vS+3)}")
        a(f"v_lshlrev_b32 {v(b)}, 16, {v(p01)}")
        a(f"v_and_b32 {v(b+1)}, 0xffff0000, {v(p01)}")
        a(f"v_lshlrev_b32 {v(b+2)}, 16, {v(p23)}")
        a(f"v_and_b32 {v(b+3)}, 0xffff0000, {v(p23)}")
        for k in range(4): a(f"v_mul_f32 {v(b+k)}, s{sSCALE}, {v(b+k)}")
        a(f"v_cvt_pk_bf16_f32 {v(p01)}, {v(b)}, {v(b+1)}")
        a(f"v_cvt_pk_bf16_f32 {v(p23)}, {v(b+2)}, {v(b+3)}")
        a(f"v_lshlrev_b32 {v(b)}, 16, {v(p01)}")
        a(f"v_and_b32 {v(b+1)}, 0xffff0000, {v(p01)}")
        a(f"v_lshlrev_b32 {v(b+2)}, 16, {v(p23)}")
        a(f"v_and_b32 {v(b+3)}, 0xffff0000, {v(p23)}")
        for k in range(4): a(f"v_fma_f32 {v(b+k)}, {v(b+k)}, s{sLOG2E}, {v(vNM)}")
        mx = vT + 6
        a(f"v_max3_f32 {v(mx)}, {v(b)}, {v(b+1)}, {v(b+2)}")
        a(f"v_max_f32 {v(mx)}, {v(mx)}, {v(b+3)}")
        a(f"v_cmp_lt_f32 vcc, s{sTHR}, {v(mx)}")
        a(f"s_cbranch_vccz L_back{rid}")
        a(f"s_call_b64 {sp(sPC)}, L_rare")
        lab(f"L_back{rid}")
        for k in range(4): a(f"v_exp_f32 {v(b+k)}, {v(b+k)}")
        nop(1)
        a(f"v_cvt_pk_bf16_f32 {v(p01)}, {v(b)}, {v(b+1)}")
        a(f"v_cvt_pk_bf16_f32 {v(p23)}, {v(b+2)}, {v(b+3)}")
        a(f"v_add_f32 {v(b)}, {v(b)}, {v(b+1)}")
        a(f"v_add_f32 {v(b+2)}, {v(b+2)}, {v(b+3)}")
        for k in range(4): a(f"v_perm_b32 {v(vX+k)}, {v(p01)}, {v(p01)}, {v(vSEL+k)}")
        for k in range(4): a(f"v_perm_b32 {v(vX+4+k)}, {v(p23)}, {v(p23)}, {v(vSEL+k)}")
        a(f"v_add_f32 {v(b)}, {v(b)}, {v(b+2)}")
        a(f"v_add_f32 {v(vL)}, {v(vL)}, {v(b)}")
    def compute_pv(slot):
        for u in range(4):
            a(f"v_mfma_f32_16x16x16_bf16 {vr(vO,4)}, {vr(vX+2*u,2)}, {slot_reg(slot,16+4*u,2)}, {vr(vO,4)}")
            a(f"v_mfma_f32_16x16x16_bf16 {vr(vO+4,4)}, {vr(vX+2*u,2)}, {slot_reg(slot,16+4*u+2,2)}, {vr(vO+4,4)}")

    k_iss = 0
    for n in range(R + E - A):
        slot = n if n < R else n - R
        c(f"catch-up step {n}")
        wait_vm(("K", n))
        compute_qk(slot)
        nop(8)
        softmax()
        wait_vm(("V", n))
        compute_pv(slot)
        if n in G.cu_issue:
            assert k_iss <= n
            next_tile(k_iss, R + k_iss, track=True)
            k_iss += 1
    assert k_iss == E
    lab("L_loop")
    for k in range(4):
        s = (E - A + k) % 4
        c(f"steady step slot {s}")
        ns = (s + A) % 4
        a(f"s_cmp_ge_u32 s{sOFF+s}, 0x{LIM:x}")
        a("s_cbranch_scc1 L_done")
        a(f"s_waitcnt vmcnt({8*A-4})")
        compute_qk(s)
        next_tile(ns)
        softmax()
        a(f"s_waitcnt vmcnt({8*A})")
        compute_pv(s)
    a("s_branch L_loop")

    lab("L_rare")
    b = vT + 2; mx = vT + 6; t = vT + 7; f = vT + 8
    allred_rows("v_max_f32", mx, t)
    a(f"v_max_f32 {v(mx)}, s{sFLOOR}, {v(mx)}")
    for k in range(4): a(f"v_sub_f32 {v(b+k)}, {v(b+k)}, {v(mx)}")
    a(f"v_sub_f32 {v(vNM)}, {v(vNM)}, {v(mx)}")
    a(f"v_max_f32 {v(t)}, 0, {v(mx)}")
    a(f"v_exp_f32 {v(t)}, -{v(t)}")
    nop(1)
    a(f"v_mul_f32 {v(vL)}, {v(vL)}, {v(t)}")
    nop(1)
    for h in range(4):
        a(f"v_mov_b32_dpp {v(f)}, {v(t)} row_newbcast:{4*h} row_mask:0x{1<<h:x} bank_mask:0xf")
    for k in range(8): a(f"v_mul_f32 {v(vO+k)}, {v(vO+k)}, {v(f)}")
    a(f"s_mov_b32 s{sTHR}, 0x{f2u(G.T):08x}")
    a(f"s_mov_b32 s{sFLOOR}, 0")
    a(f"s_setpc_b64 {sp(sPC)}")

    def stageA():
        a(f"v_cmp_ne_u32 vcc, 0, {v(vA+6)}")
        a("s_waitcnt lgkmcnt(0)")
        tstamp(0)
        a("s_barrier")
        if G.tstamps:
            tstamp(1); a("s_waitcnt lgkmcnt(0)")
        a(f"ds_read_b64 {vr(vQ+2,2)}, {v(vA+3)} offset:{LDS_ML+8}")
        a(f"ds_read_b128 {vr(vQ+4,4)}, {v(vA+3)} offset:{LDS_ML+16}")
        OO = vT + 4
        for w in range(1, 4):
            a(f"ds_read_b64 {vr(OO+2*w,2)}, {v(vA+4)} offset:{LDS_O + 2048*w}")
        RES = vQ + 12
        a(f"v_mov_b32 {v(RES+3)}, s{sTAGH}")
        a("s_waitcnt lgkmcnt(3)")
        nmM = vQ + 8
        a(f"v_min3_f32 {v(nmM)}, {v(vQ+2)}, {v(vQ+4)}, {v(vQ+6)}")
        for k in range(1, 4): a(f"v_sub_f32 {v(vQ+2*k)}, {v(nmM)}, {v(vQ+2*k)}")
        for k in range(1, 4): a(f"v_exp_f32 {v(vQ+2*k)}, {v(vQ+2*k)}")
        nop(1)
        a(f"v_mul_f32 {v(nmM+1)}, {v(vQ+2)}, {v(vQ+3)}")
        for k in range(2, 4): a(f"v_fmac_f32 {v(nmM+1)}, {v(vQ+2*k)}, {v(vQ+2*k+1)}")
        a(f"v_cndmask_b32 {v(nmM)}, {v(nmM)}, {v(nmM+1)}, vcc")
        a(f"v_bfe_u32 {v(nmM)}, {v(nmM)}, {v(vA+5)}, 16")
        a(f"v_or_b32 {v(RES+2)}, s{sTG16}, {v(nmM)}")
        a("s_waitcnt lgkmcnt(0)")
        for e in range(2): a(f"v_mul_f32 {v(RES+e)}, {v(vQ+2)}, {v(OO+2+e)}")
        for k in range(2, 4):
            for e in range(2): a(f"v_fmac_f32 {v(RES+e)}, {v(vQ+2*k)}, {v(OO+2*k+e)}")
        a(f"global_store_dwordx4 {v(vA)}, {vr(RES,4)}, {sp(sWS)} {G.stf}")
        tstamp(2)
    def stageB(sfx):
        a(f"s_mov_b32 s{sT0}, 0x05040100")
        PB = vW
        a(f"s_mov_b32 s{sT3}, 0")
        if G.apoll & 1:
            a(f"s_xor_b32 s{sT1}, s{sTAGH}, 1")
            for k in range(4): a(f"v_mov_b32 {v(PB+4*k+3)}, s{sT1}")
        if G.ack & 2: a("s_waitcnt vmcnt(0)")
        elif G.pb_first: a(f"s_sleep {G.pb_first}")
        lab(f"L_pollB{sfx}")
        if G.btop: a(f"s_sleep {G.btop}")
        for k in range(4):
            a(f"global_load_dwordx4 {vr(PB+4*k,4)}, {v(vA+8)}, {sp(sWS)} offset:{1024*k} {G.ldf}")
        if G.apoll & 1:
            a(f"s_sleep {G.ap_sleep}")
            a("s_waitcnt vmcnt(32)")
        else:
            a("s_waitcnt vmcnt(0)")
        a(f"v_xor_b32 {v(vT)}, s{sTG16}, {v(PB+2)}")
        a(f"v_xor_b32 {v(vT+1)}, s{sTG16}, {v(PB+6)}")
        a(f"v_xor_b32 {v(vT+2)}, s{sTG16}, {v(PB+10)}")
        a(f"v_xor_b32 {v(vT+3)}, s{sTG16}, {v(PB+14)}")
        a(f"v_or3_b32 {v(vT)}, {v(vT)}, {v(vT+1)}, {v(vT+2)}")
        a(f"v_or_b32 {v(vT)}, {v(vT)}, {v(vT+3)}")
        a(f"v_lshrrev_b32 {v(vT)}, 16, {v(vT)}")
        a(f"v_xor_b32 {v(vT+1)}, s{sTAGH}, {v(PB+3)}")
        a(f"v_xor_b32 {v(vT+2)}, s{sTAGH}, {v(PB+7)}")
        a(f"v_or3_b32 {v(vT)}, {v(vT)}, {v(vT+1)}, {v(vT+2)}")
        a(f"v_xor_b32 {v(vT+1)}, s{sTAGH}, {v(PB+11)}")
        a(f"v_xor_b32 {v(vT+2)}, s{sTAGH}, {v(PB+15)}")
        a(f"v_or3_b32 {v(vT)}, {v(vT)}, {v(vT+1)}, {v(vT+2)}")
        a(f"v_cmp_ne_u32 vcc, 0, {v(vT)}")
        a("s_and_b64 exec, exec, vcc")
        a(f"s_cbranch_execz L_pollB_done{sfx}")
        poll_tail(f"L_pollB{sfx}", G.pb_sleep)
        lab(f"L_pollB_done{sfx}")
        if G.apoll & 1: a("s_waitcnt vmcnt(0)")
        tstamp(3)
        a("s_mov_b64 exec, -1")
        NMr, Lr = vT + 4, vT + 8
        TA, TB = vT + 12, vT + 16
        for k in range(4):
            a(f"v_mov_b32_dpp {v(TA+k)}, {v(PB+4*k+2)} quad_perm:[0,0,0,0] {DPP}")
            a(f"v_mov_b32_dpp {v(TB+k)}, {v(PB+4*k+2)} quad_perm:[1,1,1,1] {DPP}")
        for k in range(4):
            a(f"v_perm_b32 {v(NMr+k)}, {v(TB+k)}, {v(TA+k)}, s{sT0}")
        M = vT
        a(f"v_min3_f32 {v(M)}, {v(NMr)}, {v(NMr+1)}, {v(NMr+2)}")
        a(f"v_min_f32 {v(M)}, {v(M)}, {v(NMr+3)}")
        a(f"v_mov_b32_dpp {v(TA)}, {v(PB+2)} quad_perm:[2,2,2,2] {DPP}")
        a(f"v_mov_b32_dpp {v(TB)}, {v(PB+2)} quad_perm:[3,3,3,3] {DPP}")
        a(f"v_min_f32_dpp {v(M)}, {v(M)}, {v(M)} row_ror:8 {DPP}")
        a(f"v_mov_b32 {v(vT+1)}, {v(M)}")
        a(f"v_mov_b32_dpp {v(TA+1)}, {v(PB+6)} quad_perm:[2,2,2,2] {DPP}")
        a(f"v_mov_b32_dpp {v(TB+1)}, {v(PB+6)} quad_perm:[3,3,3,3] {DPP}")
        a(f"v_permlane16_swap_b32 {v(M)}, {v(vT+1)}")
        a(f"v_mov_b32_dpp {v(TA+2)}, {v(PB+10)} quad_perm:[2,2,2,2] {DPP}")
        a(f"v_min_f32 {v(M)}, {v(M)}, {v(vT+1)}")
        a(f"v_mov_b32 {v(vT+1)}, {v(M)}")
        a(f"v_mov_b32_dpp {v(TB+2)}, {v(PB+10)} quad_perm:[3,3,3,3] {DPP}")
        a(f"v_mov_b32_dpp {v(TA+3)}, {v(PB+14)} quad_perm:[2,2,2,2] {DPP}")
        a(f"v_permlane32_swap_b32 {v(M)}, {v(vT+1)}")
        a(f"v_mov_b32_dpp {v(TB+3)}, {v(PB+14)} quad_perm:[3,3,3,3] {DPP}")
        a(f"v_min_f32 {v(M)}, {v(M)}, {v(vT+1)}")
        for k in range(4): a(f"v_sub_f32 {v(NMr+k)}, {v(M)}, {v(NMr+k)}")
        for k in range(4): a(f"v_exp_f32 {v(NMr+k)}, {v(NMr+k)}")
        for k in range(4): a(f"v_perm_b32 {v(Lr+k)}, {v(TB+k)}, {v(TA+k)}, s{sT0}")
        o0, o1, la, lb = vT, vT+1, vT+2, vT+3
        a(f"v_mul_f32 {v(o0)}, {v(NMr)}, {v(PB)}")
        a(f"v_mul_f32 {v(o1)}, {v(NMr)}, {v(PB+1)}")
        a(f"v_mul_f32 {v(la)}, {v(NMr)}, {v(Lr)}")
        for k in range(1, 4):
            a(f"v_fmac_f32 {v(o0)}, {v(NMr+k)}, {v(PB+4*k)}")
            a(f"v_fmac_f32 {v(o1)}, {v(NMr+k)}, {v(PB+4*k+1)}")
            a(f"v_fmac_f32 {v(la)}, {v(NMr+k)}, {v(Lr+k)}")
        a(f"v_mov_b32 {v(lb)}, {v(la)}")
        a(f"v_permlane32_swap_b32 {v(o0)}, {v(o1)}")
        nop(1)
        a(f"v_permlane32_swap_b32 {v(la)}, {v(lb)}")
        a(f"v_add_f32 {v(o0)}, {v(o0)}, {v(o1)}")
        a(f"v_add_f32 {v(la)}, {v(la)}, {v(lb)}")
        a(f"v_mov_b32 {v(o1)}, {v(o0)}")
        a(f"v_mov_b32 {v(lb)}, {v(la)}")
        nop(1)
        a(f"v_permlane16_swap_b32 {v(o0)}, {v(o1)}")
        a(f"v_permlane16_swap_b32 {v(la)}, {v(lb)}")
        a(f"v_add_f32 {v(o0)}, {v(o0)}, {v(o1)}")
        a(f"v_add_f32 {v(la)}, {v(la)}, {v(lb)}")
        nop(1)
        a(f"v_add_f32_dpp {v(o0)}, {v(o0)}, {v(o0)} row_ror:8 {DPP}")
        a(f"v_add_f32_dpp {v(la)}, {v(la)}, {v(la)} row_ror:8 {DPP}")
        a(f"v_rcp_f32 {v(lb)}, {v(la)}")
        a(f"v_mov_b32_dpp {v(o0)}, {v(o0)} row_shl:1 row_mask:0xa bank_mask:0xf")
        a(f"v_fma_f32 {v(o1)}, -{v(la)}, {v(lb)}, 1.0")
        a(f"v_fma_f32 {v(lb)}, {v(o1)}, {v(lb)}, {v(lb)}")
        a(f"v_mul_f32 {v(o0)}, {v(o0)}, {v(lb)}")
        a(f"v_cvt_pk_bf16_f32 {v(o0)}, {v(o0)}, {v(o0)}")
        nop(2)
        AO = vQ
        DD = vW + 16
        for u in range(4):
            for r in range(4):
                a(f"v_and_b32_dpp {v(AO+4*u+r)}, {v(o0)}, {v(vMSK+r)} row_newbcast:{2*u} {DPP}")
            if u > 0:
                cc = "0" if u == 1 else vr(DD, 4)
                a(f"v_mfma_f32_16x16x32_bf16 {vr(DD,4)}, {vr(AO+4*(u-1),4)}, {vr(vWO+4*(u-1),4)}, {cc}")
        nop(1)
        a(f"v_mfma_f32_16x16x32_bf16 {vr(DD,4)}, {vr(AO+12,4)}, {vr(vWO+12,4)}, {vr(DD,4)}")
        a("s_mov_b64 exec, 0xffffffff")
        nop(7)
        a(f"ds_write_b128 {v(vA+7)}, {vr(DD,4)} offset:{LDS_S}")
        a("s_mov_b64 exec, -1")
        a("s_waitcnt lgkmcnt(0)")
        a("s_barrier")
    lab("L_done")
    if G.stamps: a(f"s_memrealtime s[100:101]")
    allred_rows("v_add_f32", vL, vT)
    a(f"ds_write_b128 {v(vA+1)}, {vr(vO,4)} offset:{LDS_O}")
    a(f"ds_write_b128 {v(vA+1)}, {vr(vO+4,4)} offset:{LDS_O+16}")
    a(f"ds_write_b64 {v(vA+2)}, {vr(vNM,2)} offset:{LDS_ML}")
    stageA()
    stageB('w')
    a("s_branch L_fin")
    lab("L_tail")
    stageA()
    stageB('s')
    PC = vW
    for w in range(4):
        a(f"ds_read_b64 {vr(PC+4+2*w,2)}, {v(vPA+1)} offset:{LDS_S + 512*w}")
    a(f"v_mov_b32 {v(PC+2)}, s{sTAGL}")
    a(f"v_mov_b32 {v(PC+3)}, s{sTAGH}")
    a("s_waitcnt lgkmcnt(0)")
    for e in range(2): a(f"v_add_f32 {v(PC+4+e)}, {v(PC+4+e)}, {v(PC+6+e)}")
    for e in range(2): a(f"v_add_f32 {v(PC+8+e)}, {v(PC+8+e)}, {v(PC+10+e)}")
    for e in range(2): a(f"v_add_f32 {v(PC+e)}, {v(PC+4+e)}, {v(PC+8+e)}")
    a(f"global_store_dwordx4 {v(vA+9)}, {vr(PC,4)}, {sp(sWS)} {G.stf}")
    tstamp(4)
    PC = vW + 4
    a(f"s_mov_b32 s{sT3}, 0")
    if G.ack & 4: a("s_waitcnt vmcnt(0)")
    elif G.pc_first: a(f"s_sleep {G.pc_first}")
    lab("L_pollC")
    if G.ctop: a(f"s_sleep {G.ctop}")
    a(f"global_load_dwordx4 {vr(PC,4)}, {v(vPA)}, {sp(sWS)} {G.ldf}")
    a("s_waitcnt vmcnt(0)")
    a(f"v_xor_b32 {v(vT)}, s{sTAGL}, {v(PC+2)}")
    a(f"v_xor_b32 {v(vT+1)}, s{sTAGH}, {v(PC+3)}")
    a(f"v_or_b32 {v(vT)}, {v(vT)}, {v(vT+1)}")
    a(f"v_cmp_ne_u32 vcc, 0, {v(vT)}")
    a("s_and_b64 exec, exec, vcc")
    a("s_cbranch_execz L_pollC_done")
    poll_tail("L_pollC", G.pc_sleep)
    lab("L_pollC_done")
    tstamp(5)
    a("s_mov_b64 exec, -1")
    nop(2)
    a(f"v_permlane32_swap_b32 {v(PC)}, {v(PC+1)}")
    nop(1)
    a(f"v_add_f32 {v(PC)}, {v(PC)}, {v(PC+1)}")
    allred16("v_add_f32", PC)
    a(f"v_mov_b32 {v(vT)}, {v(PC)}")
    nop(2)
    a(f"v_permlane16_swap_b32 {v(PC)}, {v(vT)}")
    nop(1)
    a(f"v_add_f32 {v(PC)}, {v(PC)}, {v(vT)}")
    a(f"v_mov_b32 {v(PC+1)}, {v(PC)}")
    nop(2)
    a(f"v_permlane32_swap_b32 {v(PC)}, {v(PC+1)}")
    nop(1)
    rbf2(PC, PC+1)
    a(f"v_mul_f32 {v(PC)}, {v(PC)}, {v(g0)}")
    a(f"v_mul_f32 {v(PC+1)}, {v(PC+1)}, {v(g1)}")
    rbf2(PC, PC+1)
    a(f"v_add_f32 {v(PC)}, {v(PC)}, {v(vA+11)}")
    a(f"v_add_f32 {v(PC+1)}, {v(PC+1)}, {v(vA+12)}")
    a(f"v_cvt_pk_bf16_f32 {v(PC)}, {v(PC)}, {v(PC+1)}")
    a("s_mov_b64 exec, 1")
    a(f"global_store_dword {v(vA+10)}, {v(PC)}, {sp(sOUT)}")
    a("s_cmp_lg_u32 s2, 0")
    a("s_cbranch_scc1 L_noep")
    a(f"v_mov_b32 {v(vT)}, {WS_EP}")
    a(f"v_mov_b32 {v(vT+1)}, {WS_EPH}")
    a(f"v_mov_b32 {v(vT+2)}, s{sTAGL}")
    a(f"v_mov_b32 {v(vT+3)}, s{sTAGH}")
    a(f"global_store_dword {v(vT)}, {v(vT+2)}, {sp(sWS)} sc1")
    a(f"global_store_dword {v(vT+1)}, {v(vT+3)}, {sp(sWS)} sc1")
    lab("L_noep")
    a("s_mov_b64 exec, -1")
    lab("L_fin")
    if G.stamps:
        a(f"s_memrealtime s[82:83]")
        a("s_waitcnt lgkmcnt(0)")
        a(f"s_lshl_b32 s{sT2}, s2, 2")
        a(f"s_add_u32 s{sT2}, s{sT2}, s{sWV}")
        a(f"s_lshl_b32 s{sT2}, s{sT2}, 6")
        a(f"s_add_u32 s{sT2}, s{sT2}, {WS_TS}")
        a(f"v_mov_b32 v2, s{sT2}")
        a(f"v_mov_b32 v4, s{sTS0}")
        a(f"v_mov_b32 v5, s{sTS0+2}")
        a(f"v_mov_b32 v6, s100")
        a(f"v_mov_b32 v7, s82")
        a(f"v_mov_b32 v8, s{sN}")
        a(f"s_getreg_b32 s{sT2}, hwreg(HW_REG_XCC_ID)")
        a(f"v_mov_b32 v9, s{sT2}")
        a("s_mov_b64 exec, 1")
        a(f"global_store_dwordx4 v2, v[4:7], {sp(sWS)}")
        a(f"global_store_dwordx2 v2, v[8:9], {sp(sWS)} offset:16")
        for k in range(6): a(f"v_mov_b32 v{10+k}, s{4+2*k}")
        a(f"global_store_dwordx4 v2, v[10:13], {sp(sWS)} offset:32")
        a(f"global_store_dwordx2 v2, v[14:15], {sp(sWS)} offset:48")
    if G.dbgt:
        a("s_cmp_ge_u32 s2, 1")
        a("s_cbranch_scc1 L_end")
        a(f"s_memrealtime s[82:83]")
        a("s_waitcnt lgkmcnt(0)")
        a(f"s_sub_u32 s82, s82, s{sTS0}")
        a(f"s_sub_u32 s83, s{sTS0+2}, s{sTS0}")
        a(f"s_sub_u32 s84, s100, s{sTS0}")
        a(f"s_sub_u32 s85, s4, s{sTS0}")
        a(f"s_lshl_b32 s86, s{sWV}, 4")
        a("v_mov_b32 v2, s86")
        a("v_mov_b32 v4, s82"); a("v_mov_b32 v5, s83"); a("v_mov_b32 v6, s84"); a("v_mov_b32 v7, s85")
        a("s_mov_b64 exec, 1")
        a(f"global_store_dwordx4 v2, v[4:7], {sp(sDBG)}")
    lab("L_end")
    a("s_endpgm")
    tail = ['.section .rodata,"a"', ".p2align 6", f".amdhsa_kernel {KN}",
            f"  .amdhsa_next_free_vgpr {NV+256}", "  .amdhsa_next_free_sgpr 102", f"  .amdhsa_accum_offset {NV}",
            "  .amdhsa_group_segment_fixed_size 0", "  .amdhsa_kernarg_size 104", "  .amdhsa_user_sgpr_count 2",
            "  .amdhsa_user_sgpr_kernarg_segment_ptr 1", "  .amdhsa_system_sgpr_workgroup_id_x 1",
            "  .amdhsa_float_denorm_mode_32 3",
            ".end_amdhsa_kernel"]
    return "\n".join(hdr + G.L + tail) + "\n"

if __name__ == "__main__":
    import argparse, json
    ap = argparse.ArgumentParser()
    ap.add_argument("-o", default="k.s")
    ap.add_argument("kv", nargs="*")
    args = ap.parse_args()
    kw = {}
    for x in args.kv:
        k, val = x.split("=")
        kw[k] = json.loads(val)
    open(args.o, "w").write(build(**kw))
```

```python
import sys, struct, math

KN = "recurrent_scan__gqa_block_cached__mixer_token_mlp__decode_kernel"

def f2u(x):
    return struct.unpack("<I", struct.pack("<f", x))[0]

class Gen:
    def __init__(self, **kw):
        self.L = []
        self.vm = []
        self.__dict__.update(kw)
    def a(self, s): self.L.append("  " + s)
    def lab(self, s): self.L.append(s + ":")
    def c(self, s): self.L.append("  ; " + s)
    def vmem(self, s, tag=None):
        self.a(s); self.vm.append(tag)
    def wait_vm(self, tag):
        if tag not in self.vm: return
        idx = max(i for i, t in enumerate(self.vm) if t == tag)
        n = len(self.vm) - 1 - idx
        n = min(n, 63)
        self.a(f"s_waitcnt vmcnt({n})")
        self.vm = self.vm[len(self.vm)-n:] if n else []
    def nop(self, n):
        if n > 0: self.a(f"s_nop {n-1}")

WS_Q   = 0x40000
WS_EP  = 0x8000
WS_EPH = 0x300000
WS_CNT = 0x10000
CNT_STRIDE = 1280
CNT_BIAS = 0x10000
WS_P2  = 0x100000
WS_S2  = 0x200000
WS_TS  = 0x1000000
LDS_XN   = 0
LDS_Q    = 1024
LDS_ML   = 2048
LDS_O    = 2304
LDS_TG   = 2176
LDS_TOTAL = 2304 + 8192
LOG2E = 1.4426950408889634
SCALE = 128 ** -0.5
LCG_A, LCG_C, LCG_C2 = 1664525, 1013904223, 2891336453
REG = 0x200000
LIM = 0x1000000

DEFAULTS = dict(A=2, R=8, NS=39, P=2, T=20.0, dyn=True, stamps=False, tstamps=False, poll_max=4000000,
                cu_issue=(0, 1, 5, 8), q_sleep=12, q_first=16, pretouch=0, stf='sc1', ldf='sc1', dbgt=False, hstart=8, nolight=True, apoll=0, ap_sleep=2, pb_first=10, pb_sleep=0, pc_first=24, pc_sleep=0, mode=0, touch_out=False, pairpool=False, tlbwarm=False, ack=0)

def build(**kw):
    p = dict(DEFAULTS); p.update(kw)
    G = Gen(**p)
    a, lab, c, vmem, wait_vm, nop = G.a, G.lab, G.c, G.vmem, G.wait_vm, G.nop
    A, R, NS = G.A, G.R, G.NS
    E = len(G.cu_issue)
    assert A <= E <= 4 and R <= 12
    POLL_MAX = G.poll_max
    hdr = [f"; @launch grid=(256,1,1) block=(256,1,1) lds={LDS_TOTAL}",
           '.amdgcn_target "amdgcn-amd-amdhsa--gfx950"', ".text", f".globl {KN}", ".p2align 8",
           f".type {KN},@function", f"{KN}:"]
    sX, sK, sV, sWQ, sWO, sBX, sW1, sB1 = 16, 18, 20, 22, 24, 26, 28, 30
    sW2, sB2, sOUT, sDBG, sWS = 32, 34, 36, 38, 40
    sTAGL, sTAGH = 42, 43
    srdK, srdV = 44, 48
    sOFF = 52; sTK = 56; sDYNB = 60; sTG16 = 61
    sWV, sA, sB, sG, sI = 72, 73, 74, 75, 76
    sN, sSTAT, sEXH, sCNTOFF, sBH = 77, 78, 79, 80, 81
    sT0, sT1, sT2, sT3 = 82, 83, 84, 85
    sTHR, sFLOOR = 86, 87
    sXD = 88
    sC0 = 90
    sPC = 92
    sTS0 = 94
    sLOG2E, sSCALE = 98, 99
    def sp(r): return f"s[{r}:{r+1}]"
    def sq(r): return f"s[{r}:{r+3}]"
    vLANE = 1; vKOFF = 2; vVOFF = 3
    vQ = 4; vO = 20; vNM = 28; vL = 29; vSEL = 30; vS = 34; vX = 38
    vT = 46
    vA = 80
    vPA = 96
    vMASK = 100
    vW = 104
    vWO = 136
    vG = 232
    NV = 236
    def v(r): return f"v{r}"
    def vr(r, n): return f"v[{r}:{r+n-1}]"
    def slot_reg(slot, off, n):
        if slot < 8:
            r = 32*slot + off
            return f"a[{r}:{r+n-1}]"
        r = vW + 32*(slot-8) + off
        return f"v[{r}:{r+n-1}]"
    def stamp(k):
        if G.stamps and not G.tstamps: a(f"s_memrealtime s[{4+2*k}:{5+2*k}]")
    def tstamp(k):
        if G.tstamps: a(f"s_memrealtime s[{4+2*k}:{5+2*k}]")
    DPP = "row_mask:0xf bank_mask:0xf"
    def allred16(op, r, steps=("quad_perm:[1,0,3,2]", "quad_perm:[2,3,0,1]", "row_half_mirror", "row_mirror")):
        for s in steps:
            nop(2)
            a(f"{op}_dpp {v(r)}, {v(r)}, {v(r)} {s} {DPP}")
    def allred_rows(op, r, t):
        a(f"v_mov_b32 {v(t)}, {v(r)}")
        nop(2)
        a(f"v_permlane16_swap_b32 {v(r)}, {v(t)}")
        nop(1)
        a(f"{op} {v(r)}, {v(r)}, {v(t)}")
        a(f"v_mov_b32 {v(t)}, {v(r)}")
        nop(2)
        a(f"v_permlane32_swap_b32 {v(r)}, {v(t)}")
        nop(1)
        a(f"{op} {v(r)}, {v(r)}, {v(t)}")
    def allred64(op, r, t):
        allred16(op, r); allred_rows(op, r, t)
    def rbf(r):
        a(f"v_cvt_pk_bf16_f32 {v(r)}, {v(r)}, {v(r)}")
        a(f"v_and_b32 {v(r)}, 0xffff0000, {v(r)}")
    def rbf2(r0, r1):
        a(f"v_cvt_pk_bf16_f32 {v(r1)}, {v(r0)}, {v(r1)}")
        a(f"v_lshlrev_b32 {v(r0)}, 16, {v(r1)}")
        a(f"v_and_b32 {v(r1)}, 0xffff0000, {v(r1)}")
    def poll_tail(label, sleep=0):
        if sleep: a(f"s_sleep {sleep}")
        a(f"s_add_u32 s{sT3}, s{sT3}, 1")
        a(f"s_cmp_lt_u32 s{sT3}, {POLL_MAX}")
        a(f"s_cbranch_scc1 {label}")
    def tags():
        a(f"s_mul_i32 s{sTAGL}, s{sTAGL}, {LCG_A}")
        a(f"s_add_u32 s{sTAGL}, s{sTAGL}, {LCG_C}")
        a(f"s_mul_i32 s{sTAGH}, s{sTAGH}, {LCG_A}")
        a(f"s_add_u32 s{sTAGH}, s{sTAGH}, {LCG_C2}")
        a(f"s_and_b32 s{sTG16}, s{sTAGL}, 0xffff0000")

    t0, t1, t2, t3 = vS, vS+1, vS+2, vS+3
    F = vX
    def unpack8(dst, src):
        for j in range(4):
            a(f"v_lshlrev_b32 {v(dst+2*j)}, 16, {v(src+j)}")
            a(f"v_and_b32 {v(dst+2*j+1)}, 0xffff0000, {v(src+j)}")
    def ln_stats(F):
        a(f"v_add_f32 {v(t0)}, {v(F)}, {v(F+1)}")
        a(f"v_add_f32 {v(t1)}, {v(F+2)}, {v(F+3)}")
        a(f"v_add_f32 {v(t2)}, {v(F+4)}, {v(F+5)}")
        a(f"v_add_f32 {v(t3)}, {v(F+6)}, {v(F+7)}")
        a(f"v_add_f32 {v(t0)}, {v(t0)}, {v(t1)}")
        a(f"v_add_f32 {v(t2)}, {v(t2)}, {v(t3)}")
        a(f"v_add_f32 {v(t0)}, {v(t0)}, {v(t2)}")
        allred64("v_add_f32", t0, t3)
        a(f"v_mul_f32 {v(t0)}, 0x3b000000, {v(t0)}")
        a(f"v_sub_f32 {v(t2)}, {v(F)}, {v(t0)}")
        a(f"v_mul_f32 {v(t1)}, {v(t2)}, {v(t2)}")
        for j in range(1, 8):
            a(f"v_sub_f32 {v(t2)}, {v(F+j)}, {v(t0)}")
            a(f"v_fmac_f32 {v(t1)}, {v(t2)}, {v(t2)}")
        allred64("v_add_f32", t1, t3)
        a(f"v_mul_f32 {v(t1)}, 0x3b000000, {v(t1)}")
        rbf2(t0, t1)
        a(f"v_add_f32 {v(t1)}, 0x{f2u(1e-5):08x}, {v(t1)}")
        rbf(t1)
        a(f"v_sqrt_f32 {v(t2)}, {v(t1)}")
        nop(1)
        a(f"v_rcp_f32 {v(t3)}, {v(t2)}")
        a(f"v_fma_f32 {v(vT)}, -{v(t2)}, {v(t2)}, {v(t1)}")
        a(f"v_mul_f32 {v(t3)}, 0.5, {v(t3)}")
        a(f"v_fma_f32 {v(t1)}, {v(vT)}, {v(t3)}, {v(t2)}")
        rbf(t1)
        a(f"v_rcp_f32 {v(t2)}, {v(t1)}")
        nop(1)
        a(f"v_fma_f32 {v(t3)}, -{v(t1)}, {v(t2)}, 1.0")
        a(f"v_fma_f32 {v(t2)}, {v(t3)}, {v(t2)}, {v(t2)}")
    def ln_apply2(r0, r1, tmp):
        a(f"v_sub_f32 {v(r0)}, {v(r0)}, {v(t0)}")
        a(f"v_sub_f32 {v(r1)}, {v(r1)}, {v(t0)}")
        rbf2(r0, r1)
        for r in (r0, r1):
            a(f"v_mul_f32 {v(tmp)}, {v(r)}, {v(t2)}")
            a(f"v_fma_f32 {v(r)}, -{v(tmp)}, {v(t1)}, {v(r)}")
            a(f"v_fma_f32 {v(r)}, {v(r)}, {v(t2)}, {v(tmp)}")
    def wo_issue():
        a(f"v_lshrrev_b32 {v(vT)}, 4, {v(vLANE)}")
        a(f"v_and_b32 {v(vT+1)}, 1, {v(vT)}")
        a(f"v_lshlrev_b32 {v(vT+1)}, 1, {v(vT+1)}")
        a(f"v_lshrrev_b32 {v(vT)}, 1, {v(vT)}")
        a(f"v_add_u32 {v(vT)}, {v(vT)}, {v(vT+1)}")
        a(f"v_lshlrev_b32 {v(vT)}, 10, {v(vT)}")
        a(f"v_and_b32 {v(vT+1)}, 15, {v(vLANE)}")
        a(f"v_lshl_add_u32 {v(vT)}, {v(vT+1)}, 4, {v(vT)}")
        a(f"s_lshl_b32 s{sT1}, s{sG}, 5")
        a(f"s_add_u32 s{sT1}, s{sT1}, s{sI}")
        a(f"s_lshl_b32 s{sT1}, s{sT1}, 14")
        a(f"v_add_u32 {v(vT+11)}, s{sT1}, {v(vT)}")
        a(f"v_add_u32 {v(vT+12)}, 0x1000, {v(vT+11)}")
        a(f"v_add_u32 {v(vT+13)}, 0x2000, {v(vT+11)}")
        a(f"v_add_u32 {v(vT+14)}, 0x3000, {v(vT+11)}")
        for u, r in enumerate((vT+11, vT+12, vT+13, vT+14)):
            for cb in range(4):
                a(f"global_load_dwordx4 {vr(vWO+16*cb+4*u,4)}, {v(r)}, {sp(sWO)} offset:{256*cb} nt")
    def tail_addr():
        a(f"s_lshl_b32 s{sT0}, s{sG}, 2")
        a(f"s_add_u32 s{sT0}, s{sT0}, s{sWV}")
        a(f"s_lshl_b32 s{sT1}, s{sT0}, 15")
        a(f"s_lshl_b32 s{sT2}, s{sI}, 7")
        a(f"s_add_u32 s{sT1}, s{sT1}, s{sT2}")
        a(f"s_add_u32 s{sT1}, s{sT1}, {WS_P2}")
        a(f"v_lshrrev_b32 {v(vT)}, 3, {v(vLANE)}")
        a(f"v_lshlrev_b32 {v(vT)}, 12, {v(vT)}")
        a(f"v_and_b32 {v(vT+1)}, 7, {v(vLANE)}")
        a(f"v_lshl_add_u32 {v(vT)}, {v(vT+1)}, 4, {v(vT)}")
        a(f"v_add_u32 {v(vA)}, s{sT1}, {v(vT)}")
        a(f"s_lshl_b32 s{sT1}, s{sWV}, 11")
        a(f"v_lshl_add_u32 {v(vA+1)}, {v(vLANE)}, 5, s{sT1}")
        a(f"v_bfe_u32 {v(vT+1)}, {v(vLANE)}, 2, 2")
        a(f"s_lshl_b32 s{sT1}, s{sWV}, 3")
        a(f"v_lshl_add_u32 {v(vA+2)}, {v(vT+1)}, 5, s{sT1}")
        a(f"s_lshl_b32 s{sT1}, s{sWV}, 5")
        a(f"v_mov_b32 {v(vA+3)}, s{sT1}")
        a(f"s_lshl_b32 s{sT1}, s{sWV}, 9")
        a(f"v_lshl_add_u32 {v(vA+4)}, {v(vLANE)}, 3, s{sT1}")
        a(f"v_and_b32 {v(vT)}, 1, {v(vLANE)}")
        a(f"v_lshlrev_b32 {v(vA+5)}, 4, {v(vT)}")
        a(f"v_and_b32 {v(vA+6)}, 2, {v(vLANE)}")
    def issue_tile(slot, soff, tag=None, track=True):
        for t in range(4):
            s = f"buffer_load_dwordx4 {slot_reg(slot,4*t,4)}, {v(vKOFF)}, {sq(srdK)}, {soff} offen offset:{64*t} nt"
            vmem(s, ("K", tag)) if track else a(s)
        for u in range(4):
            s = f"buffer_load_dwordx4 {slot_reg(slot,16+4*u,4)}, {v(vVOFF)}, {sq(srdV)}, {soff} offen offset:{1024*u} nt"
            vmem(s, ("V", tag)) if track else a(s)
    TSTR = (96 if G.mode == 2 else 12) * 4096
    NDYN = 2 * (512 - NS * 12)
    uid = [0]
    def next_tile(ns, tag=None, track=False):
        u = uid[0]; uid[0] += 1
        if G.dyn:
            a(f"s_cmp_lt_u32 s{sN}, {NS}")
            a(f"s_cbranch_scc1 L_st{u}")
            a(f"s_waitcnt lgkmcnt({G.P-1})")
            a(f"s_cmp_lg_u32 s{sTK+ns}, 1")
            a(f"s_cbranch_scc1 L_tk{u}")
            a("s_waitcnt lgkmcnt(0)")
            lab(f"L_tk{u}")
            if G.mode == 2:
                a(f"s_and_b32 s{sSTAT}, s{sTK+ns}, 0xffff")
                a(f"s_lshl_b32 s{sSTAT}, s{sSTAT}, 14")
            else:
                a(f"s_and_b32 s{sT1}, s{sTK+ns}, 1")
                a(f"s_lshl_b32 s{sT1}, s{sT1}, 21")
                a(f"s_and_b32 s{sSTAT}, s{sTK+ns}, 0xfffe")
                a(f"s_lshl_b32 s{sSTAT}, s{sSTAT}, 11")
                a(f"s_add_u32 s{sSTAT}, s{sSTAT}, s{sT1}")
            a(f"s_add_u32 s{sSTAT}, s{sSTAT}, s{sDYNB}")
            a(f"s_cmp_ge_u32 s{sTK+ns}, {CNT_BIAS + NDYN}")
            a(f"s_cselect_b32 s{sEXH}, 0x{LIM:x}, s{sEXH}")
            a(f"s_max_u32 s{sSTAT}, s{sSTAT}, s{sEXH}")
            lab(f"L_st{u}")
            a(f"s_mov_b32 s{sOFF+ns}, s{sSTAT}")
            a(f"s_add_u32 s{sSTAT}, s{sSTAT}, {TSTR}")
            a(f"s_add_u32 s{sN}, s{sN}, 1")
            a(f"s_cmp_lg_u32 s{sEXH}, 0")
            a(f"s_cbranch_scc1 L_nq{u}")
            a(f"s_cmp_lt_u32 s{sN}, {NS - G.P + 1}")
            a(f"s_cbranch_scc1 L_nq{u}")
            a(f"s_mov_b32 s{sTK+(ns+G.P)%4}, 1")
            a(f"s_atomic_add s{sTK+(ns+G.P)%4}, {sp(sWS)}, s{sCNTOFF} glc")
            lab(f"L_nq{u}")
        else:
            a(f"s_cmp_ge_u32 s{sSTAT}, s{sDYNB}")
            a(f"s_cselect_b32 s{sOFF+ns}, 0x{LIM:x}, s{sSTAT}")
            a(f"s_add_u32 s{sSTAT}, s{sSTAT}, {TSTR}")
        issue_tile(ns, f"s{sOFF+ns}", tag, track)

    a("s_cmp_ge_u32 s2, 256")
    a("s_cbranch_scc1 L_end")
    if G.stamps: a(f"s_memrealtime {sp(sTS0)}")
    a("s_load_dwordx16 s[16:31], s[0:1], 0")
    a("s_load_dwordx8 s[32:39], s[0:1], 64")
    a("s_load_dwordx2 s[40:41], s[0:1], 96")
    a(f"v_and_b32 {v(vLANE)}, 63, v0")
    a(f"v_lshrrev_b32 {v(vT)}, 6, v0")
    a(f"s_and_b32 s{sA}, s2, 7")
    a(f"v_readfirstlane_b32 s{sWV}, {v(vT)}")
    a(f"s_lshr_b32 s{sB}, s2, 3")
    a(f"v_lshlrev_b32 {v(vVOFF)}, 4, {v(vLANE)}")
    a(f"s_and_b32 s{sG}, s{sB}, 7")
    a(f"s_lshr_b32 s{sBH}, s{sB}, 3")
    if G.mode:
        a(f"s_mov_b32 s{sT0}, s{sA}")
        a(f"s_mov_b32 s{sA}, s{sG}")
        a(f"s_mov_b32 s{sG}, s{sT0}")
        a(f"s_lshl_b32 s{sB}, s{sBH}, 3")
        a(f"s_add_u32 s{sB}, s{sB}, s{sG}")
    a(f"s_lshl_b32 s{sT0}, s{sBH}, 3")
    a(f"s_add_u32 s{sI}, s{sT0}, s{sA}")
    a(f"s_mov_b32 s{sLOG2E}, 0x{f2u(LOG2E):08x}")
    a(f"s_mov_b32 s{sN}, 0")
    a(f"s_cmp_lg_u32 s{sWV}, 0")
    a("s_cbranch_scc1 L_stream")
    a(f"v_lshrrev_b32 {v(vT)}, 3, {v(vLANE)}")
    a(f"v_lshlrev_b32 {v(vT)}, 17, {v(vT)}")
    a(f"v_and_b32 {v(vT+1)}, 7, {v(vLANE)}")
    a(f"v_lshl_add_u32 {v(vT)}, {v(vT+1)}, 4, {v(vT)}")
    a(f"s_lshl_b32 s{sT1}, s{sA}, 3")
    a(f"s_add_u32 s{sT3}, s{sT1}, s{sG}")
    a(f"s_lshl_b32 s{sT1}, s{sT3}, 7")
    a(f"s_lshl_b32 s{sT2}, s{sBH}, 20")
    a(f"s_add_u32 s{sT1}, s{sT1}, s{sT2}")
    a(f"v_add_u32 {v(vT+16)}, s{sT1}, {v(vT)}")
    a(f"v_add_u32 {v(vT+17)}, 0x2000, {v(vT+16)}")
    a(f"s_lshl_b32 s{sT1}, s{sA}, 2")
    a(f"s_and_b32 s{sT2}, s{sG}, 3")
    a(f"s_add_u32 s{sT1}, s{sT1}, s{sT2}")
    a(f"s_mul_i32 s{sT1}, s{sT1}, {CNT_STRIDE}")
    a(f"s_add_u32 s{sT1}, s{sT1}, {WS_CNT}")
    a(f"v_mov_b32 {v(vT+9)}, s{sT1}")
    a(f"v_mov_b32 {v(vT+10)}, 0x{CNT_BIAS:x}")
    a(f"v_and_b32 {v(vT+27)}, 1, {v(vLANE)}")
    a(f"v_mul_u32_u24 {v(vT+27)}, {WS_EPH - WS_EP}, {v(vT+27)}")
    a(f"v_add_u32 {v(vT+27)}, {WS_EP}, {v(vT+27)}")
    a("s_waitcnt lgkmcnt(0)")
    vmem(f"global_load_dwordx4 {vr(vW,4)}, {v(vVOFF)}, {sp(sX)}", "x")
    vmem(f"global_load_dword {v(vT+27)}, {v(vT+27)}, {sp(sWS)} sc1", "ep")
    W0 = vW + 4
    for j in range(8):
        vmem(f"global_load_dwordx4 {vr(W0+8*j,4)}, {v(vT+16)}, {sp(sWQ)} nt", ("wq", j))
        vmem(f"global_load_dwordx4 {vr(W0+8*j+4,4)}, {v(vT+17)}, {sp(sWQ)} nt", ("wq", j))
        if j < 7:
            a(f"v_add_u32 {v(vT+16)}, 0x4000, {v(vT+16)}")
            a(f"v_add_u32 {v(vT+17)}, 0x4000, {v(vT+17)}")
        if G.hstart and j == G.hstart - 1: a("s_barrier")
        if j == 3:
            a("s_mov_b64 exec, 1")
            vmem(f"global_store_dword {v(vT+9)}, {v(vT+10)}, {sp(sWS)} sc1", "clr")
            a("s_mov_b64 exec, -1")
    a(f"s_lshl_b32 s{sT1}, s{sA}, 2")
    a(f"s_add_u32 s{sT1}, s{sT1}, s{sBH}")
    a(f"s_lshl_b32 s{sT1}, s{sT1}, 3")
    a(f"s_add_u32 s{sT1}, s{sT1}, s{sG}")
    a(f"s_lshl_b32 s{sT1}, s{sT1}, 9")
    a(f"s_add_u32 s{sT1}, s{sT1}, {WS_Q}")
    a(f"v_and_b32 {v(vT)}, 7, {v(vLANE)}")
    a(f"v_lshrrev_b32 {v(vT+1)}, 4, {v(vLANE)}")
    a(f"v_lshl_add_u32 {v(vT)}, {v(vT)}, 2, {v(vT+1)}")
    a(f"v_lshl_add_u32 {v(vT+21)}, {v(vT)}, 4, s{sT1}")
    a(f"s_lshl_b32 s{sT2}, s{sG}, 14")
    a(f"s_add_u32 s{sT2}, s{sT2}, {WS_Q}")
    a(f"v_add_u32 {v(vT+22)}, s{sT2}, {v(vVOFF)}")
    a(f"v_add_u32 {v(vT+23)}, 0x1000, {v(vT+22)}")
    a(f"v_add_u32 {v(vT+24)}, 0x2000, {v(vT+22)}")
    a(f"v_add_u32 {v(vT+25)}, 0x3000, {v(vT+22)}")
    a(f"v_and_b32 {v(vT)}, 31, {v(vLANE)}")
    a(f"v_lshl_add_u32 {v(vT+26)}, {v(vT)}, 9, s{sT2}")
    a(f"s_lshl_b32 s{sC0}, s{sA}, 6")
    a(f"s_lshl_b32 s{sT1}, s{sB}, 1")
    a(f"s_add_u32 s{sC0}, s{sC0}, s{sT1}")
    wait_vm("x")
    stamp(0)
    unpack8(F, vW)
    ln_stats(F)
    for j in range(4):
        ln_apply2(F+2*j, F+2*j+1, vT)
        a(f"v_cvt_pk_bf16_f32 {v(vW+j)}, {v(F+2*j)}, {v(F+2*j+1)}")
    a(f"ds_write_b128 {v(vVOFF)}, {vr(vW,4)} offset:{LDS_XN}")
    a(f"s_mov_b32 s{sT1}, 0x05040100")
    a(f"s_mov_b32 s{sT2}, 0x07060302")
    XN = vX
    a(f"v_lshrrev_b32 {v(vT+1)}, 3, {v(vLANE)}")
    a(f"s_lshl_b32 s{sT0}, s{sBH}, 8")
    a(f"v_lshl_add_u32 {v(vT+1)}, {v(vT+1)}, 5, s{sT0}")
    a(f"ds_read_b128 {vr(XN,4)}, {v(vT+1)} offset:{LDS_XN}")
    a(f"ds_read_b128 {vr(XN+4,4)}, {v(vT+1)} offset:{LDS_XN+16}")
    ACC = vQ; PT = vQ + 8
    for j in range(8):
        wait_vm(("wq", j))
        if j == 0: stamp(1)
        ra, rb = W0 + 8*j, W0 + 8*j + 4
        for d in range(4):
            a(f"v_perm_b32 {v(PT+2*d)}, {v(rb+d)}, {v(ra+d)}, s{sT1}")
            a(f"v_perm_b32 {v(PT+2*d+1)}, {v(rb+d)}, {v(ra+d)}, s{sT2}")
        if j == 0: a("s_waitcnt lgkmcnt(0)")
        for cidx in range(8):
            cc = "0" if j == 0 else v(ACC+cidx)
            a(f"v_dot2_f32_bf16 {v(ACC+cidx)}, {v(PT+cidx)}, {v(XN+j)}, {cc}")
    a(f"v_readlane_b32 s{sTAGL}, {v(vT+27)}, 0")
    a(f"v_readlane_b32 s{sTAGH}, {v(vT+27)}, 1")
    tags()
    for cidx in range(4):
        a(f"v_permlane32_swap_b32 {v(ACC+cidx)}, {v(ACC+cidx+4)}")
    nop(1)
    for cidx in range(4):
        a(f"v_add_f32 {v(ACC+cidx)}, {v(ACC+cidx)}, {v(ACC+cidx+4)}")
    nop(1)
    for cidx in range(2):
        a(f"v_permlane16_swap_b32 {v(ACC+cidx)}, {v(ACC+cidx+2)}")
    nop(1)
    for cidx in range(2):
        a(f"v_add_f32 {v(ACC+cidx)}, {v(ACC+cidx)}, {v(ACC+cidx+2)}")
    a(f"v_mov_b32 {v(ACC+2)}, s{sTAGL}")
    a(f"v_add_f32_dpp {v(ACC)}, {v(ACC)}, {v(ACC)} row_ror:8 {DPP}")
    a(f"v_add_f32_dpp {v(ACC+1)}, {v(ACC+1)}, {v(ACC+1)} row_ror:8 {DPP}")
    a(f"v_mov_b32 {v(ACC+3)}, s{sTAGH}")
    stamp(2)
    a("s_mov_b32 exec_lo, 0x00ff00ff")
    a("s_mov_b32 exec_hi, 0x00ff00ff")
    a(f"global_store_dwordx4 {v(vT+21)}, {vr(ACC,4)}, {sp(sWS)} sc1")
    a("s_mov_b64 exec, -1")
    a(f"v_mov_b32 {v(vT)}, 0")
    a(f"ds_write_b64 {v(vT)}, {vr(ACC+2,2)} offset:{LDS_TG}")
    stamp(3)
    unpack8(F, vW)
    ln_stats(F)
    a(f"s_lshl_b32 s{sT2}, s{sC0}, 1")
    a(f"v_mov_b32 {v(vT+1)}, s{sT2}")
    a(f"ds_read_b32 {v(vT+4)}, {v(vT+1)} offset:{LDS_XN}")
    a(f"s_load_dword s{sXD}, {sp(sX)}, s{sT2}")
    h0, h1 = vG, vG+1
    a("s_waitcnt lgkmcnt(0)")
    a(f"v_lshlrev_b32 {v(h0)}, 16, {v(vT+4)}")
    a(f"v_and_b32 {v(h1)}, 0xffff0000, {v(vT+4)}")
    ln_apply2(h0, h1, vT)
    rbf2(h0, h1)
    QB = vW + 8
    a(f"s_mov_b32 s{sT3}, 0")
    if G.nolight:
        if G.ack & 1: a("s_waitcnt vmcnt(0)")
        elif G.q_first: a(f"s_sleep {G.q_first}")
        for ks in range(4):
            for m in range(4):
                a(f"global_load_dwordx4 {vr(QB+16*ks+4*m,4)}, {v(vT+22+ks)}, {sp(sWS)} offset:{1024*m} sc1")
        lab("L_pollQ")
        a("s_mov_b32 s62, 0")
        a("s_waitcnt vmcnt(0)")
        for k in range(16):
            a(f"v_xor_b32 {v(vT+1)}, s{sTAGL}, {v(QB+4*k+2)}")
            a(f"v_xor_b32 {v(vT+2)}, s{sTAGH}, {v(QB+4*k+3)}")
            a(f"v_or_b32 {v(vT)}, {v(vT+1)}, {v(vT+2)}")
            a(f"v_cmp_ne_u32 vcc, 0, {v(vT)}")
            a(f"s_cbranch_vccz L_pq{k}")
            a("s_mov_b64 exec, vcc")
            a(f"global_load_dwordx4 {vr(QB+4*k,4)}, {v(vT+22+k//4)}, {sp(sWS)} offset:{1024*(k%4)} sc1")
            a("s_mov_b64 exec, -1")
            a("s_mov_b32 s62, 1")
            lab(f"L_pq{k}")
        a("s_cmp_eq_u32 s62, 0")
        a("s_cbranch_scc1 L_pollQ_done")
        poll_tail("L_pollQ", G.q_sleep)
    else:
        a("s_mov_b64 exec, 0xffffffff")
        lab("L_pollL")
        a(f"global_load_dwordx2 {vr(QB,2)}, {v(vT+26)}, {sp(sWS)} offset:504 sc1")
        a("s_waitcnt vmcnt(0)")
        a(f"v_cmp_ne_u32 vcc, s{sTAGH}, {v(QB+1)}")
        a("s_and_b64 exec, exec, vcc")
        a("s_cbranch_execz L_pollL_done")
        poll_tail("L_pollL", G.q_sleep)
        lab("L_pollL_done")
        a("s_mov_b64 exec, -1")
        a(f"s_mov_b32 s{sT3}, 0")
        lab("L_pollQ")
        for ks in range(4):
            for m in range(4):
                a(f"global_load_dwordx4 {vr(QB+16*ks+4*m,4)}, {v(vT+22+ks)}, {sp(sWS)} offset:{1024*m} sc1")
        a("s_waitcnt vmcnt(0)")
        a(f"v_mov_b32 {v(vT)}, 0")
        for k in range(16):
            a(f"v_xor_b32 {v(vT+1)}, s{sTAGL}, {v(QB+4*k+2)}")
            a(f"v_xor_b32 {v(vT+2)}, s{sTAGH}, {v(QB+4*k+3)}")
            a(f"v_or3_b32 {v(vT)}, {v(vT)}, {v(vT+1)}, {v(vT+2)}")
        a(f"v_cmp_ne_u32 vcc, 0, {v(vT)}")
        a("s_and_b64 exec, exec, vcc")
        a("s_cbranch_execz L_pollQ_done")
        poll_tail("L_pollQ", G.q_sleep)
    lab("L_pollQ_done")
    a("s_mov_b64 exec, -1")
    stamp(4)
    a(f"v_lshlrev_b32 {v(vT)}, 2, {v(vLANE)}")
    for m in range(4):
        for e in range(2):
            a(f"v_add_f32 {v(QB+4*m+e)}, {v(QB+4*m+e)}, {v(QB+16+4*m+e)}")
            a(f"v_add_f32 {v(QB+32+4*m+e)}, {v(QB+32+4*m+e)}, {v(QB+48+4*m+e)}")
            a(f"v_add_f32 {v(QB+4*m+e)}, {v(QB+4*m+e)}, {v(QB+32+4*m+e)}")
        a(f"v_cvt_pk_bf16_f32 {v(QB+4*m)}, {v(QB+4*m)}, {v(QB+4*m+1)}")
        a(f"ds_write_b32 {v(vT)}, {v(QB+4*m)} offset:{LDS_Q + 256*m}")
    a("s_waitcnt lgkmcnt(0)")
    a("s_barrier")
    stamp(5)
    if G.stamps: a(f"s_memrealtime {sp(sTS0+2)}")
    wo_issue()
    a(f"v_mov_b32 {v(vT+20)}, 0")
    a(f"global_load_ushort {v(vMASK)}, {v(vT+20)}, {sp(sB2)}")
    y0, y1 = vX+2, vX+3
    a(f"v_mov_b32 {v(y0)}, 0")
    a(f"v_mov_b32 {v(y1)}, 0")
    K1 = 2.0 * math.sqrt(2.0 / math.pi) * LOG2E
    a(f"s_mov_b32 s{sT1}, 0x{f2u(-K1*0.044715):08x}")
    a(f"v_mov_b32 {v(vT+5)}, 0x{f2u(-K1):08x}")
    a(f"v_lshlrev_b32 {v(vT+6)}, 3, {v(vLANE)}")
    a(f"s_mov_b32 s{sT2}, 0")
    BW = vW
    wv1, bv1, wv2 = vX+4, vX+5, vX+6
    u0, u1, e0, e1 = vT, vT+1, vT+2, vT+3
    lab("L_bloop")
    a(f"global_load_dwordx2 {vr(BW,2)}, {v(vT+6)}, {sp(sW1)}")
    a(f"global_load_dwordx2 {vr(BW+2,2)}, {v(vT+6)}, {sp(sB1)}")
    a(f"global_load_dwordx2 {vr(BW+4,2)}, {v(vT+6)}, {sp(sW2)}")
    a(f"v_add_u32 {v(vT+6)}, 512, {v(vT+6)}")
    a("s_waitcnt vmcnt(0)")
    for j in range(4):
        d, hi = j // 2, j % 2
        for (dst, src) in ((wv1, BW+d), (bv1, BW+2+d), (wv2, BW+4+d)):
            if hi: a(f"v_and_b32 {v(dst)}, 0xffff0000, {v(src)}")
            else:  a(f"v_lshlrev_b32 {v(dst)}, 16, {v(src)}")
        a(f"v_mul_f32 {v(u0)}, {v(h0)}, {v(wv1)}")
        a(f"v_mul_f32 {v(u1)}, {v(h1)}, {v(wv1)}")
        rbf2(u0, u1)
        a(f"v_add_f32 {v(u0)}, {v(u0)}, {v(bv1)}")
        a(f"v_add_f32 {v(u1)}, {v(u1)}, {v(bv1)}")
        rbf2(u0, u1)
        a(f"v_mul_f32 {v(e0)}, {v(u0)}, {v(u0)}")
        a(f"v_mul_f32 {v(e1)}, {v(u1)}, {v(u1)}")
        a(f"v_fma_f32 {v(e0)}, {v(e0)}, s{sT1}, {v(vT+5)}")
        a(f"v_fma_f32 {v(e1)}, {v(e1)}, s{sT1}, {v(vT+5)}")
        a(f"v_mul_f32 {v(e0)}, {v(e0)}, {v(u0)}")
        a(f"v_mul_f32 {v(e1)}, {v(e1)}, {v(u1)}")
        a(f"v_exp_f32 {v(e0)}, {v(e0)}")
        a(f"v_exp_f32 {v(e1)}, {v(e1)}")
        nop(1)
        a(f"v_add_f32 {v(e0)}, 1.0, {v(e0)}")
        a(f"v_add_f32 {v(e1)}, 1.0, {v(e1)}")
        a(f"v_rcp_f32 {v(e0)}, {v(e0)}")
        a(f"v_rcp_f32 {v(e1)}, {v(e1)}")
        nop(1)
        a(f"v_mul_f32 {v(e0)}, {v(e0)}, {v(u0)}")
        a(f"v_mul_f32 {v(e1)}, {v(e1)}, {v(u1)}")
        rbf2(e0, e1)
        a(f"v_fmac_f32 {v(y0)}, {v(e0)}, {v(wv2)}")
        a(f"v_fmac_f32 {v(y1)}, {v(e1)}, {v(wv2)}")
    a(f"s_add_u32 s{sT2}, s{sT2}, 1")
    a(f"s_cmp_lt_u32 s{sT2}, 7")
    a("s_cbranch_scc1 L_bloop")
    allred64("v_add_f32", y0, vT)
    allred64("v_add_f32", y1, vT)
    a(f"v_lshlrev_b32 {v(vT+2)}, 16, {v(vMASK)}")
    rbf2(y0, y1)
    a(f"v_add_f32 {v(y0)}, {v(y0)}, {v(vT+2)}")
    a(f"v_add_f32 {v(y1)}, {v(y1)}, {v(vT+2)}")
    rbf2(y0, y1)
    g0, g1 = vG, vG+1
    a(f"v_mul_f32 {v(e0)}, s{sLOG2E}, {v(y0)}")
    a(f"v_mul_f32 {v(e1)}, s{sLOG2E}, {v(y1)}")
    a(f"v_exp_f32 {v(e0)}, -{v(e0)}")
    a(f"v_exp_f32 {v(e1)}, -{v(e1)}")
    nop(1)
    a(f"v_add_f32 {v(e0)}, 1.0, {v(e0)}")
    a(f"v_add_f32 {v(e1)}, 1.0, {v(e1)}")
    a(f"v_rcp_f32 {v(e0)}, {v(e0)}")
    a(f"v_rcp_f32 {v(e1)}, {v(e1)}")
    nop(1)
    a(f"v_mul_f32 {v(g0)}, {v(y0)}, {v(e0)}")
    a(f"v_mul_f32 {v(g1)}, {v(y1)}, {v(e1)}")
    rbf2(g0, g1)
    tail_addr()
    a(f"s_lshl_b32 s{sT2}, s{sG}, 5")
    a(f"s_add_u32 s{sT2}, s{sT2}, s{sI}")
    a(f"s_lshl_b32 s{sT2}, s{sT2}, 12")
    a(f"s_add_u32 s{sT1}, s{sT2}, {WS_P2}")
    a(f"v_add_u32 {v(vA+8)}, s{sT1}, {v(vVOFF)}")
    a(f"s_add_u32 s{sT1}, s{sT2}, {WS_S2}")
    a(f"v_and_b32 {v(vT)}, 15, {v(vLANE)}")
    a(f"v_lshlrev_b32 {v(vT)}, 6, {v(vT)}")
    a(f"v_bfe_u32 {v(vT+1)}, {v(vLANE)}, 4, 1")
    a(f"v_lshl_add_u32 {v(vT)}, {v(vT+1)}, 5, {v(vT)}")
    a(f"v_lshrrev_b32 {v(vT+1)}, 5, {v(vLANE)}")
    a(f"v_lshl_add_u32 {v(vT)}, {v(vT+1)}, 4, {v(vT)}")
    a(f"v_add_u32 {v(vA+9)}, s{sT1}, {v(vT)}")
    a(f"s_lshl_b32 s{sT1}, s{sC0}, 3")
    a(f"s_add_u32 s{sT1}, s{sT1}, {WS_S2}")
    a(f"v_lshl_add_u32 {v(vPA)}, {v(vLANE)}, 12, s{sT1}")
    a(f"v_add_u32 {v(vPA+1)}, 0x40000, {v(vPA)}")
    a(f"v_add_u32 {v(vPA+2)}, 0x80000, {v(vPA)}")
    a(f"v_add_u32 {v(vPA+3)}, 0xc0000, {v(vPA)}")
    a(f"v_and_b32 {v(vT)}, 15, {v(vLANE)}")
    a(f"v_and_b32 {v(vT+1)}, 1, {v(vLANE)}")
    a(f"v_cmp_eq_u32 vcc, 1, {v(vT+1)}")
    a(f"v_mov_b32 {v(vT+2)}, 0xffff")
    a(f"v_mov_b32 {v(vT+3)}, 0xffff0000")
    a(f"v_cndmask_b32 {v(vT+2)}, {v(vT+2)}, {v(vT+3)}, vcc")
    a(f"v_lshrrev_b32 {v(vT)}, 1, {v(vT)}")
    for r in range(4):
        a(f"v_cmp_eq_u32 vcc, {r}, {v(vT)}")
        nop(2)
        a(f"v_cndmask_b32 {v(vMASK+r)}, 0, {v(vT+2)}, vcc")
    a(f"s_lshl_b32 s{sT1}, s{sC0}, 1")
    a(f"v_mov_b32 {v(vA+10)}, s{sT1}")
    a(f"s_lshl_b32 s{sT1}, s{sXD}, 16")
    a(f"s_and_b32 s{sT2}, s{sXD}, 0xffff0000")
    a(f"v_mov_b32 {v(vA+11)}, s{sT1}")
    a(f"v_mov_b32 {v(vA+12)}, s{sT2}")
    a(f"s_mov_b32 s{sT0}, 0x05040100")
    if G.touch_out:
        a(f"global_load_dword {v(vW)}, {v(vA+10)}, {sp(sOUT)}")
    if G.tlbwarm:
        if G.pairpool:
            a(f"s_lshr_b32 s{sT1}, s{sA}, 1")
        else:
            a(f"s_add_u32 s{sT1}, s{sBH}, s{sA}")
            a(f"s_and_b32 s{sT1}, s{sT1}, 3")
        a(f"s_lshl_b32 s{sT1}, s{sT1}, 22")
        a(f"s_lshl_b32 s{sT2}, s{sG}, 24")
        a(f"s_add_u32 s{sT1}, s{sT1}, s{sT2}")
        a(f"s_add_u32 s{sT1}, s{sT1}, {REG - 64}")
        a(f"v_and_b32 {v(vT)}, 1, {v(vLANE)}")
        a(f"v_lshl_add_u32 {v(vT)}, {v(vT)}, 21, s{sT1}")
        a("s_mov_b64 exec, 3")
        a(f"global_load_dword {v(vW+1)}, {v(vT)}, {sp(sK)} nt")
        a(f"global_load_dword {v(vW+2)}, {v(vT)}, {sp(sV)} nt")
        a("s_mov_b64 exec, -1")
    if G.touch_out or G.tlbwarm: a("s_waitcnt vmcnt(0)")
    if G.pretouch & 1:
        for k in range(4):
            a(f"global_load_dwordx4 {vr(vW+4*k,4)}, {v(vA+8)}, {sp(sWS)} offset:{1024*k} sc1")
    if G.pretouch & 2:
        for k in range(4):
            a(f"global_load_dwordx4 {vr(vW+4*k,4)}, {v(vPA+k)}, {sp(sWS)} sc1")
    if G.pretouch & 4:
        a(f"global_load_dword {v(vW)}, {v(vA+10)}, {sp(sOUT)}")
    if G.pretouch: a("s_waitcnt vmcnt(0)")
    if G.stamps: a(f"s_memrealtime s[100:101]")
    a("s_branch L_tail")

    lab("L_stream")
    G.vm = []
    a(f"v_and_b32 {v(vT)}, 3, {v(vLANE)}")
    a(f"v_lshlrev_b32 {v(vT)}, 2, {v(vT)}")
    a(f"v_bfe_u32 {v(vT+1)}, {v(vLANE)}, 2, 2")
    a(f"v_add_u32 {v(vT)}, {v(vT)}, {v(vT+1)}")
    a(f"v_lshlrev_b32 {v(vT)}, 8, {v(vT)}")
    a(f"v_lshrrev_b32 {v(vT+1)}, 4, {v(vLANE)}")
    a(f"v_lshl_add_u32 {v(vKOFF)}, {v(vT+1)}, 4, {v(vT)}")
    a(f"s_mul_i32 s{sSTAT}, s{sBH}, 3")
    a(f"s_add_u32 s{sSTAT}, s{sSTAT}, s{sWV}")
    a(f"s_sub_u32 s{sSTAT}, s{sSTAT}, 1")
    a(f"s_lshl_b32 s{sSTAT}, s{sSTAT}, 12")
    a(f"s_lshl_b32 s{sT1}, s{sG}, 24")
    if G.mode == 2:
        a(f"s_mul_i32 s{sT2}, s{sA}, {12*4096}")
    else:
        a(f"s_lshl_b32 s{sT2}, s{sA}, 21")
    a(f"s_add_u32 s{sSTAT}, s{sSTAT}, s{sT2}")
    a("s_waitcnt lgkmcnt(0)")
    for srd, ptr in ((srdK, sK), (srdV, sV)):
        a(f"s_add_u32 s{srd}, s{ptr}, s{sT1}")
        a(f"s_addc_u32 s{srd+1}, s{ptr+1}, 0")
        a(f"s_and_b32 s{srd+1}, s{srd+1}, 0xffff")
        a(f"s_mov_b32 s{srd+2}, 0x{LIM:x}")
        a(f"s_mov_b32 s{srd+3}, 0x20000")
    if G.hstart: a("s_barrier")
    def setup_consts():
        Z = 0x0c0c0c0c
        lo_to_lo, lo_to_hi = 0x0c0c0100, 0x01000c0c
        hi_to_lo, hi_to_hi = 0x0c0c0302, 0x03020c0c
        a(f"v_and_b32 {v(vT+1)}, 3, {v(vLANE)}")
        for k in range(4): a(f"v_mov_b32 {v(vSEL+k)}, 0x{Z:08x}")
        for jp, (sr, val_lo, val_hi) in enumerate(((0, lo_to_lo, hi_to_lo), (0, lo_to_hi, hi_to_hi), (1, lo_to_lo, hi_to_lo), (1, lo_to_hi, hi_to_hi))):
            a(f"v_cmp_eq_u32 vcc, {jp}, {v(vT+1)}")
            a(f"v_mov_b32 {v(vT+2)}, 0x{val_lo:08x}")
            a(f"v_mov_b32 {v(vT+3)}, 0x{val_hi:08x}")
            a(f"v_cndmask_b32 {v(vSEL+sr)}, {v(vSEL+sr)}, {v(vT+2)}, vcc")
            a(f"v_cndmask_b32 {v(vSEL+2+sr)}, {v(vSEL+2+sr)}, {v(vT+3)}, vcc")
        for k in range(8): a(f"v_mov_b32 {v(vO+k)}, 0")
        a(f"v_mov_b32 {v(vNM)}, 0")
        a(f"v_mov_b32 {v(vL)}, 0")
        a(f"s_mov_b32 s{sTHR}, 0xff800000")
        a(f"s_mov_b32 s{sFLOOR}, 0xff7fffff")
        a(f"s_mov_b32 s{sSCALE}, 0x{f2u(SCALE):08x}")
        a(f"s_mov_b32 s{sEXH}, 0")
        a(f"s_mov_b32 s{sN}, {R}")
        if G.pairpool:
            a(f"s_lshr_b32 s{sT1}, s{sA}, 1")
        else:
            a(f"s_add_u32 s{sT1}, s{sBH}, s{sA}")
            a(f"s_and_b32 s{sT1}, s{sT1}, 3")
        if G.dyn:
            a(f"s_lshl_b32 s{sDYNB}, s{sT1}, {12 if G.mode == 2 else 22}")
            a(f"s_add_u32 s{sDYNB}, s{sDYNB}, {NS*TSTR}")
        else:
            a(f"s_add_u32 s{sDYNB}, s{sA}, 1")
            a(f"s_lshl_b32 s{sDYNB}, s{sDYNB}, 21")
        a(f"s_lshl_b32 s{sT2}, s{sG}, 2")
        a(f"s_add_u32 s{sT2}, s{sT2}, s{sT1}")
        a(f"s_mul_i32 s{sCNTOFF}, s{sT2}, {CNT_STRIDE}")
        a(f"s_add_u32 s{sCNTOFF}, s{sCNTOFF}, {WS_CNT}")
        for k in range(4): a(f"s_mov_b32 s{sTK+k}, 0")
        a(f"v_bfe_u32 {v(vT+8)}, {v(vLANE)}, 2, 2")
        a(f"v_lshlrev_b32 {v(vT+8)}, 8, {v(vT+8)}")
        a(f"v_lshrrev_b32 {v(vT+1)}, 4, {v(vLANE)}")
        a(f"v_lshl_add_u32 {v(vT+8)}, {v(vT+1)}, 4, {v(vT+8)}")
    for n in range(R):
        if n >= A:
            wait_vm(("K", n - A))
        issue_tile(n, f"s{sSTAT}", n)
        a(f"s_add_u32 s{sSTAT}, s{sSTAT}, {TSTR}")
        if n == A - 1:
            setup_consts()
        if n == 3:
            tail_addr()
        if G.stamps and not G.tstamps and n in (1, 3, 5, 7, 9, 11): a(f"s_memrealtime s[{4+2*(n//2)}:{5+2*(n//2)}]")
    a("s_barrier")
    for t in range(4):
        a(f"ds_read_b128 {vr(vQ+4*t,4)}, {v(vT+8)} offset:{LDS_Q + 64*t}")
    a(f"v_mov_b32 {v(vT)}, 0")
    a(f"ds_read_b64 {vr(vT+2,2)}, {v(vT)} offset:{LDS_TG}")
    if G.stamps: a(f"s_memrealtime {sp(sTS0+2)}")
    a("s_waitcnt lgkmcnt(0)")
    a(f"v_readfirstlane_b32 s{sTAGL}, {v(vT+2)}")
    a(f"v_readfirstlane_b32 s{sTAGH}, {v(vT+3)}")
    a(f"s_and_b32 s{sTG16}, s{sTAGL}, 0xffff0000")

    rare_id = [0]
    def compute_qk(slot):
        for t in range(4):
            cc = "0" if t == 0 else vr(vS, 4)
            a(f"v_mfma_f32_16x16x32_bf16 {vr(vS,4)}, {slot_reg(slot,4*t,4)}, {vr(vQ+4*t,4)}, {cc}")
    def softmax():
        rid = rare_id[0]; rare_id[0] += 1
        p01, p23 = vT, vT+1
        b = vT + 2
        a(f"v_cvt_pk_bf16_f32 {v(p01)}, {v(vS)}, {v(vS+1)}")
        a(f"v_cvt_pk_bf16_f32 {v(p23)}, {v(vS+2)}, {v(vS+3)}")
        a(f"v_lshlrev_b32 {v(b)}, 16, {v(p01)}")
        a(f"v_and_b32 {v(b+1)}, 0xffff0000, {v(p01)}")
        a(f"v_lshlrev_b32 {v(b+2)}, 16, {v(p23)}")
        a(f"v_and_b32 {v(b+3)}, 0xffff0000, {v(p23)}")
        for k in range(4): a(f"v_mul_f32 {v(b+k)}, s{sSCALE}, {v(b+k)}")
        a(f"v_cvt_pk_bf16_f32 {v(p01)}, {v(b)}, {v(b+1)}")
        a(f"v_cvt_pk_bf16_f32 {v(p23)}, {v(b+2)}, {v(b+3)}")
        a(f"v_lshlrev_b32 {v(b)}, 16, {v(p01)}")
        a(f"v_and_b32 {v(b+1)}, 0xffff0000, {v(p01)}")
        a(f"v_lshlrev_b32 {v(b+2)}, 16, {v(p23)}")
        a(f"v_and_b32 {v(b+3)}, 0xffff0000, {v(p23)}")
        for k in range(4): a(f"v_fma_f32 {v(b+k)}, {v(b+k)}, s{sLOG2E}, {v(vNM)}")
        mx = vT + 6
        a(f"v_max3_f32 {v(mx)}, {v(b)}, {v(b+1)}, {v(b+2)}")
        a(f"v_max_f32 {v(mx)}, {v(mx)}, {v(b+3)}")
        a(f"v_cmp_lt_f32 vcc, s{sTHR}, {v(mx)}")
        a(f"s_cbranch_vccz L_back{rid}")
        a(f"s_call_b64 {sp(sPC)}, L_rare")
        lab(f"L_back{rid}")
        for k in range(4): a(f"v_exp_f32 {v(b+k)}, {v(b+k)}")
        nop(1)
        a(f"v_cvt_pk_bf16_f32 {v(p01)}, {v(b)}, {v(b+1)}")
        a(f"v_cvt_pk_bf16_f32 {v(p23)}, {v(b+2)}, {v(b+3)}")
        a(f"v_add_f32 {v(b)}, {v(b)}, {v(b+1)}")
        a(f"v_add_f32 {v(b+2)}, {v(b+2)}, {v(b+3)}")
        for k in range(4): a(f"v_perm_b32 {v(vX+k)}, {v(p01)}, {v(p01)}, {v(vSEL+k)}")
        for k in range(4): a(f"v_perm_b32 {v(vX+4+k)}, {v(p23)}, {v(p23)}, {v(vSEL+k)}")
        a(f"v_add_f32 {v(b)}, {v(b)}, {v(b+2)}")
        a(f"v_add_f32 {v(vL)}, {v(vL)}, {v(b)}")
    def compute_pv(slot):
        for u in range(4):
            a(f"v_mfma_f32_16x16x16_bf16 {vr(vO,4)}, {vr(vX+2*u,2)}, {slot_reg(slot,16+4*u,2)}, {vr(vO,4)}")
            a(f"v_mfma_f32_16x16x16_bf16 {vr(vO+4,4)}, {vr(vX+2*u,2)}, {slot_reg(slot,16+4*u+2,2)}, {vr(vO+4,4)}")

    k_iss = 0
    for n in range(R + E - A):
        slot = n if n < R else n - R
        c(f"catch-up step {n}")
        wait_vm(("K", n))
        compute_qk(slot)
        nop(8)
        softmax()
        wait_vm(("V", n))
        compute_pv(slot)
        if n in G.cu_issue:
            assert k_iss <= n
            next_tile(k_iss, R + k_iss, track=True)
            k_iss += 1
    assert k_iss == E
    lab("L_loop")
    for k in range(4):
        s = (E - A + k) % 4
        c(f"steady step slot {s}")
        ns = (s + A) % 4
        a(f"s_cmp_ge_u32 s{sOFF+s}, 0x{LIM:x}")
        a("s_cbranch_scc1 L_done")
        a(f"s_waitcnt vmcnt({8*A-4})")
        compute_qk(s)
        next_tile(ns)
        softmax()
        a(f"s_waitcnt vmcnt({8*A})")
        compute_pv(s)
    a("s_branch L_loop")

    lab("L_rare")
    b = vT + 2; mx = vT + 6; t = vT + 7; f = vT + 8
    allred_rows("v_max_f32", mx, t)
    a(f"v_max_f32 {v(mx)}, s{sFLOOR}, {v(mx)}")
    for k in range(4): a(f"v_sub_f32 {v(b+k)}, {v(b+k)}, {v(mx)}")
    a(f"v_sub_f32 {v(vNM)}, {v(vNM)}, {v(mx)}")
    a(f"v_max_f32 {v(t)}, 0, {v(mx)}")
    a(f"v_exp_f32 {v(t)}, -{v(t)}")
    nop(1)
    a(f"v_mul_f32 {v(vL)}, {v(vL)}, {v(t)}")
    nop(1)
    for h in range(4):
        a(f"v_mov_b32_dpp {v(f)}, {v(t)} row_newbcast:{4*h} row_mask:0x{1<<h:x} bank_mask:0xf")
    for k in range(8): a(f"v_mul_f32 {v(vO+k)}, {v(vO+k)}, {v(f)}")
    a(f"s_mov_b32 s{sTHR}, 0x{f2u(G.T):08x}")
    a(f"s_mov_b32 s{sFLOOR}, 0")
    a(f"s_setpc_b64 {sp(sPC)}")

    def stageA():
        a(f"v_cmp_ne_u32 vcc, 0, {v(vA+6)}")
        a("s_waitcnt lgkmcnt(0)")
        tstamp(0)
        a("s_barrier")
        if G.tstamps:
            tstamp(1); a("s_waitcnt lgkmcnt(0)")
        a(f"ds_read_b64 {vr(vQ+2,2)}, {v(vA+3)} offset:{LDS_ML+8}")
        a(f"ds_read_b128 {vr(vQ+4,4)}, {v(vA+3)} offset:{LDS_ML+16}")
        OO = vT + 4
        for w in range(1, 4):
            a(f"ds_read_b64 {vr(OO+2*w,2)}, {v(vA+4)} offset:{LDS_O + 2048*w}")
        RES = vQ + 12
        a(f"v_mov_b32 {v(RES+3)}, s{sTAGH}")
        a("s_waitcnt lgkmcnt(3)")
        nmM = vQ + 8
        a(f"v_min3_f32 {v(nmM)}, {v(vQ+2)}, {v(vQ+4)}, {v(vQ+6)}")
        for k in range(1, 4): a(f"v_sub_f32 {v(vQ+2*k)}, {v(nmM)}, {v(vQ+2*k)}")
        for k in range(1, 4): a(f"v_exp_f32 {v(vQ+2*k)}, {v(vQ+2*k)}")
        nop(1)
        a(f"v_mul_f32 {v(nmM+1)}, {v(vQ+2)}, {v(vQ+3)}")
        for k in range(2, 4): a(f"v_fmac_f32 {v(nmM+1)}, {v(vQ+2*k)}, {v(vQ+2*k+1)}")
        a(f"v_cndmask_b32 {v(nmM)}, {v(nmM)}, {v(nmM+1)}, vcc")
        a(f"v_bfe_u32 {v(nmM)}, {v(nmM)}, {v(vA+5)}, 16")
        a(f"v_or_b32 {v(RES+2)}, s{sTG16}, {v(nmM)}")
        a("s_waitcnt lgkmcnt(0)")
        for e in range(2): a(f"v_mul_f32 {v(RES+e)}, {v(vQ+2)}, {v(OO+2+e)}")
        for k in range(2, 4):
            for e in range(2): a(f"v_fmac_f32 {v(RES+e)}, {v(vQ+2*k)}, {v(OO+2*k+e)}")
        a(f"global_store_dwordx4 {v(vA)}, {vr(RES,4)}, {sp(sWS)} {G.stf}")
        tstamp(2)
    lab("L_done")
    if G.stamps: a(f"s_memrealtime s[100:101]")
    allred_rows("v_add_f32", vL, vT)
    a(f"ds_write_b128 {v(vA+1)}, {vr(vO,4)} offset:{LDS_O}")
    a(f"ds_write_b128 {v(vA+1)}, {vr(vO+4,4)} offset:{LDS_O+16}")
    a(f"ds_write_b64 {v(vA+2)}, {vr(vNM,2)} offset:{LDS_ML}")
    stageA()
    a("s_branch L_fin")
    lab("L_tail")
    stageA()
    PB = vW
    a(f"s_mov_b32 s{sT3}, 0")
    if G.apoll & 1:
        a(f"s_xor_b32 s{sT1}, s{sTAGH}, 1")
        for k in range(4): a(f"v_mov_b32 {v(PB+4*k+3)}, s{sT1}")
    if G.ack & 2: a("s_waitcnt vmcnt(0)")
    elif G.pb_first: a(f"s_sleep {G.pb_first}")
    lab("L_pollB")
    for k in range(4):
        a(f"global_load_dwordx4 {vr(PB+4*k,4)}, {v(vA+8)}, {sp(sWS)} offset:{1024*k} {G.ldf}")
    if G.apoll & 1:
        a(f"s_sleep {G.ap_sleep}")
        a("s_waitcnt vmcnt(32)")
    else:
        a("s_waitcnt vmcnt(0)")
    a(f"v_xor_b32 {v(vT)}, s{sTG16}, {v(PB+2)}")
    a(f"v_xor_b32 {v(vT+1)}, s{sTG16}, {v(PB+6)}")
    a(f"v_xor_b32 {v(vT+2)}, s{sTG16}, {v(PB+10)}")
    a(f"v_xor_b32 {v(vT+3)}, s{sTG16}, {v(PB+14)}")
    a(f"v_or3_b32 {v(vT)}, {v(vT)}, {v(vT+1)}, {v(vT+2)}")
    a(f"v_or_b32 {v(vT)}, {v(vT)}, {v(vT+3)}")
    a(f"v_lshrrev_b32 {v(vT)}, 16, {v(vT)}")
    a(f"v_xor_b32 {v(vT+1)}, s{sTAGH}, {v(PB+3)}")
    a(f"v_xor_b32 {v(vT+2)}, s{sTAGH}, {v(PB+7)}")
    a(f"v_or3_b32 {v(vT)}, {v(vT)}, {v(vT+1)}, {v(vT+2)}")
    a(f"v_xor_b32 {v(vT+1)}, s{sTAGH}, {v(PB+11)}")
    a(f"v_xor_b32 {v(vT+2)}, s{sTAGH}, {v(PB+15)}")
    a(f"v_or3_b32 {v(vT)}, {v(vT)}, {v(vT+1)}, {v(vT+2)}")
    a(f"v_cmp_ne_u32 vcc, 0, {v(vT)}")
    a("s_and_b64 exec, exec, vcc")
    a("s_cbranch_execz L_pollB_done")
    poll_tail("L_pollB", G.pb_sleep)
    lab("L_pollB_done")
    if G.apoll & 1: a("s_waitcnt vmcnt(0)")
    tstamp(3)
    a("s_mov_b64 exec, -1")
    NMr, Lr = vT + 4, vT + 8
    TA, TB = vT + 12, vT + 16
    for k in range(4):
        a(f"v_mov_b32_dpp {v(TA+k)}, {v(PB+4*k+2)} quad_perm:[0,0,0,0] {DPP}")
        a(f"v_mov_b32_dpp {v(TB+k)}, {v(PB+4*k+2)} quad_perm:[1,1,1,1] {DPP}")
    for k in range(4):
        a(f"v_perm_b32 {v(NMr+k)}, {v(TB+k)}, {v(TA+k)}, s{sT0}")
    M = vT
    a(f"v_min3_f32 {v(M)}, {v(NMr)}, {v(NMr+1)}, {v(NMr+2)}")
    a(f"v_min_f32 {v(M)}, {v(M)}, {v(NMr+3)}")
    a(f"v_mov_b32_dpp {v(TA)}, {v(PB+2)} quad_perm:[2,2,2,2] {DPP}")
    a(f"v_mov_b32_dpp {v(TB)}, {v(PB+2)} quad_perm:[3,3,3,3] {DPP}")
    a(f"v_min_f32_dpp {v(M)}, {v(M)}, {v(M)} row_ror:8 {DPP}")
    a(f"v_mov_b32 {v(vT+1)}, {v(M)}")
    a(f"v_mov_b32_dpp {v(TA+1)}, {v(PB+6)} quad_perm:[2,2,2,2] {DPP}")
    a(f"v_mov_b32_dpp {v(TB+1)}, {v(PB+6)} quad_perm:[3,3,3,3] {DPP}")
    a(f"v_permlane16_swap_b32 {v(M)}, {v(vT+1)}")
    a(f"v_mov_b32_dpp {v(TA+2)}, {v(PB+10)} quad_perm:[2,2,2,2] {DPP}")
    a(f"v_min_f32 {v(M)}, {v(M)}, {v(vT+1)}")
    a(f"v_mov_b32 {v(vT+1)}, {v(M)}")
    a(f"v_mov_b32_dpp {v(TB+2)}, {v(PB+10)} quad_perm:[3,3,3,3] {DPP}")
    a(f"v_mov_b32_dpp {v(TA+3)}, {v(PB+14)} quad_perm:[2,2,2,2] {DPP}")
    a(f"v_permlane32_swap_b32 {v(M)}, {v(vT+1)}")
    a(f"v_mov_b32_dpp {v(TB+3)}, {v(PB+14)} quad_perm:[3,3,3,3] {DPP}")
    a(f"v_min_f32 {v(M)}, {v(M)}, {v(vT+1)}")
    for k in range(4): a(f"v_sub_f32 {v(NMr+k)}, {v(M)}, {v(NMr+k)}")
    for k in range(4): a(f"v_exp_f32 {v(NMr+k)}, {v(NMr+k)}")
    for k in range(4): a(f"v_perm_b32 {v(Lr+k)}, {v(TB+k)}, {v(TA+k)}, s{sT0}")
    o0, o1, la, lb = vT, vT+1, vT+2, vT+3
    a(f"v_mul_f32 {v(o0)}, {v(NMr)}, {v(PB)}")
    a(f"v_mul_f32 {v(o1)}, {v(NMr)}, {v(PB+1)}")
    a(f"v_mul_f32 {v(la)}, {v(NMr)}, {v(Lr)}")
    for k in range(1, 4):
        a(f"v_fmac_f32 {v(o0)}, {v(NMr+k)}, {v(PB+4*k)}")
        a(f"v_fmac_f32 {v(o1)}, {v(NMr+k)}, {v(PB+4*k+1)}")
        a(f"v_fmac_f32 {v(la)}, {v(NMr+k)}, {v(Lr+k)}")
    a(f"v_mov_b32 {v(lb)}, {v(la)}")
    a(f"v_permlane32_swap_b32 {v(o0)}, {v(o1)}")
    nop(1)
    a(f"v_permlane32_swap_b32 {v(la)}, {v(lb)}")
    a(f"v_add_f32 {v(o0)}, {v(o0)}, {v(o1)}")
    a(f"v_add_f32 {v(la)}, {v(la)}, {v(lb)}")
    a(f"v_mov_b32 {v(o1)}, {v(o0)}")
    a(f"v_mov_b32 {v(lb)}, {v(la)}")
    nop(1)
    a(f"v_permlane16_swap_b32 {v(o0)}, {v(o1)}")
    a(f"v_permlane16_swap_b32 {v(la)}, {v(lb)}")
    a(f"v_add_f32 {v(o0)}, {v(o0)}, {v(o1)}")
    a(f"v_add_f32 {v(la)}, {v(la)}, {v(lb)}")
    nop(1)
    a(f"v_add_f32_dpp {v(o0)}, {v(o0)}, {v(o0)} row_ror:8 {DPP}")
    a(f"v_add_f32_dpp {v(la)}, {v(la)}, {v(la)} row_ror:8 {DPP}")
    a(f"v_rcp_f32 {v(lb)}, {v(la)}")
    a(f"v_mov_b32_dpp {v(o0)}, {v(o0)} row_shl:1 row_mask:0xa bank_mask:0xf")
    a(f"v_fma_f32 {v(o1)}, -{v(la)}, {v(lb)}, 1.0")
    a(f"v_fma_f32 {v(lb)}, {v(o1)}, {v(lb)}, {v(lb)}")
    a(f"v_mul_f32 {v(o0)}, {v(o0)}, {v(lb)}")
    a(f"v_cvt_pk_bf16_f32 {v(o0)}, {v(o0)}, {v(o0)}")
    nop(2)
    AO = vQ
    DD = vW + 16
    for u in range(4):
        for r in range(4):
            a(f"v_and_b32_dpp {v(AO+4*u+r)}, {v(o0)}, {v(vMASK+r)} row_newbcast:{2*u} {DPP}")
    nop(1)
    for cb in range(4):
        for u in range(4):
            cc = "0" if u == 0 else vr(DD+4*cb, 4)
            a(f"v_mfma_f32_16x16x32_bf16 {vr(DD+4*cb,4)}, {vr(AO+4*u,4)}, {vr(vWO+16*cb+4*u,4)}, {cc}")
    for cb in range(4):
        d = DD + 4*cb
        if cb == 3: nop(2)
        a(f"v_permlane32_swap_b32 {v(d)}, {v(d+2)}")
        a(f"v_permlane32_swap_b32 {v(d+1)}, {v(d+3)}")
        a(f"v_mov_b32 {v(d+2)}, s{sTAGL}")
        a(f"v_mov_b32 {v(d+3)}, s{sTAGH}")
        a(f"global_store_dwordx4 {v(vA+9)}, {vr(d,4)}, {sp(sWS)} offset:{1024*cb} {G.stf}")
    tstamp(4)
    PC = vW
    a(f"s_mov_b32 s{sT3}, 0")
    if G.apoll & 2:
        a(f"s_xor_b32 s{sT1}, s{sTAGH}, 1")
        for k in range(4): a(f"v_mov_b32 {v(PC+4*k+3)}, s{sT1}")
    if G.ack & 4: a("s_waitcnt vmcnt(0)")
    elif G.pc_first: a(f"s_sleep {G.pc_first}")
    lab("L_pollC")
    for k in range(4):
        a(f"global_load_dwordx4 {vr(PC+4*k,4)}, {v(vPA+k)}, {sp(sWS)} {G.ldf}")
    if G.apoll & 2:
        a(f"s_sleep {G.ap_sleep}")
        a("s_waitcnt vmcnt(32)")
    else:
        a("s_waitcnt vmcnt(0)")
    a(f"v_xor_b32 {v(vT)}, s{sTAGL}, {v(PC+2)}")
    a(f"v_xor_b32 {v(vT+1)}, s{sTAGH}, {v(PC+3)}")
    for k in range(1, 4):
        a(f"v_xor_b32 {v(vT+2)}, s{sTAGL}, {v(PC+4*k+2)}")
        a(f"v_xor_b32 {v(vT+3)}, s{sTAGH}, {v(PC+4*k+3)}")
        a(f"v_or3_b32 {v(vT)}, {v(vT)}, {v(vT+2)}, {v(vT+3)}")
    a(f"v_or_b32 {v(vT)}, {v(vT)}, {v(vT+1)}")
    a(f"v_cmp_ne_u32 vcc, 0, {v(vT)}")
    a("s_and_b64 exec, exec, vcc")
    a("s_cbranch_execz L_pollC_done")
    poll_tail("L_pollC", G.pc_sleep)
    lab("L_pollC_done")
    if G.apoll & 2: a("s_waitcnt vmcnt(0)")
    tstamp(5)
    a("s_mov_b64 exec, -1")
    a(f"v_add_f32 {v(PC)}, {v(PC)}, {v(PC+4)}")
    a(f"v_add_f32 {v(PC+1)}, {v(PC+1)}, {v(PC+5)}")
    a(f"v_add_f32 {v(PC+8)}, {v(PC+8)}, {v(PC+12)}")
    a(f"v_add_f32 {v(PC+9)}, {v(PC+9)}, {v(PC+13)}")
    a(f"v_add_f32 {v(PC)}, {v(PC)}, {v(PC+8)}")
    a(f"v_add_f32 {v(PC+1)}, {v(PC+1)}, {v(PC+9)}")
    nop(2)
    a(f"v_permlane32_swap_b32 {v(PC)}, {v(PC+1)}")
    nop(1)
    a(f"v_add_f32 {v(PC)}, {v(PC)}, {v(PC+1)}")
    allred16("v_add_f32", PC)
    a(f"v_mov_b32 {v(vT)}, {v(PC)}")
    nop(2)
    a(f"v_permlane16_swap_b32 {v(PC)}, {v(vT)}")
    nop(1)
    a(f"v_add_f32 {v(PC)}, {v(PC)}, {v(vT)}")
    a(f"v_mov_b32 {v(PC+1)}, {v(PC)}")
    nop(2)
    a(f"v_permlane32_swap_b32 {v(PC)}, {v(PC+1)}")
    nop(1)
    rbf2(PC, PC+1)
    a(f"v_mul_f32 {v(PC)}, {v(PC)}, {v(g0)}")
    a(f"v_mul_f32 {v(PC+1)}, {v(PC+1)}, {v(g1)}")
    rbf2(PC, PC+1)
    a(f"v_add_f32 {v(PC)}, {v(PC)}, {v(vA+11)}")
    a(f"v_add_f32 {v(PC+1)}, {v(PC+1)}, {v(vA+12)}")
    a(f"v_cvt_pk_bf16_f32 {v(PC)}, {v(PC)}, {v(PC+1)}")
    a("s_mov_b64 exec, 1")
    a(f"global_store_dword {v(vA+10)}, {v(PC)}, {sp(sOUT)}")
    a("s_cmp_lg_u32 s2, 0")
    a("s_cbranch_scc1 L_noep")
    a(f"v_mov_b32 {v(vT)}, {WS_EP}")
    a(f"v_mov_b32 {v(vT+1)}, {WS_EPH}")
    a(f"v_mov_b32 {v(vT+2)}, s{sTAGL}")
    a(f"v_mov_b32 {v(vT+3)}, s{sTAGH}")
    a(f"global_store_dword {v(vT)}, {v(vT+2)}, {sp(sWS)} sc1")
    a(f"global_store_dword {v(vT+1)}, {v(vT+3)}, {sp(sWS)} sc1")
    lab("L_noep")
    a("s_mov_b64 exec, -1")
    lab("L_fin")
    if G.stamps:
        a(f"s_memrealtime s[82:83]")
        a("s_waitcnt lgkmcnt(0)")
        a(f"s_lshl_b32 s{sT2}, s2, 2")
        a(f"s_add_u32 s{sT2}, s{sT2}, s{sWV}")
        a(f"s_lshl_b32 s{sT2}, s{sT2}, 6")
        a(f"s_add_u32 s{sT2}, s{sT2}, {WS_TS}")
        a(f"v_mov_b32 v2, s{sT2}")
        a(f"v_mov_b32 v4, s{sTS0}")
        a(f"v_mov_b32 v5, s{sTS0+2}")
        a(f"v_mov_b32 v6, s100")
        a(f"v_mov_b32 v7, s82")
        a(f"v_mov_b32 v8, s{sN}")
        a(f"s_getreg_b32 s{sT2}, hwreg(HW_REG_XCC_ID)")
        a(f"v_mov_b32 v9, s{sT2}")
        a("s_mov_b64 exec, 1")
        a(f"global_store_dwordx4 v2, v[4:7], {sp(sWS)}")
        a(f"global_store_dwordx2 v2, v[8:9], {sp(sWS)} offset:16")
        for k in range(6): a(f"v_mov_b32 v{10+k}, s{4+2*k}")
        a(f"global_store_dwordx4 v2, v[10:13], {sp(sWS)} offset:32")
        a(f"global_store_dwordx2 v2, v[14:15], {sp(sWS)} offset:48")
    if G.dbgt:
        a("s_cmp_ge_u32 s2, 1")
        a("s_cbranch_scc1 L_end")
        a(f"s_memrealtime s[82:83]")
        a("s_waitcnt lgkmcnt(0)")
        a(f"s_sub_u32 s82, s82, s{sTS0}")
        a(f"s_sub_u32 s83, s{sTS0+2}, s{sTS0}")
        a(f"s_sub_u32 s84, s100, s{sTS0}")
        a(f"s_sub_u32 s85, s4, s{sTS0}")
        a(f"s_lshl_b32 s86, s{sWV}, 4")
        a("v_mov_b32 v2, s86")
        a("v_mov_b32 v4, s82"); a("v_mov_b32 v5, s83"); a("v_mov_b32 v6, s84"); a("v_mov_b32 v7, s85")
        a("s_mov_b64 exec, 1")
        a(f"global_store_dwordx4 v2, v[4:7], {sp(sDBG)}")
    lab("L_end")
    a("s_endpgm")
    tail = ['.section .rodata,"a"', ".p2align 6", f".amdhsa_kernel {KN}",
            f"  .amdhsa_next_free_vgpr {NV+256}", "  .amdhsa_next_free_sgpr 102", f"  .amdhsa_accum_offset {NV}",
            "  .amdhsa_group_segment_fixed_size 0", "  .amdhsa_kernarg_size 104", "  .amdhsa_user_sgpr_count 2",
            "  .amdhsa_user_sgpr_kernarg_segment_ptr 1", "  .amdhsa_system_sgpr_workgroup_id_x 1",
            "  .amdhsa_float_denorm_mode_32 3",
            ".end_amdhsa_kernel"]
    return "\n".join(hdr + G.L + tail) + "\n"

if __name__ == "__main__":
    import argparse, json
    ap = argparse.ArgumentParser()
    ap.add_argument("-o", default="k.s")
    ap.add_argument("kv", nargs="*")
    args = ap.parse_args()
    kw = {}
    for x in args.kv:
        k, val = x.split("=")
        kw[k] = json.loads(val)
    open(args.o, "w").write(build(**kw))
```

```python
import sys, struct, math

KN = "recurrent_scan__gqa_block_cached__mixer_token_mlp__decode_kernel"

def f2u(x):
    return struct.unpack("<I", struct.pack("<f", x))[0]

class Gen:
    def __init__(self, **kw):
        self.L = []
        self.vm = []
        self.__dict__.update(kw)
    def a(self, s): self.L.append("  " + s)
    def lab(self, s): self.L.append(s + ":")
    def c(self, s): self.L.append("  ; " + s)
    def vmem(self, s, tag=None):
        self.a(s); self.vm.append(tag)
    def wait_vm(self, tag):
        if tag not in self.vm: return
        idx = max(i for i, t in enumerate(self.vm) if t == tag)
        n = len(self.vm) - 1 - idx
        n = min(n, 63)
        self.a(f"s_waitcnt vmcnt({n})")
        self.vm = self.vm[len(self.vm)-n:] if n else []
    def nop(self, n):
        if n > 0: self.a(f"s_nop {n-1}")

WS_Q   = 0x40000
WS_EP  = 0x8000
WS_EPH = 0x300000
WS_CNT = 0x10000
CNT_STRIDE = 1280
CNT_BIAS = 0x10000
WS_P2  = 0x100000
WS_S2  = 0x200000
WS_TS  = 0x1000000
LDS_XN   = 0
LDS_Q    = 1024
LDS_ML   = 2048
LDS_O    = 2304
LDS_TG   = 2176
LDS_S    = 2304 + 8192
LDS_TOTAL = 2304 + 8192 + 2048
LOG2E = 1.4426950408889634
SCALE = 128 ** -0.5
LCG_A, LCG_C, LCG_C2 = 1664525, 1013904223, 2891336453
REG = 0x200000
LIM = 0x1000000

DEFAULTS = dict(A=2, R=8, NS=39, P=2, T=20.0, dyn=True, stamps=False, tstamps=False, poll_max=4000000,
                cu_issue=(0, 1, 5, 8), q_sleep=12, q_first=16, pretouch=0, stf='sc1', ldf='sc1', dbgt=False, hstart=8, nolight=True, apoll=0, ap_sleep=2, pb_first=10, pb_sleep=0, pc_first=24, pc_sleep=0, ack=7, ctop=0, btop=0)

def build(**kw):
    p = dict(DEFAULTS); p.update(kw)
    G = Gen(**p)
    a, lab, c, vmem, wait_vm, nop = G.a, G.lab, G.c, G.vmem, G.wait_vm, G.nop
    A, R, NS = G.A, G.R, G.NS
    E = len(G.cu_issue)
    assert A <= E <= 4 and R <= 8
    POLL_MAX = G.poll_max
    doc = """
Fused decode step: out = x + (GQA-attention(LN(x)) @ wo) * silu(mixer(LN(LN(x))))   (bf16 rounding points follow the reference)
Kernarg (ptrs): 0 x | 8 K | 16 V | 24 wq | 32 wo | 40 B_x (unused by the reference) | 48 w1 | 56 b1 | 64 w2 | 72 b2 | 80 out | 88 dbg | 96 ws
256 workgroups (one per CU) x 4 waves.  wg = (bh:2, g:3, a:3): g = kv head, a = 2 MiB key region of that head.
 wave 0 (service): LN, one 128x64 tile of xn@wq -> partial q published; gathers q of its head; mixer branch for 2 output columns;
                   final reduction of those 2 columns.
 waves 1-3: stream 16-key K/V tiles straight into registers (nt loads), QK^T and PV on MFMA, online softmax whose reference max is
            raised (with rescale) whenever a score exceeds it by more than 2^T; the last tiles come from shared ticket counters.
 tail: per-WG combine (LDS) -> tagged partials -> per-head combine + wo tile (MFMA) -> tagged partial rows -> final sum.
Every cross-workgroup word travels in a 16-byte unit carrying this launch's tag (LCG step of the epoch words kept in ws), so stale
contents of ws are never mistaken for this launch's data.  Generated by my own script (gen/gen13.py).
"""
    hdr = ["; " + l for l in doc.strip().split("\n")] + [f"; @launch grid=(256,1,1) block=(256,1,1) lds={LDS_TOTAL}",
           '.amdgcn_target "amdgcn-amd-amdhsa--gfx950"', ".text", f".globl {KN}", ".p2align 8",
           f".type {KN},@function", f"{KN}:"]
    sX, sK, sV, sWQ, sWO, sBX, sW1, sB1 = 16, 18, 20, 22, 24, 26, 28, 30
    sW2, sB2, sOUT, sDBG, sWS = 32, 34, 36, 38, 40
    sTAGL, sTAGH = 42, 43
    srdK, srdV = 44, 48
    sOFF = 52; sTK = 56; sDYNB = 60; sTG16 = 61
    sWV, sA, sB, sG, sI = 72, 73, 74, 75, 76
    sN, sSTAT, sEXH, sCNTOFF, sBH = 77, 78, 79, 80, 81
    sT0, sT1, sT2, sT3 = 82, 83, 84, 85
    sTHR, sFLOOR = 86, 87
    sXD = 88
    sC0 = 90
    sPC = 92
    sTS0 = 94
    sLOG2E, sSCALE = 98, 99
    def sp(r): return f"s[{r}:{r+1}]"
    def sq(r): return f"s[{r}:{r+3}]"
    vLANE = 1; vKOFF = 2; vVOFF = 3
    vQ = 4; vO = 20; vNM = 28; vL = 29; vSEL = 30; vS = 34; vX = 38
    vT = 46
    vA = 80
    vPA = 96
    vMASK = 100
    vW = 104
    vWO = 200
    vMSK = 216
    vG = 232
    NV = 236
    def v(r): return f"v{r}"
    def vr(r, n): return f"v[{r}:{r+n-1}]"
    def slot_reg(slot, off, n):
        if slot < 8:
            r = 32*slot + off
            return f"a[{r}:{r+n-1}]"
        r = vW + 32*(slot-8) + off
        return f"v[{r}:{r+n-1}]"
    def stamp(k):
        if G.stamps and not G.tstamps: a(f"s_memrealtime s[{4+2*k}:{5+2*k}]")
    def tstamp(k):
        if G.tstamps: a(f"s_memrealtime s[{4+2*k}:{5+2*k}]")
    DPP = "row_mask:0xf bank_mask:0xf"
    def allred16(op, r, steps=("quad_perm:[1,0,3,2]", "quad_perm:[2,3,0,1]", "row_half_mirror", "row_mirror")):
        for s in steps:
            nop(2)
            a(f"{op}_dpp {v(r)}, {v(r)}, {v(r)} {s} {DPP}")
    def allred_rows(op, r, t):
        a(f"v_mov_b32 {v(t)}, {v(r)}")
        nop(2)
        a(f"v_permlane16_swap_b32 {v(r)}, {v(t)}")
        nop(1)
        a(f"{op} {v(r)}, {v(r)}, {v(t)}")
        a(f"v_mov_b32 {v(t)}, {v(r)}")
        nop(2)
        a(f"v_permlane32_swap_b32 {v(r)}, {v(t)}")
        nop(1)
        a(f"{op} {v(r)}, {v(r)}, {v(t)}")
    def allred64(op, r, t):
        allred16(op, r); allred_rows(op, r, t)
    def rbf(r):
        a(f"v_cvt_pk_bf16_f32 {v(r)}, {v(r)}, {v(r)}")
        a(f"v_and_b32 {v(r)}, 0xffff0000, {v(r)}")
    def rbf2(r0, r1):
        a(f"v_cvt_pk_bf16_f32 {v(r1)}, {v(r0)}, {v(r1)}")
        a(f"v_lshlrev_b32 {v(r0)}, 16, {v(r1)}")
        a(f"v_and_b32 {v(r1)}, 0xffff0000, {v(r1)}")
    def poll_tail(label, sleep=0):
        if sleep: a(f"s_sleep {sleep}")
        a(f"s_add_u32 s{sT3}, s{sT3}, 1")
        a(f"s_cmp_lt_u32 s{sT3}, {POLL_MAX}")
        a(f"s_cbranch_scc1 {label}")
    def tags():
        a(f"s_mul_i32 s{sTAGL}, s{sTAGL}, {LCG_A}")
        a(f"s_add_u32 s{sTAGL}, s{sTAGL}, {LCG_C}")
        a(f"s_mul_i32 s{sTAGH}, s{sTAGH}, {LCG_A}")
        a(f"s_add_u32 s{sTAGH}, s{sTAGH}, {LCG_C2}")
        a(f"s_and_b32 s{sTG16}, s{sTAGL}, 0xffff0000")

    t0, t1, t2, t3 = vS, vS+1, vS+2, vS+3
    F = vX
    def unpack8(dst, src):
        for j in range(4):
            a(f"v_lshlrev_b32 {v(dst+2*j)}, 16, {v(src+j)}")
            a(f"v_and_b32 {v(dst+2*j+1)}, 0xffff0000, {v(src+j)}")
    def ln_stats(F):
        a(f"v_add_f32 {v(t0)}, {v(F)}, {v(F+1)}")
        a(f"v_add_f32 {v(t1)}, {v(F+2)}, {v(F+3)}")
        a(f"v_add_f32 {v(t2)}, {v(F+4)}, {v(F+5)}")
        a(f"v_add_f32 {v(t3)}, {v(F+6)}, {v(F+7)}")
        a(f"v_add_f32 {v(t0)}, {v(t0)}, {v(t1)}")
        a(f"v_add_f32 {v(t2)}, {v(t2)}, {v(t3)}")
        a(f"v_add_f32 {v(t0)}, {v(t0)}, {v(t2)}")
        allred64("v_add_f32", t0, t3)
        a(f"v_mul_f32 {v(t0)}, 0x3b000000, {v(t0)}")
        a(f"v_sub_f32 {v(t2)}, {v(F)}, {v(t0)}")
        a(f"v_mul_f32 {v(t1)}, {v(t2)}, {v(t2)}")
        for j in range(1, 8):
            a(f"v_sub_f32 {v(t2)}, {v(F+j)}, {v(t0)}")
            a(f"v_fmac_f32 {v(t1)}, {v(t2)}, {v(t2)}")
        allred64("v_add_f32", t1, t3)
        a(f"v_mul_f32 {v(t1)}, 0x3b000000, {v(t1)}")
        rbf2(t0, t1)
        a(f"v_add_f32 {v(t1)}, 0x{f2u(1e-5):08x}, {v(t1)}")
        rbf(t1)
        a(f"v_sqrt_f32 {v(t2)}, {v(t1)}")
        nop(1)
        a(f"v_rcp_f32 {v(t3)}, {v(t2)}")
        a(f"v_fma_f32 {v(vT)}, -{v(t2)}, {v(t2)}, {v(t1)}")
        a(f"v_mul_f32 {v(t3)}, 0.5, {v(t3)}")
        a(f"v_fma_f32 {v(t1)}, {v(vT)}, {v(t3)}, {v(t2)}")
        rbf(t1)
        a(f"v_rcp_f32 {v(t2)}, {v(t1)}")
        nop(1)
        a(f"v_fma_f32 {v(t3)}, -{v(t1)}, {v(t2)}, 1.0")
        a(f"v_fma_f32 {v(t2)}, {v(t3)}, {v(t2)}, {v(t2)}")
    def ln_apply2(r0, r1, tmp):
        a(f"v_sub_f32 {v(r0)}, {v(r0)}, {v(t0)}")
        a(f"v_sub_f32 {v(r1)}, {v(r1)}, {v(t0)}")
        rbf2(r0, r1)
        for r in (r0, r1):
            a(f"v_mul_f32 {v(tmp)}, {v(r)}, {v(t2)}")
            a(f"v_fma_f32 {v(r)}, -{v(tmp)}, {v(t1)}, {v(r)}")
            a(f"v_fma_f32 {v(r)}, {v(r)}, {v(t2)}, {v(tmp)}")
    def wo_issue(track=False):
        a(f"v_lshrrev_b32 {v(vT)}, 4, {v(vLANE)}")
        a(f"v_and_b32 {v(vT+1)}, 1, {v(vT)}")
        a(f"v_lshlrev_b32 {v(vT+1)}, 1, {v(vT+1)}")
        a(f"v_lshrrev_b32 {v(vT)}, 1, {v(vT)}")
        a(f"v_add_u32 {v(vT)}, {v(vT)}, {v(vT+1)}")
        a(f"v_lshlrev_b32 {v(vT)}, 10, {v(vT)}")
        a(f"v_and_b32 {v(vT+1)}, 15, {v(vLANE)}")
        a(f"v_lshl_add_u32 {v(vT)}, {v(vT+1)}, 4, {v(vT)}")
        a(f"s_lshl_b32 s{sT1}, s{sG}, 3")
        a(f"s_add_u32 s{sT1}, s{sT1}, s{sA}")
        a(f"s_lshl_b32 s{sT1}, s{sT1}, 2")
        a(f"s_add_u32 s{sT1}, s{sT1}, s{sWV}")
        a(f"s_lshl_b32 s{sT2}, s{sT1}, 12")
        a(f"s_add_u32 s{sT2}, s{sT2}, {WS_P2}")
        a(f"v_add_u32 {v(vA+8)}, s{sT2}, {v(vVOFF)}")
        a(f"s_lshl_b32 s{sT1}, s{sT1}, 14")
        a(f"s_lshl_b32 s{sT2}, s{sBH}, 8")
        a(f"s_add_u32 s{sT1}, s{sT1}, s{sT2}")
        a(f"v_add_u32 {v(vT+11)}, s{sT1}, {v(vT)}")
        a(f"v_add_u32 {v(vT+12)}, 0x1000, {v(vT+11)}")
        a(f"v_add_u32 {v(vT+13)}, 0x2000, {v(vT+11)}")
        a(f"v_add_u32 {v(vT+14)}, 0x3000, {v(vT+11)}")
        for u, r in enumerate((vT+11, vT+12, vT+13, vT+14)):
            ss = f"global_load_dwordx4 {vr(vWO+4*u,4)}, {v(r)}, {sp(sWO)} nt"
            vmem(ss, "wo") if track else a(ss)
        a(f"v_and_b32 {v(vT)}, 15, {v(vLANE)}")
        a(f"v_and_b32 {v(vT+1)}, 1, {v(vLANE)}")
        a(f"v_cmp_eq_u32 vcc, 1, {v(vT+1)}")
        a(f"v_mov_b32 {v(vT+2)}, 0xffff")
        a(f"v_mov_b32 {v(vT+3)}, 0xffff0000")
        a(f"v_cndmask_b32 {v(vT+2)}, {v(vT+2)}, {v(vT+3)}, vcc")
        a(f"v_lshrrev_b32 {v(vT+1)}, 1, {v(vT)}")
        for r in range(4):
            a(f"v_cmp_eq_u32 vcc, {r}, {v(vT+1)}")
            nop(2)
            a(f"v_cndmask_b32 {v(vMSK+r)}, 0, {v(vT+2)}, vcc")
        a(f"s_lshl_b32 s{sT1}, s{sWV}, 9")
        a(f"v_lshl_add_u32 {v(vT)}, {v(vT)}, 5, s{sT1}")
        a(f"v_bfe_u32 {v(vT+1)}, {v(vLANE)}, 4, 1")
        a(f"v_lshl_add_u32 {v(vA+7)}, {v(vT+1)}, 4, {v(vT)}")
    def tail_addr():
        a(f"s_lshl_b32 s{sT0}, s{sG}, 2")
        a(f"s_add_u32 s{sT0}, s{sT0}, s{sWV}")
        a(f"s_lshl_b32 s{sT1}, s{sT0}, 15")
        a(f"s_lshl_b32 s{sT2}, s{sI}, 7")
        a(f"s_add_u32 s{sT1}, s{sT1}, s{sT2}")
        a(f"s_add_u32 s{sT1}, s{sT1}, {WS_P2}")
        a(f"v_lshrrev_b32 {v(vT)}, 3, {v(vLANE)}")
        a(f"v_lshlrev_b32 {v(vT)}, 12, {v(vT)}")
        a(f"v_and_b32 {v(vT+1)}, 7, {v(vLANE)}")
        a(f"v_lshl_add_u32 {v(vT)}, {v(vT+1)}, 4, {v(vT)}")
        a(f"v_add_u32 {v(vA)}, s{sT1}, {v(vT)}")
        a(f"s_lshl_b32 s{sT1}, s{sWV}, 11")
        a(f"v_lshl_add_u32 {v(vA+1)}, {v(vLANE)}, 5, s{sT1}")
        a(f"v_bfe_u32 {v(vT+1)}, {v(vLANE)}, 2, 2")
        a(f"s_lshl_b32 s{sT1}, s{sWV}, 3")
        a(f"v_lshl_add_u32 {v(vA+2)}, {v(vT+1)}, 5, s{sT1}")
        a(f"s_lshl_b32 s{sT1}, s{sWV}, 5")
        a(f"v_mov_b32 {v(vA+3)}, s{sT1}")
        a(f"s_lshl_b32 s{sT1}, s{sWV}, 9")
        a(f"v_lshl_add_u32 {v(vA+4)}, {v(vLANE)}, 3, s{sT1}")
        a(f"v_and_b32 {v(vT)}, 1, {v(vLANE)}")
        a(f"v_lshlrev_b32 {v(vA+5)}, 4, {v(vT)}")
        a(f"v_and_b32 {v(vA+6)}, 2, {v(vLANE)}")
    def issue_tile(slot, soff, tag=None, track=True):
        for t in range(4):
            s = f"buffer_load_dwordx4 {slot_reg(slot,4*t,4)}, {v(vKOFF)}, {sq(srdK)}, {soff} offen offset:{64*t} nt"
            vmem(s, ("K", tag)) if track else a(s)
        for u in range(4):
            s = f"buffer_load_dwordx4 {slot_reg(slot,16+4*u,4)}, {v(vVOFF)}, {sq(srdV)}, {soff} offen offset:{1024*u} nt"
            vmem(s, ("V", tag)) if track else a(s)
    TSTR = 12 * 4096
    NDYN = 2 * (512 - NS * 12)
    uid = [0]
    def next_tile(ns, tag=None, track=False):
        u = uid[0]; uid[0] += 1
        if G.dyn:
            a(f"s_cmp_lt_u32 s{sN}, {NS}")
            a(f"s_cbranch_scc1 L_st{u}")
            a(f"s_waitcnt lgkmcnt({G.P-1})")
            a(f"s_cmp_lg_u32 s{sTK+ns}, 1")
            a(f"s_cbranch_scc1 L_tk{u}")
            a("s_waitcnt lgkmcnt(0)")
            lab(f"L_tk{u}")
            a(f"s_and_b32 s{sT1}, s{sTK+ns}, 1")
            a(f"s_lshl_b32 s{sT1}, s{sT1}, 21")
            a(f"s_and_b32 s{sSTAT}, s{sTK+ns}, 0xfffe")
            a(f"s_lshl_b32 s{sSTAT}, s{sSTAT}, 11")
            a(f"s_add_u32 s{sSTAT}, s{sSTAT}, s{sT1}")
            a(f"s_add_u32 s{sSTAT}, s{sSTAT}, s{sDYNB}")
            a(f"s_cmp_ge_u32 s{sTK+ns}, {CNT_BIAS + NDYN}")
            a(f"s_cselect_b32 s{sEXH}, 0x{LIM:x}, s{sEXH}")
            a(f"s_max_u32 s{sSTAT}, s{sSTAT}, s{sEXH}")
            lab(f"L_st{u}")
            a(f"s_mov_b32 s{sOFF+ns}, s{sSTAT}")
            a(f"s_add_u32 s{sSTAT}, s{sSTAT}, {TSTR}")
            a(f"s_add_u32 s{sN}, s{sN}, 1")
            a(f"s_cmp_lg_u32 s{sEXH}, 0")
            a(f"s_cbranch_scc1 L_nq{u}")
            a(f"s_cmp_lt_u32 s{sN}, {NS - G.P + 1}")
            a(f"s_cbranch_scc1 L_nq{u}")
            a(f"s_mov_b32 s{sTK+(ns+G.P)%4}, 1")
            a(f"s_atomic_add s{sTK+(ns+G.P)%4}, {sp(sWS)}, s{sCNTOFF} glc")
            lab(f"L_nq{u}")
        else:
            a(f"s_cmp_ge_u32 s{sSTAT}, s{sDYNB}")
            a(f"s_cselect_b32 s{sOFF+ns}, 0x{LIM:x}, s{sSTAT}")
            a(f"s_add_u32 s{sSTAT}, s{sSTAT}, {TSTR}")
        issue_tile(ns, f"s{sOFF+ns}", tag, track)

    a("s_cmp_ge_u32 s2, 256")
    a("s_cbranch_scc1 L_end")
    if G.stamps: a(f"s_memrealtime {sp(sTS0)}")
    a("s_load_dwordx16 s[16:31], s[0:1], 0")
    a("s_load_dwordx8 s[32:39], s[0:1], 64")
    a("s_load_dwordx2 s[40:41], s[0:1], 96")
    a(f"v_and_b32 {v(vLANE)}, 63, v0")
    a(f"v_lshrrev_b32 {v(vT)}, 6, v0")
    a(f"s_and_b32 s{sA}, s2, 7")
    a(f"v_readfirstlane_b32 s{sWV}, {v(vT)}")
    a(f"s_lshr_b32 s{sB}, s2, 3")
    a(f"v_lshlrev_b32 {v(vVOFF)}, 4, {v(vLANE)}")
    a(f"s_and_b32 s{sG}, s{sB}, 7")
    a(f"s_lshr_b32 s{sBH}, s{sB}, 3")
    a(f"s_lshl_b32 s{sT0}, s{sBH}, 3")
    a(f"s_add_u32 s{sI}, s{sT0}, s{sA}")
    a(f"s_mov_b32 s{sLOG2E}, 0x{f2u(LOG2E):08x}")
    a(f"s_mov_b32 s{sN}, 0")
    a(f"s_cmp_lg_u32 s{sWV}, 0")
    a("s_cbranch_scc1 L_stream")
    a(f"v_lshrrev_b32 {v(vT)}, 3, {v(vLANE)}")
    a(f"v_lshlrev_b32 {v(vT)}, 17, {v(vT)}")
    a(f"v_and_b32 {v(vT+1)}, 7, {v(vLANE)}")
    a(f"v_lshl_add_u32 {v(vT)}, {v(vT+1)}, 4, {v(vT)}")
    a(f"s_lshl_b32 s{sT1}, s{sA}, 3")
    a(f"s_add_u32 s{sT3}, s{sT1}, s{sG}")
    a(f"s_lshl_b32 s{sT1}, s{sT3}, 7")
    a(f"s_lshl_b32 s{sT2}, s{sBH}, 20")
    a(f"s_add_u32 s{sT1}, s{sT1}, s{sT2}")
    a(f"v_add_u32 {v(vT+16)}, s{sT1}, {v(vT)}")
    a(f"v_add_u32 {v(vT+17)}, 0x2000, {v(vT+16)}")
    a(f"s_lshl_b32 s{sT1}, s{sA}, 2")
    a(f"s_and_b32 s{sT2}, s{sG}, 3")
    a(f"s_add_u32 s{sT1}, s{sT1}, s{sT2}")
    a(f"s_mul_i32 s{sT1}, s{sT1}, {CNT_STRIDE}")
    a(f"s_add_u32 s{sT1}, s{sT1}, {WS_CNT}")
    a(f"v_mov_b32 {v(vT+9)}, s{sT1}")
    a(f"v_mov_b32 {v(vT+10)}, 0x{CNT_BIAS:x}")
    a(f"v_and_b32 {v(vT+27)}, 1, {v(vLANE)}")
    a(f"v_mul_u32_u24 {v(vT+27)}, {WS_EPH - WS_EP}, {v(vT+27)}")
    a(f"v_add_u32 {v(vT+27)}, {WS_EP}, {v(vT+27)}")
    a("s_waitcnt lgkmcnt(0)")
    vmem(f"global_load_dwordx4 {vr(vW,4)}, {v(vVOFF)}, {sp(sX)}", "x")
    vmem(f"global_load_dword {v(vT+27)}, {v(vT+27)}, {sp(sWS)} sc1", "ep")
    W0 = vW + 4
    for j in range(8):
        vmem(f"global_load_dwordx4 {vr(W0+8*j,4)}, {v(vT+16)}, {sp(sWQ)} nt", ("wq", j))
        vmem(f"global_load_dwordx4 {vr(W0+8*j+4,4)}, {v(vT+17)}, {sp(sWQ)} nt", ("wq", j))
        if j < 7:
            a(f"v_add_u32 {v(vT+16)}, 0x4000, {v(vT+16)}")
            a(f"v_add_u32 {v(vT+17)}, 0x4000, {v(vT+17)}")
        if G.hstart and j == G.hstart - 1: a("s_barrier")
        if j == 3:
            a("s_mov_b64 exec, 1")
            vmem(f"global_store_dword {v(vT+9)}, {v(vT+10)}, {sp(sWS)} sc1", "clr")
            a("s_mov_b64 exec, -1")
    a(f"s_lshl_b32 s{sT1}, s{sA}, 2")
    a(f"s_add_u32 s{sT1}, s{sT1}, s{sBH}")
    a(f"s_lshl_b32 s{sT1}, s{sT1}, 3")
    a(f"s_add_u32 s{sT1}, s{sT1}, s{sG}")
    a(f"s_lshl_b32 s{sT1}, s{sT1}, 9")
    a(f"s_add_u32 s{sT1}, s{sT1}, {WS_Q}")
    a(f"v_and_b32 {v(vT)}, 7, {v(vLANE)}")
    a(f"v_lshrrev_b32 {v(vT+1)}, 4, {v(vLANE)}")
    a(f"v_lshl_add_u32 {v(vT)}, {v(vT)}, 2, {v(vT+1)}")
    a(f"v_lshl_add_u32 {v(vT+21)}, {v(vT)}, 4, s{sT1}")
    a(f"s_lshl_b32 s{sT2}, s{sG}, 14")
    a(f"s_add_u32 s{sT2}, s{sT2}, {WS_Q}")
    a(f"v_add_u32 {v(vT+22)}, s{sT2}, {v(vVOFF)}")
    a(f"v_add_u32 {v(vT+23)}, 0x1000, {v(vT+22)}")
    a(f"v_add_u32 {v(vT+24)}, 0x2000, {v(vT+22)}")
    a(f"v_add_u32 {v(vT+25)}, 0x3000, {v(vT+22)}")
    a(f"v_and_b32 {v(vT)}, 31, {v(vLANE)}")
    a(f"v_lshl_add_u32 {v(vT+26)}, {v(vT)}, 9, s{sT2}")
    a(f"s_lshl_b32 s{sC0}, s{sA}, 6")
    a(f"s_lshl_b32 s{sT1}, s{sB}, 1")
    a(f"s_add_u32 s{sC0}, s{sC0}, s{sT1}")
    wait_vm("x")
    stamp(0)
    unpack8(F, vW)
    ln_stats(F)
    for j in range(4):
        ln_apply2(F+2*j, F+2*j+1, vT)
        a(f"v_cvt_pk_bf16_f32 {v(vW+j)}, {v(F+2*j)}, {v(F+2*j+1)}")
    a(f"ds_write_b128 {v(vVOFF)}, {vr(vW,4)} offset:{LDS_XN}")
    a(f"s_mov_b32 s{sT1}, 0x05040100")
    a(f"s_mov_b32 s{sT2}, 0x07060302")
    XN = vX
    a(f"v_lshrrev_b32 {v(vT+1)}, 3, {v(vLANE)}")
    a(f"s_lshl_b32 s{sT0}, s{sBH}, 8")
    a(f"v_lshl_add_u32 {v(vT+1)}, {v(vT+1)}, 5, s{sT0}")
    a(f"ds_read_b128 {vr(XN,4)}, {v(vT+1)} offset:{LDS_XN}")
    a(f"ds_read_b128 {vr(XN+4,4)}, {v(vT+1)} offset:{LDS_XN+16}")
    ACC = vQ; PT = vQ + 8
    for j in range(8):
        wait_vm(("wq", j))
        if j == 0: stamp(1)
        ra, rb = W0 + 8*j, W0 + 8*j + 4
        for d in range(4):
            a(f"v_perm_b32 {v(PT+2*d)}, {v(rb+d)}, {v(ra+d)}, s{sT1}")
            a(f"v_perm_b32 {v(PT+2*d+1)}, {v(rb+d)}, {v(ra+d)}, s{sT2}")
        if j == 0: a("s_waitcnt lgkmcnt(0)")
        for cidx in range(8):
            cc = "0" if j == 0 else v(ACC+cidx)
            a(f"v_dot2_f32_bf16 {v(ACC+cidx)}, {v(PT+cidx)}, {v(XN+j)}, {cc}")
    a(f"v_readlane_b32 s{sTAGL}, {v(vT+27)}, 0")
    a(f"v_readlane_b32 s{sTAGH}, {v(vT+27)}, 1")
    tags()
    for cidx in range(4):
        a(f"v_permlane32_swap_b32 {v(ACC+cidx)}, {v(ACC+cidx+4)}")
    nop(1)
    for cidx in range(4):
        a(f"v_add_f32 {v(ACC+cidx)}, {v(ACC+cidx)}, {v(ACC+cidx+4)}")
    nop(1)
    for cidx in range(2):
        a(f"v_permlane16_swap_b32 {v(ACC+cidx)}, {v(ACC+cidx+2)}")
    nop(1)
    for cidx in range(2):
        a(f"v_add_f32 {v(ACC+cidx)}, {v(ACC+cidx)}, {v(ACC+cidx+2)}")
    a(f"v_mov_b32 {v(ACC+2)}, s{sTAGL}")
    a(f"v_add_f32_dpp {v(ACC)}, {v(ACC)}, {v(ACC)} row_ror:8 {DPP}")
    a(f"v_add_f32_dpp {v(ACC+1)}, {v(ACC+1)}, {v(ACC+1)} row_ror:8 {DPP}")
    a(f"v_mov_b32 {v(ACC+3)}, s{sTAGH}")
    stamp(2)
    a("s_mov_b32 exec_lo, 0x00ff00ff")
    a("s_mov_b32 exec_hi, 0x00ff00ff")
    a(f"global_store_dwordx4 {v(vT+21)}, {vr(ACC,4)}, {sp(sWS)} sc1")
    a("s_mov_b64 exec, -1")
    a(f"v_mov_b32 {v(vT)}, 0")
    a(f"ds_write_b64 {v(vT)}, {vr(ACC+2,2)} offset:{LDS_TG}")
    stamp(3)
    unpack8(F, vW)
    ln_stats(F)
    a(f"s_lshl_b32 s{sT2}, s{sC0}, 1")
    a(f"v_mov_b32 {v(vT+1)}, s{sT2}")
    a(f"ds_read_b32 {v(vT+4)}, {v(vT+1)} offset:{LDS_XN}")
    a(f"s_load_dword s{sXD}, {sp(sX)}, s{sT2}")
    h0, h1 = vG, vG+1
    a("s_waitcnt lgkmcnt(0)")
    a(f"v_lshlrev_b32 {v(h0)}, 16, {v(vT+4)}")
    a(f"v_and_b32 {v(h1)}, 0xffff0000, {v(vT+4)}")
    ln_apply2(h0, h1, vT)
    rbf2(h0, h1)
    QB = vW + 8
    a(f"s_mov_b32 s{sT3}, 0")
    if G.nolight:
        if G.ack & 1: a("s_waitcnt vmcnt(0)")
        elif G.q_first: a(f"s_sleep {G.q_first}")
        for ks in range(4):
            for m in range(4):
                a(f"global_load_dwordx4 {vr(QB+16*ks+4*m,4)}, {v(vT+22+ks)}, {sp(sWS)} offset:{1024*m} sc1")
        lab("L_pollQ")
        a("s_mov_b32 s62, 0")
        a("s_waitcnt vmcnt(0)")
        for k in range(16):
            a(f"v_xor_b32 {v(vT+1)}, s{sTAGL}, {v(QB+4*k+2)}")
            a(f"v_xor_b32 {v(vT+2)}, s{sTAGH}, {v(QB+4*k+3)}")
            a(f"v_or_b32 {v(vT)}, {v(vT+1)}, {v(vT+2)}")
            a(f"v_cmp_ne_u32 vcc, 0, {v(vT)}")
            a(f"s_cbranch_vccz L_pq{k}")
            a("s_mov_b64 exec, vcc")
            a(f"global_load_dwordx4 {vr(QB+4*k,4)}, {v(vT+22+k//4)}, {sp(sWS)} offset:{1024*(k%4)} sc1")
            a("s_mov_b64 exec, -1")
            a("s_mov_b32 s62, 1")
            lab(f"L_pq{k}")
        a("s_cmp_eq_u32 s62, 0")
        a("s_cbranch_scc1 L_pollQ_done")
        poll_tail("L_pollQ", G.q_sleep)
    else:
        a("s_mov_b64 exec, 0xffffffff")
        lab("L_pollL")
        a(f"global_load_dwordx2 {vr(QB,2)}, {v(vT+26)}, {sp(sWS)} offset:504 sc1")
        a("s_waitcnt vmcnt(0)")
        a(f"v_cmp_ne_u32 vcc, s{sTAGH}, {v(QB+1)}")
        a("s_and_b64 exec, exec, vcc")
        a("s_cbranch_execz L_pollL_done")
        poll_tail("L_pollL", G.q_sleep)
        lab("L_pollL_done")
        a("s_mov_b64 exec, -1")
        a(f"s_mov_b32 s{sT3}, 0")
        lab("L_pollQ")
        for ks in range(4):
            for m in range(4):
                a(f"global_load_dwordx4 {vr(QB+16*ks+4*m,4)}, {v(vT+22+ks)}, {sp(sWS)} offset:{1024*m} sc1")
        a("s_waitcnt vmcnt(0)")
        a(f"v_mov_b32 {v(vT)}, 0")
        for k in range(16):
            a(f"v_xor_b32 {v(vT+1)}, s{sTAGL}, {v(QB+4*k+2)}")
            a(f"v_xor_b32 {v(vT+2)}, s{sTAGH}, {v(QB+4*k+3)}")
            a(f"v_or3_b32 {v(vT)}, {v(vT)}, {v(vT+1)}, {v(vT+2)}")
        a(f"v_cmp_ne_u32 vcc, 0, {v(vT)}")
        a("s_and_b64 exec, exec, vcc")
        a("s_cbranch_execz L_pollQ_done")
        poll_tail("L_pollQ", G.q_sleep)
    lab("L_pollQ_done")
    a("s_mov_b64 exec, -1")
    stamp(4)
    a(f"v_lshlrev_b32 {v(vT)}, 2, {v(vLANE)}")
    for m in range(4):
        for e in range(2):
            a(f"v_add_f32 {v(QB+4*m+e)}, {v(QB+4*m+e)}, {v(QB+16+4*m+e)}")
            a(f"v_add_f32 {v(QB+32+4*m+e)}, {v(QB+32+4*m+e)}, {v(QB+48+4*m+e)}")
            a(f"v_add_f32 {v(QB+4*m+e)}, {v(QB+4*m+e)}, {v(QB+32+4*m+e)}")
        a(f"v_cvt_pk_bf16_f32 {v(QB+4*m)}, {v(QB+4*m)}, {v(QB+4*m+1)}")
        a(f"ds_write_b32 {v(vT)}, {v(QB+4*m)} offset:{LDS_Q + 256*m}")
    a("s_waitcnt lgkmcnt(0)")
    a("s_barrier")
    stamp(5)
    if G.stamps: a(f"s_memrealtime {sp(sTS0+2)}")
    wo_issue()
    a(f"v_mov_b32 {v(vT+20)}, 0")
    a(f"global_load_ushort {v(vMASK)}, {v(vT+20)}, {sp(sB2)}")
    y0, y1 = vX+2, vX+3
    a(f"v_mov_b32 {v(y0)}, 0")
    a(f"v_mov_b32 {v(y1)}, 0")
    K1 = 2.0 * math.sqrt(2.0 / math.pi) * LOG2E
    a(f"s_mov_b32 s{sT1}, 0x{f2u(-K1*0.044715):08x}")
    a(f"v_mov_b32 {v(vT+5)}, 0x{f2u(-K1):08x}")
    a(f"v_lshlrev_b32 {v(vT+6)}, 3, {v(vLANE)}")
    a(f"s_mov_b32 s{sT2}, 0")
    BW = vW
    wv1, bv1, wv2 = vX+4, vX+5, vX+6
    u0, u1, e0, e1 = vT, vT+1, vT+2, vT+3
    lab("L_bloop")
    a(f"global_load_dwordx2 {vr(BW,2)}, {v(vT+6)}, {sp(sW1)}")
    a(f"global_load_dwordx2 {vr(BW+2,2)}, {v(vT+6)}, {sp(sB1)}")
    a(f"global_load_dwordx2 {vr(BW+4,2)}, {v(vT+6)}, {sp(sW2)}")
    a(f"v_add_u32 {v(vT+6)}, 512, {v(vT+6)}")
    a("s_waitcnt vmcnt(0)")
    for j in range(4):
        d, hi = j // 2, j % 2
        for (dst, src) in ((wv1, BW+d), (bv1, BW+2+d), (wv2, BW+4+d)):
            if hi: a(f"v_and_b32 {v(dst)}, 0xffff0000, {v(src)}")
            else:  a(f"v_lshlrev_b32 {v(dst)}, 16, {v(src)}")
        a(f"v_mul_f32 {v(u0)}, {v(h0)}, {v(wv1)}")
        a(f"v_mul_f32 {v(u1)}, {v(h1)}, {v(wv1)}")
        rbf2(u0, u1)
        a(f"v_add_f32 {v(u0)}, {v(u0)}, {v(bv1)}")
        a(f"v_add_f32 {v(u1)}, {v(u1)}, {v(bv1)}")
        rbf2(u0, u1)
        a(f"v_mul_f32 {v(e0)}, {v(u0)}, {v(u0)}")
        a(f"v_mul_f32 {v(e1)}, {v(u1)}, {v(u1)}")
        a(f"v_fma_f32 {v(e0)}, {v(e0)}, s{sT1}, {v(vT+5)}")
        a(f"v_fma_f32 {v(e1)}, {v(e1)}, s{sT1}, {v(vT+5)}")
        a(f"v_mul_f32 {v(e0)}, {v(e0)}, {v(u0)}")
        a(f"v_mul_f32 {v(e1)}, {v(e1)}, {v(u1)}")
        a(f"v_exp_f32 {v(e0)}, {v(e0)}")
        a(f"v_exp_f32 {v(e1)}, {v(e1)}")
        nop(1)
        a(f"v_add_f32 {v(e0)}, 1.0, {v(e0)}")
        a(f"v_add_f32 {v(e1)}, 1.0, {v(e1)}")
        a(f"v_rcp_f32 {v(e0)}, {v(e0)}")
        a(f"v_rcp_f32 {v(e1)}, {v(e1)}")
        nop(1)
        a(f"v_mul_f32 {v(e0)}, {v(e0)}, {v(u0)}")
        a(f"v_mul_f32 {v(e1)}, {v(e1)}, {v(u1)}")
        rbf2(e0, e1)
        a(f"v_fmac_f32 {v(y0)}, {v(e0)}, {v(wv2)}")
        a(f"v_fmac_f32 {v(y1)}, {v(e1)}, {v(wv2)}")
    a(f"s_add_u32 s{sT2}, s{sT2}, 1")
    a(f"s_cmp_lt_u32 s{sT2}, 7")
    a("s_cbranch_scc1 L_bloop")
    allred64("v_add_f32", y0, vT)
    allred64("v_add_f32", y1, vT)
    a(f"v_lshlrev_b32 {v(vT+2)}, 16, {v(vMASK)}")
    rbf2(y0, y1)
    a(f"v_add_f32 {v(y0)}, {v(y0)}, {v(vT+2)}")
    a(f"v_add_f32 {v(y1)}, {v(y1)}, {v(vT+2)}")
    rbf2(y0, y1)
    g0, g1 = vG, vG+1
    a(f"v_mul_f32 {v(e0)}, s{sLOG2E}, {v(y0)}")
    a(f"v_mul_f32 {v(e1)}, s{sLOG2E}, {v(y1)}")
    a(f"v_exp_f32 {v(e0)}, -{v(e0)}")
    a(f"v_exp_f32 {v(e1)}, -{v(e1)}")
    nop(1)
    a(f"v_add_f32 {v(e0)}, 1.0, {v(e0)}")
    a(f"v_add_f32 {v(e1)}, 1.0, {v(e1)}")
    a(f"v_rcp_f32 {v(e0)}, {v(e0)}")
    a(f"v_rcp_f32 {v(e1)}, {v(e1)}")
    nop(1)
    a(f"v_mul_f32 {v(g0)}, {v(y0)}, {v(e0)}")
    a(f"v_mul_f32 {v(g1)}, {v(y1)}, {v(e1)}")
    rbf2(g0, g1)
    tail_addr()
    a(f"s_lshl_b32 s{sT2}, s{sG}, 3")
    a(f"s_add_u32 s{sT2}, s{sT2}, s{sA}")
    a(f"s_lshl_b32 s{sT2}, s{sT2}, 12")
    a(f"s_lshl_b32 s{sT1}, s{sBH}, 10")
    a(f"s_add_u32 s{sT1}, s{sT1}, s{sT2}")
    a(f"s_add_u32 s{sT1}, s{sT1}, {WS_S2}")
    a(f"v_add_u32 {v(vA+9)}, s{sT1}, {v(vVOFF)}")
    a(f"s_lshl_b32 s{sT1}, s{sC0}, 3")
    a(f"s_add_u32 s{sT1}, s{sT1}, {WS_S2}")
    a(f"v_lshl_add_u32 {v(vPA)}, {v(vLANE)}, 12, s{sT1}")
    a(f"v_lshlrev_b32 {v(vPA+1)}, 3, {v(vLANE)}")
    a(f"s_lshl_b32 s{sT1}, s{sC0}, 1")
    a(f"v_mov_b32 {v(vA+10)}, s{sT1}")
    a(f"s_lshl_b32 s{sT1}, s{sXD}, 16")
    a(f"s_and_b32 s{sT2}, s{sXD}, 0xffff0000")
    a(f"v_mov_b32 {v(vA+11)}, s{sT1}")
    a(f"v_mov_b32 {v(vA+12)}, s{sT2}")
    a(f"s_mov_b32 s{sT0}, 0x05040100")
    if G.stamps: a(f"s_memrealtime s[100:101]")
    a("s_branch L_tail")

    lab("L_stream")
    G.vm = []
    a(f"v_and_b32 {v(vT)}, 3, {v(vLANE)}")
    a(f"v_lshlrev_b32 {v(vT)}, 2, {v(vT)}")
    a(f"v_bfe_u32 {v(vT+1)}, {v(vLANE)}, 2, 2")
    a(f"v_add_u32 {v(vT)}, {v(vT)}, {v(vT+1)}")
    a(f"v_lshlrev_b32 {v(vT)}, 8, {v(vT)}")
    a(f"v_lshrrev_b32 {v(vT+1)}, 4, {v(vLANE)}")
    a(f"v_lshl_add_u32 {v(vKOFF)}, {v(vT+1)}, 4, {v(vT)}")
    a(f"s_mul_i32 s{sSTAT}, s{sBH}, 3")
    a(f"s_add_u32 s{sSTAT}, s{sSTAT}, s{sWV}")
    a(f"s_sub_u32 s{sSTAT}, s{sSTAT}, 1")
    a(f"s_lshl_b32 s{sSTAT}, s{sSTAT}, 12")
    a(f"s_lshl_b32 s{sT1}, s{sG}, 24")
    a(f"s_lshl_b32 s{sT2}, s{sA}, 21")
    a(f"s_add_u32 s{sSTAT}, s{sSTAT}, s{sT2}")
    a("s_waitcnt lgkmcnt(0)")
    for srd, ptr in ((srdK, sK), (srdV, sV)):
        a(f"s_add_u32 s{srd}, s{ptr}, s{sT1}")
        a(f"s_addc_u32 s{srd+1}, s{ptr+1}, 0")
        a(f"s_and_b32 s{srd+1}, s{srd+1}, 0xffff")
        a(f"s_mov_b32 s{srd+2}, 0x{LIM:x}")
        a(f"s_mov_b32 s{srd+3}, 0x20000")
    if G.hstart: a("s_barrier")
    def setup_consts():
        Z = 0x0c0c0c0c
        lo_to_lo, lo_to_hi = 0x0c0c0100, 0x01000c0c
        hi_to_lo, hi_to_hi = 0x0c0c0302, 0x03020c0c
        a(f"v_and_b32 {v(vT+1)}, 3, {v(vLANE)}")
        for k in range(4): a(f"v_mov_b32 {v(vSEL+k)}, 0x{Z:08x}")
        for jp, (sr, val_lo, val_hi) in enumerate(((0, lo_to_lo, hi_to_lo), (0, lo_to_hi, hi_to_hi), (1, lo_to_lo, hi_to_lo), (1, lo_to_hi, hi_to_hi))):
            a(f"v_cmp_eq_u32 vcc, {jp}, {v(vT+1)}")
            a(f"v_mov_b32 {v(vT+2)}, 0x{val_lo:08x}")
            a(f"v_mov_b32 {v(vT+3)}, 0x{val_hi:08x}")
            a(f"v_cndmask_b32 {v(vSEL+sr)}, {v(vSEL+sr)}, {v(vT+2)}, vcc")
            a(f"v_cndmask_b32 {v(vSEL+2+sr)}, {v(vSEL+2+sr)}, {v(vT+3)}, vcc")
        for k in range(8): a(f"v_mov_b32 {v(vO+k)}, 0")
        a(f"v_mov_b32 {v(vNM)}, 0")
        a(f"v_mov_b32 {v(vL)}, 0")
        a(f"s_mov_b32 s{sTHR}, 0xff800000")
        a(f"s_mov_b32 s{sFLOOR}, 0xff7fffff")
        a(f"s_mov_b32 s{sSCALE}, 0x{f2u(SCALE):08x}")
        a(f"s_mov_b32 s{sEXH}, 0")
        a(f"s_mov_b32 s{sN}, {R}")
        a(f"s_add_u32 s{sT1}, s{sBH}, s{sA}")
        a(f"s_and_b32 s{sT1}, s{sT1}, 3")
        if G.dyn:
            a(f"s_lshl_b32 s{sDYNB}, s{sT1}, 22")
            a(f"s_add_u32 s{sDYNB}, s{sDYNB}, {NS*TSTR}")
        else:
            a(f"s_add_u32 s{sDYNB}, s{sA}, 1")
            a(f"s_lshl_b32 s{sDYNB}, s{sDYNB}, 21")
        a(f"s_lshl_b32 s{sT2}, s{sG}, 2")
        a(f"s_add_u32 s{sT2}, s{sT2}, s{sT1}")
        a(f"s_mul_i32 s{sCNTOFF}, s{sT2}, {CNT_STRIDE}")
        a(f"s_add_u32 s{sCNTOFF}, s{sCNTOFF}, {WS_CNT}")
        for k in range(4): a(f"s_mov_b32 s{sTK+k}, 0")
        a(f"v_bfe_u32 {v(vT+8)}, {v(vLANE)}, 2, 2")
        a(f"v_lshlrev_b32 {v(vT+8)}, 8, {v(vT+8)}")
        a(f"v_lshrrev_b32 {v(vT+1)}, 4, {v(vLANE)}")
        a(f"v_lshl_add_u32 {v(vT+8)}, {v(vT+1)}, 4, {v(vT+8)}")
    for n in range(R):
        if n >= A:
            wait_vm(("K", n - A))
        issue_tile(n, f"s{sSTAT}", n)
        a(f"s_add_u32 s{sSTAT}, s{sSTAT}, {TSTR}")
        if n == A - 1:
            setup_consts()
        if n == 3:
            tail_addr()
            wo_issue(track=True)
        if G.stamps and not G.tstamps and n in (1, 3, 5, 7, 9, 11): a(f"s_memrealtime s[{4+2*(n//2)}:{5+2*(n//2)}]")
    a("s_barrier")
    for t in range(4):
        a(f"ds_read_b128 {vr(vQ+4*t,4)}, {v(vT+8)} offset:{LDS_Q + 64*t}")
    a(f"v_mov_b32 {v(vT)}, 0")
    a(f"ds_read_b64 {vr(vT+2,2)}, {v(vT)} offset:{LDS_TG}")
    if G.stamps: a(f"s_memrealtime {sp(sTS0+2)}")
    a("s_waitcnt lgkmcnt(0)")
    a(f"v_readfirstlane_b32 s{sTAGL}, {v(vT+2)}")
    a(f"v_readfirstlane_b32 s{sTAGH}, {v(vT+3)}")
    a(f"s_and_b32 s{sTG16}, s{sTAGL}, 0xffff0000")

    rare_id = [0]
    def compute_qk(slot):
        for t in range(4):
            cc = "0" if t == 0 else vr(vS, 4)
            a(f"v_mfma_f32_16x16x32_bf16 {vr(vS,4)}, {slot_reg(slot,4*t,4)}, {vr(vQ+4*t,4)}, {cc}")
    def softmax():
        rid = rare_id[0]; rare_id[0] += 1
        p01, p23 = vT, vT+1
        b = vT + 2
        a(f"v_cvt_pk_bf16_f32 {v(p01)}, {v(vS)}, {v(vS+1)}")
        a(f"v_cvt_pk_bf16_f32 {v(p23)}, {v(vS+2)}, {v(vS+3)}")
        a(f"v_lshlrev_b32 {v(b)}, 16, {v(p01)}")
        a(f"v_and_b32 {v(b+1)}, 0xffff0000, {v(p01)}")
        a(f"v_lshlrev_b32 {v(b+2)}, 16, {v(p23)}")
        a(f"v_and_b32 {v(b+3)}, 0xffff0000, {v(p23)}")
        for k in range(4): a(f"v_mul_f32 {v(b+k)}, s{sSCALE}, {v(b+k)}")
        a(f"v_cvt_pk_bf16_f32 {v(p01)}, {v(b)}, {v(b+1)}")
        a(f"v_cvt_pk_bf16_f32 {v(p23)}, {v(b+2)}, {v(b+3)}")
        a(f"v_lshlrev_b32 {v(b)}, 16, {v(p01)}")
        a(f"v_and_b32 {v(b+1)}, 0xffff0000, {v(p01)}")
        a(f"v_lshlrev_b32 {v(b+2)}, 16, {v(p23)}")
        a(f"v_and_b32 {v(b+3)}, 0xffff0000, {v(p23)}")
        for k in range(4): a(f"v_fma_f32 {v(b+k)}, {v(b+k)}, s{sLOG2E}, {v(vNM)}")
        mx = vT + 6
        a(f"v_max3_f32 {v(mx)}, {v(b)}, {v(b+1)}, {v(b+2)}")
        a(f"v_max_f32 {v(mx)}, {v(mx)}, {v(b+3)}")
        a(f"v_cmp_lt_f32 vcc, s{sTHR}, {v(mx)}")
        a(f"s_cbranch_vccz L_back{rid}")
        a(f"s_call_b64 {sp(sPC)}, L_rare")
        lab(f"L_back{rid}")
        for k in range(4): a(f"v_exp_f32 {v(b+k)}, {v(b+k)}")
        nop(1)
        a(f"v_cvt_pk_bf16_f32 {v(p01)}, {v(b)}, {v(b+1)}")
        a(f"v_cvt_pk_bf16_f32 {v(p23)}, {v(b+2)}, {v(b+3)}")
        a(f"v_add_f32 {v(b)}, {v(b)}, {v(b+1)}")
        a(f"v_add_f32 {v(b+2)}, {v(b+2)}, {v(b+3)}")
        for k in range(4): a(f"v_perm_b32 {v(vX+k)}, {v(p01)}, {v(p01)}, {v(vSEL+k)}")
        for k in range(4): a(f"v_perm_b32 {v(vX+4+k)}, {v(p23)}, {v(p23)}, {v(vSEL+k)}")
        a(f"v_add_f32 {v(b)}, {v(b)}, {v(b+2)}")
        a(f"v_add_f32 {v(vL)}, {v(vL)}, {v(b)}")
    def compute_pv(slot):
        for u in range(4):
            a(f"v_mfma_f32_16x16x16_bf16 {vr(vO,4)}, {vr(vX+2*u,2)}, {slot_reg(slot,16+4*u,2)}, {vr(vO,4)}")
            a(f"v_mfma_f32_16x16x16_bf16 {vr(vO+4,4)}, {vr(vX+2*u,2)}, {slot_reg(slot,16+4*u+2,2)}, {vr(vO+4,4)}")

    k_iss = 0
    for n in range(R + E - A):
        slot = n if n < R else n - R
        c(f"catch-up step {n}")
        wait_vm(("K", n))
        compute_qk(slot)
        nop(8)
        softmax()
        wait_vm(("V", n))
        compute_pv(slot)
        if n in G.cu_issue:
            assert k_iss <= n
            next_tile(k_iss, R + k_iss, track=True)
            k_iss += 1
    assert k_iss == E
    lab("L_loop")
    for k in range(4):
        s = (E - A + k) % 4
        c(f"steady step slot {s}")
        ns = (s + A) % 4
        a(f"s_cmp_ge_u32 s{sOFF+s}, 0x{LIM:x}")
        a("s_cbranch_scc1 L_done")
        a(f"s_waitcnt vmcnt({8*A-4})")
        compute_qk(s)
        next_tile(ns)
        softmax()
        a(f"s_waitcnt vmcnt({8*A})")
        compute_pv(s)
    a("s_branch L_loop")

    lab("L_rare")
    b = vT + 2; mx = vT + 6; t = vT + 7; f = vT + 8
    allred_rows("v_max_f32", mx, t)
    a(f"v_max_f32 {v(mx)}, s{sFLOOR}, {v(mx)}")
    for k in range(4): a(f"v_sub_f32 {v(b+k)}, {v(b+k)}, {v(mx)}")
    a(f"v_sub_f32 {v(vNM)}, {v(vNM)}, {v(mx)}")
    a(f"v_max_f32 {v(t)}, 0, {v(mx)}")
    a(f"v_exp_f32 {v(t)}, -{v(t)}")
    nop(1)
    a(f"v_mul_f32 {v(vL)}, {v(vL)}, {v(t)}")
    nop(1)
    for h in range(4):
        a(f"v_mov_b32_dpp {v(f)}, {v(t)} row_newbcast:{4*h} row_mask:0x{1<<h:x} bank_mask:0xf")
    for k in range(8): a(f"v_mul_f32 {v(vO+k)}, {v(vO+k)}, {v(f)}")
    a(f"s_mov_b32 s{sTHR}, 0x{f2u(G.T):08x}")
    a(f"s_mov_b32 s{sFLOOR}, 0")
    a(f"s_setpc_b64 {sp(sPC)}")

    def stageA():
        a(f"v_cmp_ne_u32 vcc, 0, {v(vA+6)}")
        a("s_waitcnt lgkmcnt(0)")
        tstamp(0)
        a("s_barrier")
        if G.tstamps:
            tstamp(1); a("s_waitcnt lgkmcnt(0)")
        a(f"ds_read_b64 {vr(vQ+2,2)}, {v(vA+3)} offset:{LDS_ML+8}")
        a(f"ds_read_b128 {vr(vQ+4,4)}, {v(vA+3)} offset:{LDS_ML+16}")
        OO = vT + 4
        for w in range(1, 4):
            a(f"ds_read_b64 {vr(OO+2*w,2)}, {v(vA+4)} offset:{LDS_O + 2048*w}")
        RES = vQ + 12
        a(f"v_mov_b32 {v(RES+3)}, s{sTAGH}")
        a("s_waitcnt lgkmcnt(3)")
        nmM = vQ + 8
        a(f"v_min3_f32 {v(nmM)}, {v(vQ+2)}, {v(vQ+4)}, {v(vQ+6)}")
        for k in range(1, 4): a(f"v_sub_f32 {v(vQ+2*k)}, {v(nmM)}, {v(vQ+2*k)}")
        for k in range(1, 4): a(f"v_exp_f32 {v(vQ+2*k)}, {v(vQ+2*k)}")
        nop(1)
        a(f"v_mul_f32 {v(nmM+1)}, {v(vQ+2)}, {v(vQ+3)}")
        for k in range(2, 4): a(f"v_fmac_f32 {v(nmM+1)}, {v(vQ+2*k)}, {v(vQ+2*k+1)}")
        a(f"v_cndmask_b32 {v(nmM)}, {v(nmM)}, {v(nmM+1)}, vcc")
        a(f"v_bfe_u32 {v(nmM)}, {v(nmM)}, {v(vA+5)}, 16")
        a(f"v_or_b32 {v(RES+2)}, s{sTG16}, {v(nmM)}")
        a("s_waitcnt lgkmcnt(0)")
        for e in range(2): a(f"v_mul_f32 {v(RES+e)}, {v(vQ+2)}, {v(OO+2+e)}")
        for k in range(2, 4):
            for e in range(2): a(f"v_fmac_f32 {v(RES+e)}, {v(vQ+2*k)}, {v(OO+2*k+e)}")
        a(f"global_store_dwordx4 {v(vA)}, {vr(RES,4)}, {sp(sWS)} {G.stf}")
        tstamp(2)
    def stageB(sfx):
        a(f"s_mov_b32 s{sT0}, 0x05040100")
        PB = vW
        a(f"s_mov_b32 s{sT3}, 0")
        if G.apoll & 1:
            a(f"s_xor_b32 s{sT1}, s{sTAGH}, 1")
            for k in range(4): a(f"v_mov_b32 {v(PB+4*k+3)}, s{sT1}")
        if G.ack & 2: a("s_waitcnt vmcnt(0)")
        elif G.pb_first: a(f"s_sleep {G.pb_first}")
        lab(f"L_pollB{sfx}")
        if G.btop: a(f"s_sleep {G.btop}")
        for k in range(4):
            a(f"global_load_dwordx4 {vr(PB+4*k,4)}, {v(vA+8)}, {sp(sWS)} offset:{1024*k} {G.ldf}")
        if G.apoll & 1:
            a(f"s_sleep {G.ap_sleep}")
            a("s_waitcnt vmcnt(32)")
        else:
            a("s_waitcnt vmcnt(0)")
        a(f"v_xor_b32 {v(vT)}, s{sTG16}, {v(PB+2)}")
        a(f"v_xor_b32 {v(vT+1)}, s{sTG16}, {v(PB+6)}")
        a(f"v_xor_b32 {v(vT+2)}, s{sTG16}, {v(PB+10)}")
        a(f"v_xor_b32 {v(vT+3)}, s{sTG16}, {v(PB+14)}")
        a(f"v_or3_b32 {v(vT)}, {v(vT)}, {v(vT+1)}, {v(vT+2)}")
        a(f"v_or_b32 {v(vT)}, {v(vT)}, {v(vT+3)}")
        a(f"v_lshrrev_b32 {v(vT)}, 16, {v(vT)}")
        a(f"v_xor_b32 {v(vT+1)}, s{sTAGH}, {v(PB+3)}")
        a(f"v_xor_b32 {v(vT+2)}, s{sTAGH}, {v(PB+7)}")
        a(f"v_or3_b32 {v(vT)}, {v(vT)}, {v(vT+1)}, {v(vT+2)}")
        a(f"v_xor_b32 {v(vT+1)}, s{sTAGH}, {v(PB+11)}")
        a(f"v_xor_b32 {v(vT+2)}, s{sTAGH}, {v(PB+15)}")
        a(f"v_or3_b32 {v(vT)}, {v(vT)}, {v(vT+1)}, {v(vT+2)}")
        a(f"v_cmp_ne_u32 vcc, 0, {v(vT)}")
        a("s_and_b64 exec, exec, vcc")
        a(f"s_cbranch_execz L_pollB_done{sfx}")
        poll_tail(f"L_pollB{sfx}", G.pb_sleep)
        lab(f"L_pollB_done{sfx}")
        if G.apoll & 1: a("s_waitcnt vmcnt(0)")
        tstamp(3)
        a("s_mov_b64 exec, -1")
        NMr, Lr = vT + 4, vT + 8
        TA, TB = vT + 12, vT + 16
        for k in range(4):
            a(f"v_mov_b32_dpp {v(TA+k)}, {v(PB+4*k+2)} quad_perm:[0,0,0,0] {DPP}")
            a(f"v_mov_b32_dpp {v(TB+k)}, {v(PB+4*k+2)} quad_perm:[1,1,1,1] {DPP}")
        for k in range(4):
            a(f"v_perm_b32 {v(NMr+k)}, {v(TB+k)}, {v(TA+k)}, s{sT0}")
        M = vT
        a(f"v_min3_f32 {v(M)}, {v(NMr)}, {v(NMr+1)}, {v(NMr+2)}")
        a(f"v_min_f32 {v(M)}, {v(M)}, {v(NMr+3)}")
        a(f"v_mov_b32_dpp {v(TA)}, {v(PB+2)} quad_perm:[2,2,2,2] {DPP}")
        a(f"v_mov_b32_dpp {v(TB)}, {v(PB+2)} quad_perm:[3,3,3,3] {DPP}")
        a(f"v_min_f32_dpp {v(M)}, {v(M)}, {v(M)} row_ror:8 {DPP}")
        a(f"v_mov_b32 {v(vT+1)}, {v(M)}")
        a(f"v_mov_b32_dpp {v(TA+1)}, {v(PB+6)} quad_perm:[2,2,2,2] {DPP}")
        a(f"v_mov_b32_dpp {v(TB+1)}, {v(PB+6)} quad_perm:[3,3,3,3] {DPP}")
        a(f"v_permlane16_swap_b32 {v(M)}, {v(vT+1)}")
        a(f"v_mov_b32_dpp {v(TA+2)}, {v(PB+10)} quad_perm:[2,2,2,2] {DPP}")
        a(f"v_min_f32 {v(M)}, {v(M)}, {v(vT+1)}")
        a(f"v_mov_b32 {v(vT+1)}, {v(M)}")
        a(f"v_mov_b32_dpp {v(TB+2)}, {v(PB+10)} quad_perm:[3,3,3,3] {DPP}")
        a(f"v_mov_b32_dpp {v(TA+3)}, {v(PB+14)} quad_perm:[2,2,2,2] {DPP}")
        a(f"v_permlane32_swap_b32 {v(M)}, {v(vT+1)}")
        a(f"v_mov_b32_dpp {v(TB+3)}, {v(PB+14)} quad_perm:[3,3,3,3] {DPP}")
        a(f"v_min_f32 {v(M)}, {v(M)}, {v(vT+1)}")
        for k in range(4): a(f"v_sub_f32 {v(NMr+k)}, {v(M)}, {v(NMr+k)}")
        for k in range(4): a(f"v_exp_f32 {v(NMr+k)}, {v(NMr+k)}")
        for k in range(4): a(f"v_perm_b32 {v(Lr+k)}, {v(TB+k)}, {v(TA+k)}, s{sT0}")
        o0, o1, la, lb = vT, vT+1, vT+2, vT+3
        a(f"v_mul_f32 {v(o0)}, {v(NMr)}, {v(PB)}")
        a(f"v_mul_f32 {v(o1)}, {v(NMr)}, {v(PB+1)}")
        a(f"v_mul_f32 {v(la)}, {v(NMr)}, {v(Lr)}")
        for k in range(1, 4):
            a(f"v_fmac_f32 {v(o0)}, {v(NMr+k)}, {v(PB+4*k)}")
            a(f"v_fmac_f32 {v(o1)}, {v(NMr+k)}, {v(PB+4*k+1)}")
            a(f"v_fmac_f32 {v(la)}, {v(NMr+k)}, {v(Lr+k)}")
        a(f"v_mov_b32 {v(lb)}, {v(la)}")
        a(f"v_permlane32_swap_b32 {v(o0)}, {v(o1)}")
        nop(1)
        a(f"v_permlane32_swap_b32 {v(la)}, {v(lb)}")
        a(f"v_add_f32 {v(o0)}, {v(o0)}, {v(o1)}")
        a(f"v_add_f32 {v(la)}, {v(la)}, {v(lb)}")
        a(f"v_mov_b32 {v(o1)}, {v(o0)}")
        a(f"v_mov_b32 {v(lb)}, {v(la)}")
        nop(1)
        a(f"v_permlane16_swap_b32 {v(o0)}, {v(o1)}")
        a(f"v_permlane16_swap_b32 {v(la)}, {v(lb)}")
        a(f"v_add_f32 {v(o0)}, {v(o0)}, {v(o1)}")
        a(f"v_add_f32 {v(la)}, {v(la)}, {v(lb)}")
        nop(1)
        a(f"v_add_f32_dpp {v(o0)}, {v(o0)}, {v(o0)} row_ror:8 {DPP}")
        a(f"v_add_f32_dpp {v(la)}, {v(la)}, {v(la)} row_ror:8 {DPP}")
        a(f"v_rcp_f32 {v(lb)}, {v(la)}")
        a(f"v_mov_b32_dpp {v(o0)}, {v(o0)} row_shl:1 row_mask:0xa bank_mask:0xf")
        a(f"v_fma_f32 {v(o1)}, -{v(la)}, {v(lb)}, 1.0")
        a(f"v_fma_f32 {v(lb)}, {v(o1)}, {v(lb)}, {v(lb)}")
        a(f"v_mul_f32 {v(o0)}, {v(o0)}, {v(lb)}")
        a(f"v_cvt_pk_bf16_f32 {v(o0)}, {v(o0)}, {v(o0)}")
        nop(2)
        AO = vQ
        DD = vW + 16
        for u in range(4):
            for r in range(4):
                a(f"v_and_b32_dpp {v(AO+4*u+r)}, {v(o0)}, {v(vMSK+r)} row_newbcast:{2*u} {DPP}")
            if u > 0:
                cc = "0" if u == 1 else vr(DD, 4)
                a(f"v_mfma_f32_16x16x32_bf16 {vr(DD,4)}, {vr(AO+4*(u-1),4)}, {vr(vWO+4*(u-1),4)}, {cc}")
        nop(1)
        a(f"v_mfma_f32_16x16x32_bf16 {vr(DD,4)}, {vr(AO+12,4)}, {vr(vWO+12,4)}, {vr(DD,4)}")
        a("s_mov_b64 exec, 0xffffffff")
        nop(7)
        a(f"ds_write_b128 {v(vA+7)}, {vr(DD,4)} offset:{LDS_S}")
        a("s_mov_b64 exec, -1")
        a("s_waitcnt lgkmcnt(0)")
        a("s_barrier")
    lab("L_done")
    if G.stamps: a(f"s_memrealtime s[100:101]")
    allred_rows("v_add_f32", vL, vT)
    a(f"ds_write_b128 {v(vA+1)}, {vr(vO,4)} offset:{LDS_O}")
    a(f"ds_write_b128 {v(vA+1)}, {vr(vO+4,4)} offset:{LDS_O+16}")
    a(f"ds_write_b64 {v(vA+2)}, {vr(vNM,2)} offset:{LDS_ML}")
    stageA()
    stageB('w')
    a("s_branch L_fin")
    lab("L_tail")
    stageA()
    stageB('s')
    PC = vW
    for w in range(4):
        a(f"ds_read_b64 {vr(PC+4+2*w,2)}, {v(vPA+1)} offset:{LDS_S + 512*w}")
    a(f"v_mov_b32 {v(PC+2)}, s{sTAGL}")
    a(f"v_mov_b32 {v(PC+3)}, s{sTAGH}")
    a("s_waitcnt lgkmcnt(0)")
    for e in range(2): a(f"v_add_f32 {v(PC+4+e)}, {v(PC+4+e)}, {v(PC+6+e)}")
    for e in range(2): a(f"v_add_f32 {v(PC+8+e)}, {v(PC+8+e)}, {v(PC+10+e)}")
    for e in range(2): a(f"v_add_f32 {v(PC+e)}, {v(PC+4+e)}, {v(PC+8+e)}")
    a(f"global_store_dwordx4 {v(vA+9)}, {vr(PC,4)}, {sp(sWS)} {G.stf}")
    tstamp(4)
    PC = vW + 4
    a(f"s_mov_b32 s{sT3}, 0")
    if G.ack & 4: a("s_waitcnt vmcnt(0)")
    elif G.pc_first: a(f"s_sleep {G.pc_first}")
    lab("L_pollC")
    if G.ctop: a(f"s_sleep {G.ctop}")
    a(f"global_load_dwordx4 {vr(PC,4)}, {v(vPA)}, {sp(sWS)} {G.ldf}")
    a("s_waitcnt vmcnt(0)")
    a(f"v_xor_b32 {v(vT)}, s{sTAGL}, {v(PC+2)}")
    a(f"v_xor_b32 {v(vT+1)}, s{sTAGH}, {v(PC+3)}")
    a(f"v_or_b32 {v(vT)}, {v(vT)}, {v(vT+1)}")
    a(f"v_cmp_ne_u32 vcc, 0, {v(vT)}")
    a("s_and_b64 exec, exec, vcc")
    a("s_cbranch_execz L_pollC_done")
    poll_tail("L_pollC", G.pc_sleep)
    lab("L_pollC_done")
    tstamp(5)
    a("s_mov_b64 exec, -1")
    nop(2)
    a(f"v_permlane32_swap_b32 {v(PC)}, {v(PC+1)}")
    nop(1)
    a(f"v_add_f32 {v(PC)}, {v(PC)}, {v(PC+1)}")
    allred16("v_add_f32", PC)
    a(f"v_mov_b32 {v(vT)}, {v(PC)}")
    nop(2)
    a(f"v_permlane16_swap_b32 {v(PC)}, {v(vT)}")
    nop(1)
    a(f"v_add_f32 {v(PC)}, {v(PC)}, {v(vT)}")
    a(f"v_mov_b32 {v(PC+1)}, {v(PC)}")
    nop(2)
    a(f"v_permlane32_swap_b32 {v(PC)}, {v(PC+1)}")
    nop(1)
    rbf2(PC, PC+1)
    a(f"v_mul_f32 {v(PC)}, {v(PC)}, {v(g0)}")
    a(f"v_mul_f32 {v(PC+1)}, {v(PC+1)}, {v(g1)}")
    rbf2(PC, PC+1)
    a(f"v_add_f32 {v(PC)}, {v(PC)}, {v(vA+11)}")
    a(f"v_add_f32 {v(PC+1)}, {v(PC+1)}, {v(vA+12)}")
    a(f"v_cvt_pk_bf16_f32 {v(PC)}, {v(PC)}, {v(PC+1)}")
    a("s_mov_b64 exec, 1")
    a(f"global_store_dword {v(vA+10)}, {v(PC)}, {sp(sOUT)}")
    a("s_cmp_lg_u32 s2, 0")
    a("s_cbranch_scc1 L_noep")
    a(f"v_mov_b32 {v(vT)}, {WS_EP}")
    a(f"v_mov_b32 {v(vT+1)}, {WS_EPH}")
    a(f"v_mov_b32 {v(vT+2)}, s{sTAGL}")
    a(f"v_mov_b32 {v(vT+3)}, s{sTAGH}")
    a(f"global_store_dword {v(vT)}, {v(vT+2)}, {sp(sWS)} sc1")
    a(f"global_store_dword {v(vT+1)}, {v(vT+3)}, {sp(sWS)} sc1")
    lab("L_noep")
    a("s_mov_b64 exec, -1")
    lab("L_fin")
    if G.stamps:
        a(f"s_memrealtime s[82:83]")
        a("s_waitcnt lgkmcnt(0)")
        a(f"s_lshl_b32 s{sT2}, s2, 2")
        a(f"s_add_u32 s{sT2}, s{sT2}, s{sWV}")
        a(f"s_lshl_b32 s{sT2}, s{sT2}, 6")
        a(f"s_add_u32 s{sT2}, s{sT2}, {WS_TS}")
        a(f"v_mov_b32 v2, s{sT2}")
        a(f"v_mov_b32 v4, s{sTS0}")
        a(f"v_mov_b32 v5, s{sTS0+2}")
        a(f"v_mov_b32 v6, s100")
        a(f"v_mov_b32 v7, s82")
        a(f"v_mov_b32 v8, s{sN}")
        a(f"s_getreg_b32 s{sT2}, hwreg(HW_REG_XCC_ID)")
        a(f"v_mov_b32 v9, s{sT2}")
        a("s_mov_b64 exec, 1")
        a(f"global_store_dwordx4 v2, v[4:7], {sp(sWS)}")
        a(f"global_store_dwordx2 v2, v[8:9], {sp(sWS)} offset:16")
        for k in range(6): a(f"v_mov_b32 v{10+k}, s{4+2*k}")
        a(f"global_store_dwordx4 v2, v[10:13], {sp(sWS)} offset:32")
        a(f"global_store_dwordx2 v2, v[14:15], {sp(sWS)} offset:48")
    if G.dbgt:
        a("s_cmp_ge_u32 s2, 1")
        a("s_cbranch_scc1 L_end")
        a(f"s_memrealtime s[82:83]")
        a("s_waitcnt lgkmcnt(0)")
        a(f"s_sub_u32 s82, s82, s{sTS0}")
        a(f"s_sub_u32 s83, s{sTS0+2}, s{sTS0}")
        a(f"s_sub_u32 s84, s100, s{sTS0}")
        a(f"s_sub_u32 s85, s4, s{sTS0}")
        a(f"s_lshl_b32 s86, s{sWV}, 4")
        a("v_mov_b32 v2, s86")
        a("v_mov_b32 v4, s82"); a("v_mov_b32 v5, s83"); a("v_mov_b32 v6, s84"); a("v_mov_b32 v7, s85")
        a("s_mov_b64 exec, 1")
        a(f"global_store_dwordx4 v2, v[4:7], {sp(sDBG)}")
    lab("L_end")
    a("s_endpgm")
    tail = ['.section .rodata,"a"', ".p2align 6", f".amdhsa_kernel {KN}",
            f"  .amdhsa_next_free_vgpr {NV+256}", "  .amdhsa_next_free_sgpr 102", f"  .amdhsa_accum_offset {NV}",
            "  .amdhsa_group_segment_fixed_size 0", "  .amdhsa_kernarg_size 104", "  .amdhsa_user_sgpr_count 2",
            "  .amdhsa_user_sgpr_kernarg_segment_ptr 1", "  .amdhsa_system_sgpr_workgroup_id_x 1",
            "  .amdhsa_float_denorm_mode_32 3",
            ".end_amdhsa_kernel"]
    return "\n".join(hdr + G.L + tail) + "\n"

if __name__ == "__main__":
    import argparse, json
    ap = argparse.ArgumentParser()
    ap.add_argument("-o", default="k.s")
    ap.add_argument("kv", nargs="*")
    args = ap.parse_args()
    kw = {}
    for x in args.kv:
        k, val = x.split("=")
        kw[k] = json.loads(val)
    open(args.o, "w").write(build(**kw))
```
